```python
import torch

def _softmax(x, axis=-1):
    return torch.softmax(x, dim=axis)
def _gelu(x):
    return torch.nn.functional.gelu(x, approximate="tanh")
def _silu(x):
    return torch.nn.functional.silu(x)
def _sigmoid(x):
    return torch.sigmoid(x)
def _layernorm(x, axis=-1, eps=1e-5):
    m = x.mean(dim=axis, keepdim=True)
    v = x.var(dim=axis, keepdim=True, unbiased=False)
    return (x - m) / torch.sqrt(v + eps)
def _scatter_add(tgt, idx, src, axis=0):
    return tgt.clone().index_add_(axis, idx, src)
def _segment_sum(src, seg, n):
    out = torch.zeros((n,) + src.shape[1:], dtype=src.dtype)
    return out.index_add_(0, seg, src)
def _pad(x, pw):
    flat = tuple(v for pair in reversed(pw) for v in pair)
    return torch.nn.functional.pad(x, flat)

kernel_name = 'gather_scatter__hybrid_graph_tf_nagphormer__graph'

def setup_inputs():

    _w = (lambda a: (lambda t: t.to(torch.bfloat16) if t.is_floating_point() else t)(torch.as_tensor(a)))
    N, deg, D = 10000, 16, 128
    E = N * deg
    src = (lambda lo, hi, *s: torch.randint(lo, hi, s))(0, N, E).to(torch.int64)
    dst = (lambda lo, hi, *s: torch.randint(lo, hi, s))(0, N, E).to(torch.int64)
    deg_cnt = torch.bincount(dst, minlength=N).to(float) + 1.0
    sc = 1.0 / D ** 0.5
    return {
        "x": _w((lambda *s: torch.randn(*s, dtype=torch.bfloat16) * 0.1)(N, D)),
        "src": _w(src),
        "dst": _w(dst),
        "deg_inv_sqrt": _w(1.0 / (lambda _x: torch.sqrt(torch.as_tensor(_x)))(deg_cnt)),
        "wq": _w((lambda *s: torch.randn(*s, dtype=torch.bfloat16) * 3.2)(D, D) * sc),
        "wk": _w((lambda *s: torch.randn(*s, dtype=torch.bfloat16) * 3.2)(D, D) * sc),
        "wv": _w((lambda *s: torch.randn(*s, dtype=torch.bfloat16) * 0.1)(D, D) * sc),
        "wo": _w((lambda *s: torch.randn(*s, dtype=torch.bfloat16) * 0.1)(D, D) * sc),
        "w_r": _w((lambda *s: torch.randn(*s, dtype=torch.bfloat16) * 0.1)(D)),
    }

def reference(x, src, dst, deg_inv_sqrt, wq, wk, wv, wo, w_r):
    N, D = x.shape[0], x.shape[1]
    K = 7
    h = x
    toks = [x]
    for _ in range(K):
        msg = h[src] * deg_inv_sqrt[src, None] * deg_inv_sqrt[dst, None]
        h = _segment_sum(msg, dst, N)
        toks.append(h)
    tok = torch.stack(toks, axis=1)
    t = _layernorm(tok, axis=-1)
    q   = torch.einsum('nkd,de->nke', t, wq)
    key = torch.einsum('nkd,de->nke', t, wk)
    v   = torch.einsum('nkd,de->nke', t, wv)
    scale = 1.0 / (D ** 0.5)
    attn = _softmax(torch.einsum('nkd,nld->nkl', q, key) * scale, axis=-1)
    o = torch.einsum('nkl,nld->nkd', attn, v)
    o = tok + torch.einsum('nkd,de->nke', o, wo)
    r = _layernorm(o, axis=-1)
    alpha = _softmax(torch.einsum('nkd,d->nk', r, w_r), axis=-1)
    return torch.einsum('nk,nkd->nd', alpha, o)
```

```python
from prog import *
from parts_tf import *

def srd(p, d, lo, hi, size):
    p(f's_mov_b32 s{d}, s{lo}\ns_mov_b32 s{d+1}, s{hi}\ns_mov_b32 s{d+2}, {size}\ns_mov_b32 s{d+3}, 0x20000')

def k_prep(p, name):
    p.kstart(name)
    p('''
    s_cmp_ge_u32 s2, 17
    s_cbranch_scc1 L_prep_end
    s_load_dwordx8 s[4:11], s[0:1], 32
    s_load_dwordx2 s[12:13], s[0:1], 64
    s_load_dwordx2 s[14:15], s[0:1], 88
    v_mov_b32 v1, v0
    s_waitcnt lgkmcnt(0)
    s_cmp_ge_u32 s2, 8
    s_cselect_b32 s16, s8, s4
    s_cselect_b32 s17, s9, s5
    s_cselect_b32 s20, s10, s6
    s_cselect_b32 s21, s11, s7
    s_mov_b32 s18, 32768
    s_mov_b32 s19, 0x20000
    s_mov_b32 s22, 32768
    s_mov_b32 s23, 0x20000
    ''')
    srd(p, 24, 14, 15, 0x10000000)
    srd(p, 28, 12, 13, 256)
    p('s_cmp_eq_u32 s2, 16\ns_cbranch_scc1 L_prep_lin')
    emit_prep(p, 2, 1, 4, 16, 20, 24, 32, 'a')
    p('s_endpgm')
    p.label('L_prep_lin')
    emit_prep_lin(p, 1, 4, 28, 24, 32)
    p.label('L_prep_end')
    p('s_endpgm')

def k_tf(p, name, stamps=False):
    p.kstart(name)
    p(f'''
    s_cmp_ge_u32 s2, 256
    s_cbranch_scc1 L_tf_end
    s_load_dwordx2 s[4:5], s[0:1], 72
    s_load_dwordx2 s[6:7], s[0:1], 88
    s_memtime s[80:81]
    v_readfirstlane_b32 s16, v0
    v_and_b32 v1, 63, v0
    s_lshr_b32 s16, s16, 6
    s_lshr_b32 s17, s2, 2
    s_and_b32 s18, s2, 3
    s_waitcnt lgkmcnt(0)
    ''')
    srd(p, 8, 4, 5, 2560000)
    srd(p, 12, 6, 7, 0x10000000)
    p(f's_load_dword s24, s[6:7], {WS_WF + 69632}')
    p(f'''
    s_lshl_b32 s20, s17, 10
    s_lshl_b32 s21, s18, 8
    s_add_u32 s20, s20, s21
    s_lshr_b32 s21, s20, 2
    s_add_u32 s21, s21, {65536 - 256}
    s_mul_i32 s22, s16, {TOK_PL}
    s_add_u32 s22, s22, {WS_TOK}
    s_add_u32 s23, s22, {16 * 81920}
    s_mul_i32 s25, s16, {L_PL}
    s_add_u32 s25, s25, {L_TB}
    s_mov_b32 s26, 81920
    ''')
    for c in range(5):
        p(f'''
        v_add_u32 v20, {64 * c}, v1
        v_mul_u32_u24 v21, 3277, v20
        v_lshrrev_b32 v21, 16, v21
        v_mul_u32_u24 v22, 20, v21
        v_sub_u32 v22, v20, v22
        v_mul_lo_u32 v21, v21, s26
        v_lshl_add_u32 v21, v22, 4, v21
        v_mov_b32 v23, s21
        v_mov_b32 v24, s20
        v_cmp_gt_u32 vcc, 16, v22
        v_cndmask_b32 v23, v23, v24, vcc
        v_add_u32 v21, v21, v23
        s_add_u32 s27, s25, {1024 * c}
        s_mov_b32 m0, s27
        buffer_load_dwordx4 v21, s[12:15], s22 offen lds
        s_add_u32 s27, s25, {1024 * (c + 5)}
        s_mov_b32 m0, s27
        buffer_load_dwordx4 v21, s[12:15], s23 offen lds
        ''')
    p(f'''
    v_lshlrev_b32 v20, 4, v1
    s_lshl_b32 s27, s16, 13
    s_add_u32 s28, s27, {WS_WF}
    s_add_u32 s27, s27, {L_W}
    s_mov_b32 m0, s27
    ''')
    for i in range(4):
        p(f'buffer_load_dwordx4 v20, s[12:15], s28 offen offset:{1024 * i} lds')
    p('s_add_u32 s27, s27, 4096\ns_add_u32 s28, s28, 4096\ns_mov_b32 m0, s27')
    for i in range(4):
        p(f'buffer_load_dwordx4 v20, s[12:15], s28 offen offset:{1024 * i} lds')
    p(f'''
    s_and_b32 s27, s16, 3
    s_lshl_b32 s27, s27, 10
    s_add_u32 s27, s27, 65536
    s_add_u32 s28, s27, {WS_WF}
    s_add_u32 s27, s27, {L_W}
    s_mov_b32 m0, s27
    buffer_load_dwordx4 v20, s[12:15], s28 offen lds
    ''')
    emit_tf_setup(p, 16, 17, 18, 30)
    p(f'''
    s_waitcnt vmcnt(0) lgkmcnt(0)
    v_mov_b32 v{vSWR}, s24
    s_barrier
    s_memtime s[82:83]
    s_waitcnt lgkmcnt(0)
    s_cmp_ge_u32 s16, 4
    s_cbranch_scc1 L_tf_two
    ''')
    emit_tf(p, 3, 8)
    p('s_branch L_tf_fin')
    p.label('L_tf_two')
    p.forget()
    emit_tf(p, 2, 8)
    p.label('L_tf_fin')
    if stamps:
        p(f'''
        s_memtime s[84:85]
        s_waitcnt lgkmcnt(0)
        s_sub_u32 s82, s82, s80
        s_sub_u32 s84, s84, s80
        s_lshl_b32 s86, s2, 3
        s_add_u32 s86, s86, s16
        s_lshl_b32 s86, s86, 3
        v_mov_b32 v2, s86
        v_mov_b32 v4, s82
        v_mov_b32 v5, s84
        buffer_store_dwordx2 v[4:5], v2, s[12:15], 0 offen
        ''')
    p.label('L_tf_end')
    p('s_endpgm')

if __name__ == '__main__':
    p = Prog()
    p.raw('; @launch kernel=prep_kernel grid=(17,1,1) block=(64,1,1) lds=0')
    p.raw('; @launch kernel=tf_kernel grid=(256,1,1) block=(512,1,1) lds=163840')
    p.raw('.amdgcn_target "amdgcn-amd-amdhsa--gfx950"\n.text')
    k_prep(p, 'prep_kernel')
    k_tf(p, 'tf_kernel', stamps=True)
    p.raw('.section .rodata,"a"\n.p2align 6')
    p.kdesc('prep_kernel', vgpr=128)
    p.raw('.p2align 6')
    p.kdesc('tf_kernel', vgpr=256)
    open('tftest.s', 'w').write(p.text())
    print('nops', p.nnop, 'lines', len(p.L))
```

```python
from prog import *
from parts_tf import *

F_HOP = 0x0000
F_B1 = 0x8000
F_B2 = 0xA000
F_TOK = 0xC000
F_PREP = 0xE000
WS_STAMP = 0x20000

TBL = 81920
CNT1, CNT2, UF, BUCK, IMG = 0, 128, 1664, 2048, 34816
DUMMY = 10239

sWS, sSRC, sDST, sX_, sDIS, sDBG, sOUT = 4, 8, 12, 16, 20, 24, 28
sW, sXC, sR, sJ, sSL, sU, sSLOW, sQ, sK, sGO, sTO, sFA, sFB, sSPIN = 44, 45, 46, 47, 48, 49, 50, 51, 52, 53, 54, 55, 56, 57
sM3 = 58
sMK = 60
sT = 92
sLA, sLB = 100, 101
sST = 32

D0, D1, D2 = 4, 8, 12
GA, GB, HA, HB = 16, 20, 24, 28
vD0, vD1, vD2 = 30, 31, 32
vGA, vGB, vDA, vDB, vFP, vFO, vPL, vT0, vT1, vT2, vT3 = 33, 34, 35, 36, 37, 38, 39, 40, 41, 42, 43
vBETA, vUB = 44, 45
EDG = 46
ADDR = lambda b, q: 100 + 10 * b + q
DATA = lambda b, q: 200 + 20 * (b & 1) + 2 * q
SEL = 240
SPIN_MAX = 1 << 22


def srd(p, d, lo, size):
    p(f's_mov_b32 s{d}, s{lo}\ns_mov_b32 s{d + 1}, s{lo + 1}\ns_mov_b32 s{d + 2}, {size}\ns_mov_b32 s{d + 3}, 0x20000')


class Uniq:
    n = 0


def lbl(x):
    Uniq.n += 1
    return f'L_{x}_{Uniq.n}'


def xstore(p, ins):
    a, b = lbl('xs'), lbl('xe')
    p(f's_cmp_lg_u32 s{sSLOW}, 0\ns_cbranch_scc1 {a}')
    vm = list(p.vm)
    for i in ins:
        p(i)
    p(f's_branch {b}')
    p.label(a)
    p.vm = vm
    for i in ins:
        p(i + (' sc1' if i.startswith('buffer_store') else ''))
    p.label(b)


def poll(p, vaddr, srdreg, nl, cond, first_issued=False):
    a, b = lbl('pl'), lbl('pd')
    p(f's_mov_b64 exec, {(1 << nl) - 1}\ns_mov_b32 s{sSPIN}, 0')
    if first_issued:
        for c in cond:
            p(c)
        p(f's_cbranch_vccz {b}')
    p.label(a)
    p(f'''
    buffer_load_dword v{vPL}, v{vaddr}, s[{srdreg}:{srdreg + 3}], 0 offen sc1
    s_add_u32 s{sSPIN}, s{sSPIN}, 1
    s_cmp_gt_u32 s{sSPIN}, {SPIN_MAX}
    s_cbranch_scc1 L_end
    s_waitcnt vmcnt(0)
    ''')
    for c in cond:
        p(c)
    p(f's_cbranch_vccnz {a}')
    p.label(b)
    p('s_mov_b64 exec, -1')


def finish(D, dis, H, G):
    o = [f'v_mul_f32 v{D + i}, v{D + i}, v{dis}' for i in range(4)]
    o += [cvt(H, D), cvt(H + 1, D + 2)]
    if G is not None:
        o += scale_g(D, dis, H, G)
    return o


def scale_g(D, dis, H, G):
    o = [f'v_lshlrev_b32 v{D}, 16, v{H}', f'v_and_b32 v{D + 1}, 0xffff0000, v{H}',
         f'v_lshlrev_b32 v{D + 2}, 16, v{H + 1}', f'v_and_b32 v{D + 3}, 0xffff0000, v{H + 1}']
    o += [f'v_mul_f32 v{D + i}, v{D + i}, v{dis}' for i in range(4)]
    o += [cvt(G, D), cvt(G + 1, D + 2)]
    return o


def stamp(p, i, on):
    if on:
        p(f's_memtime s[90:91]\ns_waitcnt lgkmcnt(0)\ns_mov_b32 s{sST + i}, s90')


def emit_prologue(p, st):
    p(f'''
    s_cmp_ge_u32 s2, 256
    s_cbranch_scc1 L_end
    s_load_dwordx8 s[32:39], s[0:1], 0
    s_load_dwordx2 s[40:41], s[0:1], 72
    s_load_dwordx4 s[92:95], s[0:1], 80
    v_readfirstlane_b32 s{sW}, v0
    v_and_b32 v1, 63, v0
    s_and_b32 s{sXC}, s2, 7
    s_lshr_b32 s{sR}, s2, 3
    s_lshr_b32 s{sW}, s{sW}, 6
    s_and_b32 s{sJ}, s{sR}, 7
    s_lshr_b32 s{sSL}, s{sR}, 3
    s_lshl_b32 s96, s{sXC}, 2
    s_add_u32 s{sSL}, s{sSL}, s96
    s_lshl_b32 s{sU}, s{sW}, 3
    s_add_u32 s{sU}, s{sU}, s{sJ}
    s_lshl_b32 s96, s{sSL}, 3
    s_add_u32 s96, s96, s{sW}
    s_lshl_b32 s96, s96, 7
    v_lshl_add_u32 v{vFP}, v1, 2, s96
    s_lshl_b32 s97, s{sJ}, 2
    s_add_u32 s96, s96, s97
    v_mov_b32 v{vFO}, s96
    v_mov_b32 v{vT0}, s96
    s_lshl_b32 s96, s{sXC}, 3
    s_add_u32 s96, s96, s{sW}
    s_lshl_b32 s96, s96, 5
    s_add_u32 s96, s96, s{sR}
    s_lshl_b32 s96, s96, 2
    s_add_u32 s96, s96, {F_B1}
    v_writelane_b32 v{vT0}, s96, 1
    s_lshl_b32 s96, s{sXC}, 5
    s_add_u32 s96, s96, s{sR}
    s_lshl_b32 s96, s96, 3
    s_add_u32 s96, s96, s{sW}
    s_lshl_b32 s96, s96, 2
    s_add_u32 s96, s96, {F_B2}
    v_writelane_b32 v{vT0}, s96, 2
    s_lshl_b32 s96, s{sU}, 5
    s_add_u32 s96, s96, s{sSL}
    s_lshl_b32 s96, s96, 2
    s_add_u32 s96, s96, {F_TOK}
    v_writelane_b32 v{vT0}, s96, 3
    v_mov_b32 v{vT1}, 0
    v_lshlrev_b32 v{vT2}, 4, v0
    v_lshlrev_b32 v{vT3}, 3, v0
    s_mul_i32 s96, s{sR}, 20000
    s_add_u32 s97, s96, 8192
    s_add_u32 s98, s96, 16384
    s_waitcnt lgkmcnt(0)
    ''')
    srd(p, sWS, 94, 0x10000000)
    srd(p, sDST, 36, 640000)
    srd(p, sSRC, 34, 640000)
    p(f'''
    s_mov_b64 exec, 15
    buffer_store_dword v{vT1}, v{vT0}, s[{sWS}:{sWS + 3}], 0 offen sc1
    s_mov_b64 exec, -1
    buffer_load_dwordx4 v[{EDG}:{EDG + 3}], v{vT2}, s[{sDST}:{sDST + 3}], s96 offen
    buffer_load_dwordx4 v[{EDG + 10}:{EDG + 13}], v{vT2}, s[{sSRC}:{sSRC + 3}], s96 offen
    buffer_load_dwordx4 v[{EDG + 4}:{EDG + 7}], v{vT2}, s[{sDST}:{sDST + 3}], s97 offen
    buffer_load_dwordx4 v[{EDG + 14}:{EDG + 17}], v{vT2}, s[{sSRC}:{sSRC + 3}], s97 offen
    buffer_load_dwordx2 v[{EDG + 8}:{EDG + 9}], v{vT3}, s[{sDST}:{sDST + 3}], s98 offen
    buffer_load_dwordx2 v[{EDG + 18}:{EDG + 19}], v{vT3}, s[{sSRC}:{sSRC + 3}], s98 offen
    ''')
    srd(p, sX_, 32, 2560000)
    srd(p, sDIS, 38, 20000)
    srd(p, sDBG, 92, 256)
    srd(p, sOUT, 40, 2560000)
    if st:
        p(f's_memtime s[90:91]\ns_waitcnt lgkmcnt(0)\ns_mov_b32 s{sST}, s90')
    p(f'''
    s_lshl_b32 s96, s{sXC}, 5
    s_add_u32 s96, s96, s{sR}
    s_lshl_b32 s96, s96, 15
    s_add_u32 s96, s96, {WS_D}
    v_lshlrev_b32 v{vT0}, 6, v0
    buffer_load_dword v2, v{vT0}, s[{sWS}:{sWS + 3}], s96 offen
    s_lshl_b32 s96, s{sU}, 15
    s_lshl_b32 s97, s{sSL}, 3
    s_add_u32 s96, s96, s97
    v_lshlrev_b32 v{vT0}, 9, v1
    buffer_load_dwordx2 v[{HA}:{HA + 1}], v{vT0}, s[{sX_}:{sX_ + 3}], s96 offen
    buffer_load_dwordx2 v[{HA + 2}:{HA + 3}], v{vT0}, s[{sX_}:{sX_ + 3}], s96 offen offset:256
    v_lshrrev_b32 v{vT1}, 4, v1
    v_and_b32 v{vT2}, 15, v1
    v_lshl_add_u32 v{vT1}, v{vT1}, 3, v{vT2}
    v_mov_b32 v{vT3}, 0x400000
    v_cmp_gt_u32 vcc, 8, v{vT2}
    v_cndmask_b32 v{vT1}, v{vT3}, v{vT1}, vcc
    s_lshl_b32 s96, s{sU}, 13
    s_add_u32 s96, s96, {8192 * 256}
    s_add_u32 s96, s96, s97
    v_lshlrev_b32 v{vT0}, 8, v{vT1}
    buffer_load_dwordx2 v[{HB}:{HB + 1}], v{vT0}, s[{sX_}:{sX_ + 3}], s96 offen
    s_lshl_b32 s96, s{sU}, 8
    v_lshlrev_b32 v{vT0}, 2, v1
    buffer_load_dword v{vD0}, v{vT0}, s[{sDIS}:{sDIS + 3}], s96 offen
    s_lshl_b32 s96, s{sU}, 6
    s_add_u32 s96, s96, 16384
    v_lshlrev_b32 v{vT0}, 1, v{vT1}
    buffer_load_ushort v{vD2}, v{vT0}, s[{sDIS}:{sDIS + 3}], s96 offen
    s_mul_i32 s96, s{sSL}, 81920
    s_lshl_b32 s97, s{sU}, 10
    s_add_u32 s97, s97, s96
    v_lshl_add_u32 v{vGA}, v1, 4, s97
    s_lshl_b32 s97, s{sU}, 8
    s_add_u32 s97, s97, s96
    s_add_u32 s97, s97, 65536
    v_lshlrev_b32 v{vT1}, 6, v{vT1}
    v_lshrrev_b32 v{vT0}, 3, v{vT1}
    v_cndmask_b32 v{vT1}, v{vT1}, v{vT0}, vcc
    v_add_u32 v{vGB}, s97, v{vT1}
    s_lshl_b32 s97, s{sW}, 13
    s_add_u32 s{sLA}, s97, {TBL}
    s_add_u32 s97, s97, s96
    v_lshl_add_u32 v{vDA}, v1, 4, s97
    s_lshl_b32 s97, s{sW}, 11
    s_add_u32 s{sLB}, s97, {TBL + 65536}
    s_add_u32 s97, s97, s96
    s_add_u32 s97, s97, 65536
    v_lshl_add_u32 v{vDB}, v1, 4, s97
    s_mov_b32 s{sGO}, {WS_G}
    s_mov_b32 s{sTO}, {WS_TOK}
    s_mov_b32 s96, {WS_G + G_PAR}
    buffer_load_dword v2, v{vGA}, s[{sWS}:{sWS + 3}], s{sGO} offen
    buffer_load_dword v2, v{vGB}, s[{sWS}:{sWS + 3}], s{sGO} offen
    buffer_load_dword v2, v{vGA}, s[{sWS}:{sWS + 3}], s96 offen
    buffer_load_dword v2, v{vGB}, s[{sWS}:{sWS + 3}], s96 offen
    ''')
    p.vm = [d - {('v', 2)} for d in p.vm]
    p(f'''
    s_getpc_b64 s[96:97]
    ''')
    p.raw('L_pc:')
    p(f'''
    s_lshl_b32 s98, s{sR}, 3
    s_add_u32 s98, s98, s{sW}
    s_lshl_b32 s98, s98, 8
    v_lshl_add_u32 v{vT0}, v1, 2, s98
    v_min_u32 v{vT0}, L_code_end-L_pc-4, v{vT0}
    global_load_dword v3, v{vT0}, s[96:97]
    ''')
    p.vm = [d - {('v', 3)} for d in p.vm]
    p(f'''
    v_mov_b32 v66, -1
    v_mov_b32 v67, -1
    v_mov_b32 v68, -1
    v_mov_b32 v69, -1
    v_lshlrev_b32 v70, 4, v0
    ''')
    for i in range(4):
        p(f'ds_write_b128 v70, v[66:69] offset:{BUCK + 8192 * i}')
    for i in range(4):
        p(f'v_mov_b32 v{72 + i}, 0x{DUMMY | DUMMY << 16:x}')
    for i in range(3):
        p(f'ds_write_b128 v70, v[72:75] offset:{IMG + 8192 * i}')
    p(f'v_lshlrev_b32 v71, 4, v1\nds_write_b128 v71, v[72:75] offset:{IMG + 24576}')
    p(f'''
    v_lshlrev_b32 v70, 2, v0
    v_lshlrev_b32 v71, 10, v0
    v_add_u32 v71, {BUCK}, v71
    ; A counter t<256
    v_lshrrev_b32 v{vUB}, 7, v0
    v_and_b32 v72, 1, v0
    v_bfe_u32 v73, v0, 3, 2
    v_lshl_add_u32 v{vBETA}, v72, 2, v73
    v_bfe_u32 v72, v0, 1, 2
    v_bfe_u32 v73, v0, 5, 2
    v_lshl_add_u32 v72, v72, 4, v73
    ; B counter 256<=t<320
    v_bfe_u32 v74, v0, 5, 1
    v_bfe_u32 v75, v0, 2, 1
    v_add_u32 v75, 8, v75
    v_and_b32 v76, 3, v0
    v_bfe_u32 v77, v0, 3, 2
    v_lshl_add_u32 v76, v76, 4, v77
    v_cmp_gt_u32 vcc, 0x100, v0
    v_cndmask_b32 v{vUB}, v74, v{vUB}, vcc
    v_cndmask_b32 v{vBETA}, v75, v{vBETA}, vcc
    v_cndmask_b32 v72, v76, v72, vcc
    v_mul_u32_u24 v72, 40, v72
    v_lshl_add_u32 v72, v{vBETA}, 2, v72
    v_mul_u32_u24 v73, 12800, v{vUB}
    v_add_u32 v72, v72, v73
    v_add_u32 v72, {IMG}, v72
    v_lshlrev_b32 v72, 16, v72
    v_mov_b32 v73, 0x8000
    v_cmp_gt_u32 vcc, 0x140, v0
    v_cndmask_b32 v72, v73, v72, vcc
    v_mov_b32 v73, 0
    v_cmp_gt_u32 vcc, 0x180, v0
    v_cndmask_b32 v72, v73, v72, vcc
    v_cmp_gt_u32 vcc, 0x184, v0
    s_and_saveexec_b64 s[96:97], vcc
    ds_write_b32 v70, v72 offset:{CNT2}
    s_mov_b64 exec, s[96:97]
    v_cmp_gt_u32 vcc, 32, v0
    s_and_saveexec_b64 s[96:97], vcc
    ds_write_b32 v70, v71 offset:{CNT1}
    s_mov_b64 exec, s[96:97]
    v_cmp_gt_u32 vcc, 0x1c4, v0
    s_mov_b64 s[{sM3}:{sM3 + 1}], vcc
    ''')
    p(f'''
    v_and_b32 v70, 15, v1
    v_lshrrev_b32 v71, 4, v1
    v_and_b32 v72, 3, v70
    v_lshrrev_b32 v70, 2, v70
    v_mov_b32 v73, 0x{ONE2:x}
    v_cmp_eq_u32 vcc, v71, v72
    v_cndmask_b32 v73, 0, v73, vcc
    ''')
    for b in range(4):
        p(f'v_cmp_eq_u32 vcc, {b}, v70')
        for r in range(4):
            p(f'v_cndmask_b32 v{SEL + 4 * b + r}, 0, v73, vcc')
    p(f's_waitcnt vmcnt({len(p.vm) - 1}) lgkmcnt(0)')
    p(f'''
    s_barrier
    s_getreg_b32 s96, hwreg(HW_REG_XCC_ID, 0, 4)
    s_or_b32 s96, s96, 0x80
    s_lshl_b32 s97, s{sXC}, 5
    v_lshl_add_u32 v{vT3}, v1, 2, s97
    s_add_u32 s97, s97, s{sR}
    v_mov_b32 v70, s96
    v_mov_b32 v71, s97
    s_mul_i32 s99, s96, 0x01010101
    s_cmp_lg_u32 s{sW}, 0
    s_cbranch_scc1 L_noarr
    s_mov_b64 exec, 1
    buffer_store_byte v70, v71, s[{sDBG}:{sDBG + 3}], 0 offen sc1
    s_mov_b64 exec, -1
    ''')
    p.vm.pop()
    p.label('L_noarr')


def emit_b1(p, st):
    E, S_, R = EDG, EDG + 10, EDG + 20
    p(f's_movk_i32 s96, 0x100\ns_movk_i32 s97, 0x2000\nv_mov_b32 v{vT0}, 4')
    stamp(p, 1, st and False)
    for i in range(10):
        if i == 8:
            p(f's_mov_b64 exec, s[{sM3}:{sM3 + 1}]')
        d, s, r = E + i, S_ + i, R + i
        p(f'''
        v_lshrrev_b32 v{vT1}, 8, v{d}
        v_lshrrev_b32 v{vT2}, 6, v{d}
        v_cmp_gt_u32 vcc, s97, v{d}
        v_add_u32 v{vT2}, 0xffffff80, v{vT2}
        v_and_or_b32 v{r}, v{d}, 63, s96
        v_and_b32 v{d}, 0xff, v{d}
        v_cndmask_b32 v{vT1}, v{vT2}, v{vT1}, vcc
        v_cndmask_b32 v{d}, v{r}, v{d}, vcc
        v_lshlrev_b32 v{vT1}, 2, v{vT1}
        v_lshl_or_b32 v{s}, v{d}, 18, v{s}
        ds_add_rtn_u32 v{r}, v{vT1}, v{vT0} offset:{CNT1}
        ''')
        if i == 0:
            stamp(p, 1, st)
        if i >= 3 and i < 8:
            p(f'ds_write_b32 v{R + i - 3}, v{S_ + i - 3}')
    p(f'ds_write_b32 v{R + 8}, v{S_ + 8}\nds_write_b32 v{R + 9}, v{S_ + 9}')
    p('s_mov_b64 exec, -1')
    for i in range(5, 8):
        p(f'ds_write_b32 v{R + i}, v{S_ + i}')
    p(f'''
    v_and_b32 v{vD1}, 0xffff0000, v{vD0}
    v_lshlrev_b32 v{vD0}, 16, v{vD0}
    v_lshlrev_b32 v{vD2}, 16, v{vD2}
    ''')
    for x in scale_g(D0, vD0, HA, GA) + scale_g(D1, vD1, HA + 2, GA + 2) + scale_g(D2, vD2, HB, GB):
        p(x)
    poll(p, vT3, sDBG, 8, [f'v_and_b32 v{vT1}, 0x80808080, v{vPL}', f'v_cmp_ne_u32 vcc, 0x80808080, v{vT1}'])
    p(f'''
    s_mov_b64 exec, 0xff
    v_cmp_ne_u32 vcc, s99, v{vPL}
    s_mov_b64 exec, -1
    s_cmp_lg_u64 vcc, 0
    s_cselect_b32 s{sSLOW}, 1, 0
    ''')
    xstore(p, [f'buffer_store_dwordx4 v[{GA}:{GA + 3}], v{vGA}, s[{sWS}:{sWS + 3}], s{sGO} offen',
               f'buffer_store_dwordx2 v[{GB}:{GB + 1}], v{vGB}, s[{sWS}:{sWS + 3}], s{sGO} offen'])
    p('s_waitcnt lgkmcnt(0)\ns_barrier')
    stamp(p, 2, st)
    p(f'''
    v_lshlrev_b32 v{vT0}, 4, v1
    s_lshl_b32 s96, s{sW}, 12
    v_add_u32 v{vT1}, s96, v{vT0}
    v_lshlrev_b32 v{vT2}, 2, v1
    ''')
    for i in range(4):
        p(f'ds_read_b128 v[{EDG + 4 * i}:{EDG + 4 * i + 3}], v{vT1} offset:{BUCK + 1024 * i}')
    p(f'''
    ds_read_b32 v{vT1}, v{vT2} offset:{CNT1}
    s_lshl_b32 s96, s{sXC}, 20
    s_lshl_b32 s97, s{sW}, 17
    s_add_u32 s96, s96, s97
    s_lshl_b32 s97, s{sR}, 10
    s_add_u32 s96, s96, s97
    s_add_u32 s92, s96, {WS_D}
    s_add_u32 s93, s92, 0x8000
    s_add_u32 s94, s92, 0x10000
    s_add_u32 s95, s92, 0x18000
    s_waitcnt lgkmcnt(0)
    ''')
    xstore(p, [f'buffer_store_dwordx4 v[{EDG + 4 * i}:{EDG + 4 * i + 3}], v{vT0}, s[{sWS}:{sWS + 3}], s{92 + i} offen' for i in range(4)])
    p(f'''
    v_lshlrev_b32 v{vT2}, 10, v1
    v_sub_u32 v{vT1}, v{vT1}, v{vT2}
    s_mov_b32 exec_hi, 0
    v_cmp_lt_u32 vcc, {BUCK + 1024}, v{vT1}
    s_mov_b64 exec, -1
    s_cmp_lg_u32 vcc_lo, 0
    s_cselect_b32 s96, 3, 1
    s_lshl_b32 s97, s{sXC}, 3
    s_add_u32 s97, s97, s{sW}
    s_lshl_b32 s97, s97, 5
    s_add_u32 s97, s97, s{sR}
    s_lshl_b32 s97, s97, 2
    s_add_u32 s97, s97, {F_B1}
    v_mov_b32 v{vT1}, v{vFO}
    v_mov_b32 v{vT2}, 2
    v_writelane_b32 v{vT1}, s97, 1
    v_writelane_b32 v{vT2}, s96, 1
    s_lshr_b32 s96, s{sR}, 2
    s_lshl_b32 s97, s{sXC}, 3
    s_add_u32 s96, s96, s97
    s_lshl_b32 s96, s96, 3
    s_add_u32 s96, s96, s{sW}
    s_lshl_b32 s96, s96, 4
    s_add_u32 s96, s96, {F_B1}
    v_lshl_add_u32 v{vT3}, v1, 2, s96
    s_waitcnt vmcnt(0)
    s_mov_b64 exec, 3
    ''')
    xstore(p, [f'buffer_store_dword v{vT2}, v{vT1}, s[{sWS}:{sWS + 3}], 0 offen'])
    stamp(p, 3, st)


def emit_fill_all(p):
    p(f's_mov_b32 m0, s{sLA}')
    for j in range(4):
        p(f'buffer_load_dwordx4 v{vDA}, s[{sWS}:{sWS + 3}], s{sGO} offen offset:{1024 * j} sc1 lds')
    p(f's_add_u32 s96, s{sLA}, 4096\ns_add_u32 s97, s{sGO}, 4096\ns_mov_b32 m0, s96')
    for j in range(4):
        p(f'buffer_load_dwordx4 v{vDA}, s[{sWS}:{sWS + 3}], s97 offen offset:{1024 * j} sc1 lds')
    p(f's_mov_b32 m0, s{sLB}')
    for j in range(2):
        p(f'buffer_load_dwordx4 v{vDB}, s[{sWS}:{sWS + 3}], s{sGO} offen offset:{1024 * j} sc1 lds')


def emit_b2(p, st):
    E, R = EDG, EDG + 16
    poll(p, vT3, sWS, 4, [f'v_cmp_eq_u32 vcc, 0, v{vPL}'])
    p(f'''
    s_lshl_b32 s96, s{sXC}, 5
    s_add_u32 s96, s96, s{sR}
    s_lshl_b32 s96, s96, 15
    s_add_u32 s98, s96, {WS_D}
    s_lshl_b32 s97, s{sW}, 12
    s_add_u32 s96, s98, s97
    ''')
    for i in range(4):
        p(f'buffer_load_dwordx4 v[{E + 4 * i}:{E + 4 * i + 3}], v{vT0}, s[{sWS}:{sWS + 3}], s96 offen offset:{1024 * i} sc1')
    stamp(p, 4, st)
    a = lbl('nov')
    p(f'''
    s_mov_b64 exec, 15
    v_cmp_eq_u32 vcc, 3, v{vPL}
    s_mov_b64 exec, -1
    s_cbranch_vccz {a}
    v_mov_b32 v{vT1}, 0x100000
    v_lshrrev_b32 v{vT2}, 2, v{vT0}
    v_and_b32 v{vT2}, 4, v{vT2}
    ds_or_b32 v{vT2}, v{vT1} offset:{UF}
    ''')
    p.lgkm = []
    p.label(a)
    p(f'''
    v_lshlrev_b32 v{vT2}, 2, v1
    v_add_u32 v{vT2}, 1280, v{vT2}
    v_mov_b32 v{vT1}, 1
    s_movk_i32 s96, 160
    s_movk_i32 s97, 2560
    ''')
    for i in range(16):
        p(f'''
        v_lshrrev_b32 v{R + i}, 16, v{E + i}
        v_min_u32 v{R + i}, v{R + i}, v{vT2}
        ds_add_rtn_u32 v{R + i}, v{R + i}, v{vT1} offset:{CNT2}
        ''')
    poll(p, vFP, sWS, 8, [f'v_cmp_gt_u32 vcc, 2, v{vPL}'])
    emit_fill_all(p)
    p('s_movk_i32 s96, 160\ns_movk_i32 s97, 2560')
    a0, a1 = 82, 83
    for i in range(16):
        r = R + i
        p(f'''
        v_and_b32 v{a0}, 3, v{r}
        v_lshrrev_b32 v{a1}, 16, v{r}
        v_mad_u32_u24 v{a0}, v{a0}, s96, v{a1}
        v_bfe_u32 v{a1}, v{r}, 3, 13
        v_cmp_gt_u32 s[{sMK + 2 * i}:{sMK + 2 * i + 1}], 5, v{a1}
        v_mad_u32_u24 v{a0}, v{a1}, s97, v{a0}
        v_bfe_u32 v{a1}, v{r}, 2, 1
        v_lshl_add_u32 v{r}, v{a1}, 1, v{a0}
        ''')
    for i in range(16):
        p(f's_mov_b64 exec, s[{sMK + 2 * i}:{sMK + 2 * i + 1}]\nds_write_b16 v{R + i}, v{E + i}')
    p('s_mov_b64 exec, -1\ns_waitcnt lgkmcnt(0)\ns_barrier')
    stamp(p, 5, st)
    p(f'''
    v_lshlrev_b32 v{vT1}, 2, v0
    ds_read_b32 v{vT2}, v{vT1} offset:{CNT2}
    s_lshr_b32 s96, s{sW}, 2
    s_mul_i32 s96, s96, 12800
    s_and_b32 s97, s{sW}, 3
    s_mul_i32 s92, s97, 2560
    s_add_u32 s92, s92, s96
    s_mul_i32 s93, s97, 640
    s_add_u32 s93, s93, s96
    s_add_u32 s93, s93, 10240
    v_add_u32 v{vT3}, s92, v{vT0}
    v_add_u32 v{a0}, s93, v{vT0}
    ds_read_b128 v[{E}:{E + 3}], v{vT3} offset:{IMG}
    ds_read_b128 v[{E + 4}:{E + 7}], v{vT3} offset:{IMG + 1024}
    ds_read_b128 v[{E + 8}:{E + 11}], v{vT3} offset:{IMG + 2048}
    ds_read_b128 v[{E + 12}:{E + 15}], v{a0} offset:{IMG}
    v_and_b32 v{vT2}, 0xffff, v{vT2}
    v_lshlrev_b32 v{vT1}, v{vBETA}, 1
    v_cmp_lt_u32 vcc, 24, v{vT2}
    v_cndmask_b32 v{a1}, 0, v{vT1}, vcc
    v_lshlrev_b32 v{vT1}, 10, v{vT1}
    v_cmp_lt_u32 vcc, 32, v{vT2}
    v_cndmask_b32 v{vT1}, 0, v{vT1}, vcc
    v_or_b32 v{a1}, v{a1}, v{vT1}
    v_mov_b32 v{vT1}, 0x100000
    v_cmp_lt_u32 vcc, 40, v{vT2}
    v_cndmask_b32 v{vT1}, 0, v{vT1}, vcc
    v_or_b32 v{a1}, v{a1}, v{vT1}
    v_cmp_gt_u32 vcc, 0x140, v0
    v_cndmask_b32 v{a1}, 0, v{a1}, vcc
    v_lshlrev_b32 v{vT1}, 2, v{vUB}
    v_cmp_ne_u32 vcc, 0, v{a1}
    s_and_saveexec_b64 s[96:97], vcc
    ds_or_b32 v{vT1}, v{a1} offset:{UF}
    s_mov_b64 exec, s[96:97]
    s_waitcnt lgkmcnt(0)
    ''')
    xstore(p, [f'buffer_store_dwordx4 v[{E}:{E + 3}], v{vT3}, s[{sWS}:{sWS + 3}], s98 offen',
               f'buffer_store_dwordx4 v[{E + 4}:{E + 7}], v{vT3}, s[{sWS}:{sWS + 3}], s98 offen offset:1024',
               's_mov_b32 exec_hi, 0',
               f'buffer_store_dwordx4 v[{E + 8}:{E + 11}], v{vT3}, s[{sWS}:{sWS + 3}], s98 offen offset:2048',
               's_mov_b32 exec_hi, 0xff',
               f'buffer_store_dwordx4 v[{E + 12}:{E + 15}], v{a0}, s[{sWS}:{sWS + 3}], s98 offen',
               's_mov_b64 exec, -1'])
    p(f'''
    s_waitcnt lgkmcnt(0)
    s_barrier
    s_lshr_b32 s96, s{sW}, 2
    s_lshl_b32 s96, s96, 2
    v_mov_b32 v{vT1}, s96
    ds_read_b32 v{vT2}, v{vT1} offset:{UF}
    s_lshl_b32 s96, s{sXC}, 5
    s_add_u32 s96, s96, s{sR}
    s_lshl_b32 s96, s96, 3
    s_add_u32 s96, s96, s{sW}
    s_lshl_b32 s96, s96, 2
    s_add_u32 s96, s96, {F_B2}
    v_mov_b32 v{vT1}, s96
    s_lshl_b32 s96, s{sXC}, 6
    s_add_u32 s96, s96, s{sU}
    s_lshl_b32 s96, s96, 4
    s_add_u32 s96, s96, {F_B2}
    v_lshl_add_u32 v{vT3}, v1, 2, s96
    v_or_b32 v{vT2}, 0x80000000, v{vT2}
    s_waitcnt vmcnt(0)
    s_mov_b64 exec, 1
    ''')
    xstore(p, [f'buffer_store_dword v{vT2}, v{vT1}, s[{sWS}:{sWS + 3}], 0 offen'])
    stamp(p, 6, st)
    poll(p, vT3, sWS, 4, [f'v_cmp_eq_u32 vcc, 0, v{vPL}'])
    X = 46
    p(f'''
    v_readfirstlane_b32 s{sQ}, v{vPL}
    s_lshr_b32 s96, s{sU}, 1
    s_lshl_b32 s97, s{sXC}, 5
    s_add_u32 s96, s96, s97
    s_lshl_b32 s96, s96, 15
    s_and_b32 s97, s{sU}, 1
    s_mul_i32 s97, s97, 12800
    s_add_u32 s96, s96, s97
    s_add_u32 s96, s96, {WS_D}
    v_mul_u32_u24 v{vT1}, 40, v1
    ''')
    for pl in range(5):
        r = X + 10 * pl
        if pl == 4:
            a = lbl('np4')
            p(f's_and_b32 s97, s{sQ}, 0xffc00\ns_cbranch_scc0 {a}')
            vm = list(p.vm)
        if pl:
            p(f's_add_u32 s96, s96, 2560')
        p(f'''
        buffer_load_dwordx4 v[{r}:{r + 3}], v{vT1}, s[{sWS}:{sWS + 3}], s96 offen sc1
        buffer_load_dwordx4 v[{r + 4}:{r + 7}], v{vT1}, s[{sWS}:{sWS + 3}], s96 offen offset:16 sc1
        buffer_load_dwordx2 v[{r + 8}:{r + 9}], v{vT1}, s[{sWS}:{sWS + 3}], s96 offen offset:32 sc1
        ''')
        if pl == 4:
            p(f's_mov_b32 s97, {TBL}')
            for b in range(10):
                p(f'v_mad_u32_u16 v{ADDR(b, 8)}, v{r + b}, 8, s97')
                p(f'v_mad_u32_u16 v{ADDR(b, 9)}, v{r + b}, 8, s97 op_sel:[1,0,0,0]')
            p.vm = vm
            p.label(a)
    stamp(p, 7, st)
    p(f's_mov_b32 s97, {TBL}')
    for pl in range(4):
        r = X + 10 * pl
        for b in range(10):
            p(f'v_mad_u32_u16 v{ADDR(b, 2 * pl)}, v{r + b}, 8, s97')
            p(f'v_mad_u32_u16 v{ADDR(b, 2 * pl + 1)}, v{r + b}, 8, s97 op_sel:[1,0,0,0]')
    p(f'''
    s_mov_b32 s{sK}, 1
    s_waitcnt vmcnt(0)
    s_barrier
    ''')
    stamp(p, 8, st)


def emit_reads(p, b):
    for q in range(6):
        p(f'ds_read_b64_tr_b16 v[{DATA(b, q)}:{DATA(b, q) + 1}], v{ADDR(b, q)}')
    a = lbl('r')
    p(f's_bitcmp1_b32 s{sQ}, {b}\ns_cbranch_scc0 {a}')
    p.opt_begin()
    for q in (6, 7):
        p(f'ds_read_b64_tr_b16 v[{DATA(b, q)}:{DATA(b, q) + 1}], v{ADDR(b, q)}')
    p(f's_bitcmp1_b32 s{sQ}, {10 + b}\ns_cbranch_scc0 {a}')
    for q in (8, 9):
        p(f'ds_read_b64_tr_b16 v[{DATA(b, q)}:{DATA(b, q) + 1}], v{ADDR(b, q)}')
    p.opt_end(a)


def emit_mfmas(p, b):
    D = (D0, D1, D2)[b >> 2]
    sel = SEL + 4 * (b & 3)
    for i in range(3):
        p(mf32(D, DATA(b, 2 * i), sel, None if (b & 3) == 0 and i == 0 else D))
    a = lbl('m')
    p(f's_bitcmp1_b32 s{sQ}, {b}\ns_cbranch_scc0 {a}')
    p.opt_begin()
    p(mf32(D, DATA(b, 6), sel, D))
    p(f's_bitcmp1_b32 s{sQ}, {10 + b}\ns_cbranch_scc0 {a}')
    p(mf32(D, DATA(b, 8), sel, D))
    p.opt_end(a)


def emit_slow_unit(p):
    n0, n1, n2, ed, es, m0_, m1_ = 200, 201, 202, 203, 204, 205, 206
    X = 208
    p.label('L_slow')
    for i in range(12):
        p(f'v_mov_b32 v{D0 + i}, 0')
    p(f'''
    s_lshl_b32 s96, s{sU}, 7
    v_lshl_add_u32 v{n0}, v1, 1, s96
    v_add_u32 v{n1}, 1, v{n0}
    v_lshrrev_b32 v{m0_}, 4, v1
    v_and_b32 v{m1_}, 15, v1
    v_lshl_add_u32 v{n2}, v{m0_}, 3, v{m1_}
    s_lshl_b32 s96, s{sU}, 5
    s_add_u32 s96, s96, 8192
    v_add_u32 v{n2}, s96, v{n2}
    v_cmp_gt_u32 vcc, 8, v{m1_}
    v_cndmask_b32 v{n2}, -1, v{n2}, vcc
    v_lshlrev_b32 v{X + 8}, 2, v1
    s_mov_b32 s92, 0
    s_movk_i32 s93, 0x2000
    s_add_u32 s94, s{sU}, 256
    ''')
    p.label('L_slow_e')
    p(f'''
    buffer_load_dword v{ed}, v{X + 8}, s[{sDST}:{sDST + 3}], s92 offen
    buffer_load_dword v{es}, v{X + 8}, s[{sSRC}:{sSRC + 3}], s92 offen
    s_waitcnt vmcnt(0)
    v_lshrrev_b32 v{m0_}, 7, v{ed}
    v_lshrrev_b32 v{m1_}, 5, v{ed}
    v_cmp_eq_u32 s[96:97], s{sU}, v{m0_}
    v_cmp_eq_u32 vcc, s94, v{m1_}
    s_or_b64 s[96:97], s[96:97], vcc
    ''')
    p.label('L_slow_b')
    p(f'''
    s_cmp_eq_u64 s[96:97], 0
    s_cbranch_scc1 L_slow_n
    s_ff1_i32_b64 s95, s[96:97]
    s_bitset0_b64 s[96:97], s95
    v_readlane_b32 s98, v{ed}, s95
    v_readlane_b32 s99, v{es}, s95
    s_lshl_b32 s99, s99, 3
    s_add_u32 s99, s99, {TBL}
    v_mov_b32 v{X + 6}, s99
    ds_read_b64 v[{X + 4}:{X + 5}], v{X + 6}
    s_waitcnt lgkmcnt(0)
    v_lshlrev_b32 v{X}, 16, v{X + 4}
    v_and_b32 v{X + 1}, 0xffff0000, v{X + 4}
    v_lshlrev_b32 v{X + 2}, 16, v{X + 5}
    v_and_b32 v{X + 3}, 0xffff0000, v{X + 5}
    ''')
    for D, n in ((D0, n0), (D1, n1), (D2, n2)):
        p(f'v_cmp_eq_u32 vcc, s98, v{n}\ns_mov_b64 exec, vcc')
        for i in range(4):
            p(f'v_add_f32 v{D + i}, v{D + i}, v{X + i}')
        p('s_mov_b64 exec, -1')
    p('s_branch L_slow_b')
    p.label('L_slow_n')
    p(f'''
    s_add_u32 s92, s92, 256
    s_cmp_lt_u32 s92, 640000
    s_cbranch_scc1 L_slow_e
    ''')
    for x in finish(D0, vD0, HA, GA) + finish(D1, vD1, HA + 2, GA + 2):
        p(x)
    p(f's_cmp_eq_u32 s{sK}, 7\ns_cbranch_scc1 L_gath_done')
    xstore(p, [f'buffer_store_dwordx4 v[{GA}:{GA + 3}], v{vGA}, s[{sWS}:{sWS + 3}], s{sGO} offen'])
    p('s_branch L_gath_done')


def emit_hops(p, st):
    p.label('L_hop')
    p(f'''
    buffer_store_dwordx4 v[{HA}:{HA + 3}], v{vGA}, s[{sWS}:{sWS + 3}], s{sTO} offen sc1
    buffer_store_dwordx2 v[{HB}:{HB + 1}], v{vGB}, s[{sWS}:{sWS + 3}], s{sTO} offen sc1
    s_xor_b32 s{sGO}, s{sGO}, {WS_G ^ (WS_G + G_PAR)}
    s_add_u32 s{sTO}, s{sTO}, {TOK_PL}
    s_lshl_b32 s{sFA}, s{sK}, 1
    s_add_u32 s{sFA}, s{sFA}, 1
    s_add_u32 s{sFB}, s{sFA}, 1
    s_bitcmp1_b32 s{sQ}, 20
    s_cbranch_scc1 L_slow
    ''')
    p.auto = False
    emit_reads(p, 0)
    for b in range(10):
        if b < 9:
            emit_reads(p, b + 1)
        p(f's_waitcnt lgkmcnt({6 if b < 9 else 0})')
        emit_mfmas(p, b)
        if b == 4:
            for x in finish(D0, vD0, HA, GA):
                p(x)
        if b == 8:
            for x in finish(D1, vD1, HA + 2, GA + 2):
                p(x)
            a = lbl('ng')
            p(f's_cmp_eq_u32 s{sK}, 7\ns_cbranch_scc1 {a}')
            xstore(p, [f'buffer_store_dwordx4 v[{GA}:{GA + 3}], v{vGA}, s[{sWS}:{sWS + 3}], s{sGO} offen'])
            p.label(a)
    p.auto = True
    p.forget()
    p.label('L_gath_done')
    for x in finish(D2, vD2, HB, GB):
        p(x)
    p(f'''
    s_cmp_eq_u32 s{sK}, 7
    s_cbranch_scc1 L_hops_done
    v_mov_b32 v{vT0}, s{sFA}
    v_mov_b32 v{vT1}, s{sFB}
    s_waitcnt vmcnt(0)
    ''')
    xstore(p, ['s_mov_b64 exec, 1',
               f'buffer_store_dword v{vT0}, v{vFO}, s[{sWS}:{sWS + 3}], 0 offen',
               's_mov_b64 exec, -1',
               f'buffer_store_dwordx2 v[{GB}:{GB + 1}], v{vGB}, s[{sWS}:{sWS + 3}], s{sGO} offen'])
    p(f'''
    s_mov_b64 exec, 0xff
    buffer_load_dword v{vPL}, v{vFP}, s[{sWS}:{sWS + 3}], 0 offen sc1
    s_mov_b64 exec, -1
    ''')
    if st:
        p(f's_cmp_lg_u32 s{sK}, 3\ns_cbranch_scc1 L_ns1')
        stamp(p, 9, st)
        p.label('L_ns1')
    p('s_barrier\ns_waitcnt vmcnt(0)')
    xstore(p, ['s_mov_b64 exec, 1',
               f'buffer_store_dword v{vT1}, v{vFO}, s[{sWS}:{sWS + 3}], 0 offen',
               's_mov_b64 exec, -1'])
    poll(p, vFP, sWS, 8, [f'v_cmp_gt_u32 vcc, s{sFA}, v{vPL}'], first_issued=True)
    p.forget()
    p(f's_mov_b32 m0, s{sLA}')
    for j in range(4):
        p(f'buffer_load_dwordx4 v{vDA}, s[{sWS}:{sWS + 3}], s{sGO} offen offset:{1024 * j} sc1 lds')
    p(f's_add_u32 s96, s{sLA}, 4096\ns_add_u32 s97, s{sGO}, 4096\ns_mov_b32 m0, s96')
    p(f'buffer_load_dwordx4 v{vDA}, s[{sWS}:{sWS + 3}], s97 offen sc1 lds')
    p(f'''
    s_mov_b64 exec, 0xff
    buffer_load_dword v{vPL}, v{vFP}, s[{sWS}:{sWS + 3}], 0 offen sc1
    s_mov_b64 exec, -1
    ''')
    for j in range(1, 4):
        p(f'buffer_load_dwordx4 v{vDA}, s[{sWS}:{sWS + 3}], s97 offen offset:{1024 * j} sc1 lds')
    p('s_waitcnt vmcnt(3)')
    poll(p, vFP, sWS, 8, [f'v_cmp_gt_u32 vcc, s{sFB}, v{vPL}'], first_issued=True)
    p.forget()
    p(f's_mov_b32 m0, s{sLB}')
    for j in range(2):
        p(f'buffer_load_dwordx4 v{vDB}, s[{sWS}:{sWS + 3}], s{sGO} offen offset:{1024 * j} sc1 lds')
    p(f'''
    s_add_u32 s{sK}, s{sK}, 1
    s_waitcnt vmcnt(0)
    s_barrier
    ''')
    if st:
        p(f's_cmp_lg_u32 s{sK}, 3\ns_cbranch_scc1 L_ns2')
        stamp(p, 10, st)
        p.label('L_ns2')
    p('s_branch L_hop')
    emit_slow_unit(p)
    p.label('L_hops_done')
    p(f'''
    buffer_store_dwordx4 v[{HA}:{HA + 3}], v{vGA}, s[{sWS}:{sWS + 3}], s{sTO} offen sc1
    buffer_store_dwordx2 v[{HB}:{HB + 1}], v{vGB}, s[{sWS}:{sWS + 3}], s{sTO} offen sc1
    ''')


def emit_stamps_out(p):
    stamp(p, 11, True)
    p(f'''
    s_lshl_b32 s96, s2, 3
    s_add_u32 s96, s96, s{sW}
    s_lshl_b32 s96, s96, 6
    s_add_u32 s96, s96, {WS_STAMP}
    v_mov_b32 v2, s96
    s_mov_b64 exec, 1
    ''')
    for i in range(12):
        p(f'v_mov_b32 v3, s{sST + i}\nbuffer_store_dword v3, v2, s[{sWS}:{sWS + 3}], 0 offen offset:{4 * i}')
    p(f'v_mov_b32 v3, s{sQ}\nbuffer_store_dword v3, v2, s[{sWS}:{sWS + 3}], 0 offen offset:48')
    p(f'v_mov_b32 v3, s{sSLOW}\nbuffer_store_dword v3, v2, s[{sWS}:{sWS + 3}], 0 offen offset:52')
    p('s_mov_b64 exec, -1')
```

```python
from prog import *

WS_FLAGS = 0x0
WS_WF = 0x40000
WS_G = 0x100000
G_PAR = 0x400000
WS_D = 0x900000
WS_TOK = 0x1200000
TOK_PL = 32 * 81920
WS_OVF = 0x3000000

L_W = 82176
L_LIN = L_W + 65536
L_SCR = L_LIN + 4096
L_TB = 0
L_PL = 10256

ONE2 = 0x3f803f80


def emit_lane_consts_prep(p, vl, va, tmp):
    p(f'''
    v_and_b32 v{tmp}, 12, v{vl}
    v_lshlrev_b32 v{tmp}, 9, v{tmp}
    v_and_b32 v{va}, 3, v{vl}
    v_lshl_add_u32 v{va}, v{va}, 8, v{tmp}
    v_lshrrev_b32 v{tmp}, 4, v{vl}
    v_lshl_add_u32 v{va}, v{tmp}, 4, v{va}
    ''')


def emit_i16(p, vl, dst, t0, t1):
    p(f'''
    v_and_b32 v{t0}, 15, v{vl}
    v_lshrrev_b32 v{t1}, 4, v{vl}
    v_lshlrev_b32 v{t1}, 2, v{t1}
    v_sub_u32 v{t0}, v{t0}, v{t1}          ; j = n - 4g
    v_mov_b32 v{t1}, 0x3f80
    v_cmp_eq_u32 vcc, 0, v{t0}
    v_cndmask_b32 v{dst}, 0, v{t1}, vcc
    v_cmp_eq_u32 vcc, 2, v{t0}
    v_cndmask_b32 v{dst + 1}, 0, v{t1}, vcc
    v_mov_b32 v{t1}, 0x3f800000
    v_cmp_eq_u32 vcc, 1, v{t0}
    v_cndmask_b32 v{dst}, v{dst}, v{t1}, vcc
    v_cmp_eq_u32 vcc, 3, v{t0}
    v_cndmask_b32 v{dst + 1}, v{dst + 1}, v{t1}, vcc
    ''')


def phi_base(b):
    return 32 * (b >> 1) + 4 * (b & 1)


def emit_prep(p, stask, vl, V, sA, sB, sWS, sT, tag, st_flags=''):
    va = V
    t0, t1 = V + 1, V + 2
    I16 = V + 4
    BF = V + 8
    D = V + 24
    RA = V + 56
    emit_lane_consts_prep(p, vl, va, t0)
    p(f'''
    s_and_b32 s{sT}, s{stask}, 7
    s_lshr_b32 s{sT + 1}, s{sT}, 1
    s_lshl_b32 s{sT + 1}, s{sT + 1}, 5
    s_and_b32 s{sT + 2}, s{sT}, 1
    s_lshl_b32 s{sT + 2}, s{sT + 2}, 2
    s_add_u32 s{sT + 1}, s{sT + 1}, s{sT + 2}
    s_cmp_ge_u32 s{stask}, 8
    s_cbranch_scc1 L_prepW{tag}
    s_lshl_b32 s{sT + 1}, s{sT + 1}, 8
    ''')
    for e4 in range(4):
        p(f'buffer_load_dwordx4 v[{BF + 4 * e4}:{BF + 4 * e4 + 3}], v{va}, s[{sB}:{sB + 3}], s{sT + 1} offen offset:{64 * e4}')
    p('s_waitcnt vmcnt(0)')
    p(f's_branch L_prepC{tag}')
    p.label(f'L_prepW{tag}')
    p(f's_lshl_b32 s{sT + 1}, s{sT + 1}, 1')
    for et in range(8):
        p(f's_add_u32 s{sT + 2}, s{sT + 1}, {phi_base(et) * 256}')
        p(f'buffer_load_dwordx2 v[{RA + 2 * et}:{RA + 2 * et + 1}], v{va}, s[{sB}:{sB + 3}], s{sT + 2} offen')
    emit_i16(p, vl, I16, t0, t1)
    for et in range(8):
        p(f'v_mfma_f32_16x16x16_bf16 v[{D + 4 * et}:{D + 4 * et + 3}], v[{RA + 2 * et}:{RA + 2 * et + 1}], v[{I16}:{I16 + 1}], 0')
    for et in range(8):
        p(f'v_cvt_pk_bf16_f32 v{BF + 2 * et}, v{D + 4 * et}, v{D + 4 * et + 1}')
        p(f'v_cvt_pk_bf16_f32 v{BF + 2 * et + 1}, v{D + 4 * et + 2}, v{D + 4 * et + 3}')
    p('s_waitcnt vmcnt(0)')
    p.label(f'L_prepC{tag}')

    def loadA(b):
        p(f's_mov_b32 s{sT + 2}, {phi_base(b) * 256}')
        for e4 in range(4):
            r = RA + 16 * (b & 1) + 4 * e4
            p(f'buffer_load_dwordx4 v[{r}:{r + 3}], v{va}, s[{sA}:{sA + 3}], s{sT + 2} offen offset:{64 * e4}')
    loadA(0)
    for b in range(8):
        if b + 1 < 8:
            loadA(b + 1)
        for e4 in range(4):
            r = RA + 16 * (b & 1) + 4 * e4
            c = '0' if e4 == 0 else f'v[{D + 4 * b}:{D + 4 * b + 3}]'
            p(f'v_mfma_f32_16x16x32_bf16 v[{D + 4 * b}:{D + 4 * b + 3}], v[{r}:{r + 3}], v[{BF + 4 * e4}:{BF + 4 * e4 + 3}], {c}')
    p(f'v_add_f32 v{t0}, v{D}, v{D + 1}')
    p(f'v_add_f32 v{t1}, v{D + 2}, v{D + 3}')
    for i in range(4, 32, 2):
        p(f'v_add_f32 v{t0}, v{t0}, v{D + i}')
        p(f'v_add_f32 v{t1}, v{t1}, v{D + i + 1}')
    p(f'''
    v_add_f32 v{t0}, v{t0}, v{t1}
    v_mov_b32 v{t1}, v{t0}
    v_permlane16_swap_b32 v{t0}, v{t1}
    v_add_f32 v{t0}, v{t0}, v{t1}
    v_mov_b32 v{t1}, v{t0}
    v_permlane32_swap_b32 v{t0}, v{t1}
    v_add_f32 v{t0}, v{t0}, v{t1}
    v_mul_f32 v{t0}, 0x3c000000, v{t0}
    ''')
    for i in range(32):
        p(f'v_sub_f32 v{D + i}, v{D + i}, v{t0}')
    for i in range(16):
        p(f'v_cvt_pk_bf16_f32 v{BF + i}, v{D + 2 * i}, v{D + 2 * i + 1}')
    p(f'''
    v_lshlrev_b32 v{t0}, 4, v{vl}
    s_lshl_b32 s{sT + 2}, s{stask}, 12
    s_add_u32 s{sT + 2}, s{sT + 2}, {WS_WF}
    ''')
    for s4 in range(4):
        p(f'buffer_store_dwordx4 v[{BF + 4 * s4}:{BF + 4 * s4 + 3}], v{t0}, s[{sWS}:{sWS + 3}], s{sT + 2} offen offset:{1024 * s4} {st_flags}')


def emit_prep_lin(p, vl, V, sWR, sWS, sT, st_flags=''):
    t0, t1 = V, V + 1
    F = V + 4
    O = V + 20
    D = V + 24
    p(f'''
    v_lshrrev_b32 v{t0}, 4, v{vl}
    v_lshlrev_b32 v{t0}, 4, v{t0}
    ''')
    for s4 in range(4):
        p(f'buffer_load_dwordx4 v[{F + 4 * s4}:{F + 4 * s4 + 3}], v{t0}, s[{sWR}:{sWR + 3}], 0 offen offset:{64 * s4}')
    p(f'''
    v_and_b32 v{t1}, 3, v{vl}
    v_cmp_eq_u32 s[{sT}:{sT + 1}], 1, v{t1}
    v_cmp_eq_u32 vcc, 0, v{t1}
    v_mov_b32 v{t1}, 0x{ONE2:x}
    ''')
    for i in range(4):
        p(f'v_mov_b32 v{O + i}, 0x{ONE2:x}')
    p(f'v_cndmask_b32 v{t1}, 0, v{t1}, vcc')
    for i in range(16):
        p(f'v_cndmask_b32 v{F + i}, v{t1}, v{F + i}, s[{sT}:{sT + 1}]')
    for s4 in range(4):
        c = '0' if s4 == 0 else f'v[{D}:{D + 3}]'
        p(f'v_mfma_f32_16x16x32_bf16 v[{D}:{D + 3}], v[{F + 4 * s4}:{F + 4 * s4 + 3}], v[{O}:{O + 3}], {c}')
    p(f'''
    v_lshlrev_b32 v{t0}, 4, v{vl}
    s_mov_b32 s{sT + 2}, {WS_WF + 65536}
    ''')
    for s4 in range(4):
        p(f'buffer_store_dwordx4 v[{F + 4 * s4}:{F + 4 * s4 + 3}], v{t0}, s[{sWS}:{sWS + 3}], s{sT + 2} offen offset:{1024 * s4} {st_flags}')
    p(f'''
    v_lshlrev_b32 v{t0}, 2, v{vl}
    s_mov_b32 s{sT + 2}, {WS_WF + 69632}
    buffer_store_dword v{D + 1}, v{t0}, s[{sWS}:{sWS + 3}], s{sT + 2} offen {st_flags}
    ''')


vTID, vLANE, vN, vT, vW, vSW, vSQ, vSG, vSO, vOUT, vSWR = 0, 1, 2, 3, 4, 5, 6, 7, 8, 9, 10
vX0, vX1, vX2, vX3 = 11, 12, 13, 14
vONES = 16
TOKN = lambda j: 20 + 16 * j
AF = lambda j: 68 + 32 * j
SM = lambda j: 164 + 16 * j
RING = 212
UACC = 244
sM1, sM2, sM3, sVALID, sCOL = 60, 62, 64, 66, 68
sC128, sEPS, sSCL, sL2E = 74, 75, 76, 77


def emit_tf_setup(p, swave, su, sqd, sT):
    n, g = vX0, vX1
    p(f'''
    v_and_b32 v{n}, 15, v{vLANE}
    v_lshrrev_b32 v{g}, 4, v{vLANE}
    v_and_b32 v{vX2}, 7, v{n}
    v_mul_u32_u24 v{vX2}, {L_PL}, v{vX2}
    v_mul_u32_u24 v{vX3}, 640, v{g}
    v_add_u32 v{vN}, v{vX2}, v{vX3}
    v_lshrrev_b32 v{vX2}, 3, v{n}
    v_lshl_add_u32 v{vN}, v{vX2}, 3, v{vN}
    s_lshl_b32 s{sT}, s{swave}, 4
    s_add_u32 s{sT}, s{sT}, {L_TB}
    v_add_u32 v{vN}, s{sT}, v{vN}
    v_bfe_u32 v{vX2}, v{vLANE}, 2, 3
    v_mul_u32_u24 v{vX2}, {L_PL}, v{vX2}
    v_and_b32 v{vX3}, 3, v{vLANE}
    v_mul_u32_u24 v{vX3}, 640, v{vX3}
    v_add_u32 v{vT}, v{vX2}, v{vX3}
    v_lshrrev_b32 v{vX2}, 5, v{vLANE}
    v_lshl_add_u32 v{vT}, v{vX2}, 3, v{vT}
    v_add_u32 v{vT}, s{sT}, v{vT}
    v_lshlrev_b32 v{vW}, 4, v{vLANE}
    v_add_u32 v{vW}, {L_W}, v{vW}
    ; scratch
    s_mul_i32 s{sT}, s{swave}, 768
    s_add_u32 s{sT}, s{sT}, {L_SCR}
    v_lshl_add_u32 v{vSQ}, v{n}, 2, s{sT}
    v_lshl_add_u32 v{vSG}, v{g}, 4, s{sT}
    v_xor_b32 v{vX2}, 1, v{g}
    v_lshl_add_u32 v{vSO}, v{vX2}, 4, s{sT}
    v_lshrrev_b32 v{vX2}, 2, v{n}
    v_cmp_eq_u32 vcc, v{vX2}, v{g}
    v_add_u32 v{vX3}, 128, v{vSQ}
    v_cndmask_b32 v{vSW}, v{vX3}, v{vSQ}, vcc
    ; masks
    v_and_b32 v{vX2}, 3, v{n}
    v_cmp_eq_u32 s[{sM1}:{sM1 + 1}], 1, v{vX2}
    v_cmp_eq_u32 s[{sM2}:{sM2 + 1}], 2, v{vX2}
    v_cmp_eq_u32 s[{sM3}:{sM3 + 1}], 3, v{vX2}
    v_lshrrev_b32 v{vX2}, 3, v{n}
    v_lshrrev_b32 v{vX3}, 1, v{g}
    v_cmp_eq_u32 s[{sVALID}:{sVALID + 1}], v{vX2}, v{vX3}
    v_sub_u32 v{vX2}, v{n}, v{vX3}
    v_cmp_eq_u32 s[{sCOL}:{sCOL + 1}], 0, v{vX2}
    v_cmp_eq_u32 s[{sCOL + 2}:{sCOL + 3}], 2, v{vX2}
    v_cmp_eq_u32 s[{sCOL + 4}:{sCOL + 5}], 4, v{vX2}
    v_lshrrev_b32 v{vX2}, 1, v{n}
    v_lshlrev_b32 v{vX2}, 4, v{vX2}
    v_and_b32 v{vX3}, 1, v{n}
    v_add_u32 v{vX2}, v{vX2}, v{vX3}
    s_lshl_b32 s{sT}, s{swave}, 1
    v_add_u32 v{vX2}, s{sT}, v{vX2}
    s_lshl_b32 s{sT}, s{su}, 7
    s_lshl_b32 s{sT + 1}, s{sqd}, 5
    s_add_u32 s{sT}, s{sT}, s{sT + 1}
    s_lshr_b32 s{sT + 1}, s{sT}, 2
    s_add_u32 s{sT + 1}, s{sT + 1}, {8192 - 32}
    v_mov_b32 v{vX3}, s{sT + 1}
    v_mov_b32 v{vOUT}, s{sT}
    v_cmp_gt_u32 vcc, 32, v{vX2}
    v_cndmask_b32 v{vX3}, v{vX3}, v{vOUT}, vcc
    v_add_u32 v{vX3}, v{vX3}, v{vX2}
    v_lshlrev_b32 v{vX3}, 8, v{vX3}
    v_lshl_add_u32 v{vX3}, v{g}, 4, v{vX3}
    v_mov_b32 v{vOUT}, 0x40000000
    v_cmp_gt_u32 vcc, 40, v{vX2}
    v_cndmask_b32 v{vOUT}, v{vOUT}, v{vX3}, vcc
    s_mov_b32 s{sC128}, 0x3c000000
    s_mov_b32 s{sEPS}, 0x3727c5ac
    s_mov_b32 s{sSCL}, 0x3e0293ee
    s_mov_b32 s{sL2E}, 0x3fb8aa3b
    ''')
    for i in range(4):
        p(f'v_mov_b32 v{vONES + i}, 0x{ONE2:x}')
    emit_i16(p, vLANE, SM(0) + 12, vX2, vX3)
    for j in (1, 2):
        p(f'v_mov_b32 v{SM(j) + 12}, v{SM(0) + 12}\nv_mov_b32 v{SM(j) + 13}, v{SM(0) + 13}')


def mf32(d, a, b, c):
    cc = '0' if c is None else f'v[{c}:{c + 3}]'
    return f'v_mfma_f32_16x16x32_bf16 v[{d}:{d + 3}], v[{a}:{a + 3}], v[{b}:{b + 3}], {cc}'


def mf16(d, a, b, c):
    cc = '0' if c is None else f'v[{c}:{c + 3}]'
    return f'v_mfma_f32_16x16x16_bf16 v[{d}:{d + 3}], v[{a}:{a + 1}], v[{b}:{b + 1}], {cc}'


def cvt(d, a):
    return f'v_cvt_pk_bf16_f32 v{d}, v{a}, v{a + 1}'


def emit_tf(p, nt, sOUT):
    T = range(nt)
    S = lambda j: SM(j)
    RK = lambda j: SM(j) + 4
    MK = lambda j: SM(j) + 8
    BS = lambda j: SM(j) + 12
    for j in T:
        for s4 in range(4):
            for h in range(2):
                r = TOKN(j) + 4 * s4 + 2 * h
                p(f'ds_read_b64 v[{r}:{r + 1}], v{vN} offset:{128 * j + 2560 * s4 + 320 * h}')

    def wread(fr):
        r = RING + 4 * (fr % 8)
        return f'ds_read_b128 v[{r}:{r + 3}], v{vW} offset:{1024 * fr}'
    for fr in range(4):
        p(wread(fr))
    G1 = lambda j: AF(j) + 8
    S1 = lambda j: AF(j) + 12
    for j in T:
        for s4 in range(4):
            p(mf32(G1(j), TOKN(j) + 4 * s4, TOKN(j) + 4 * s4, None if s4 == 0 else G1(j)))
        for s4 in range(4):
            p(mf32(S1(j), vONES, TOKN(j) + 4 * s4, None if s4 == 0 else S1(j)))
    RQ = lambda j: AF(j) + 24
    st1 = []
    for j in T:
        g, s = G1(j), S1(j)
        st1 += [
            f'v_cndmask_b32 v{g}, v{g}, v{g + 1}, s[{sM1}:{sM1 + 1}]',
            f'v_mul_f32 v{s}, s{sC128}, v{s}',
            f'v_cndmask_b32 v{g}, v{g}, v{g + 2}, s[{sM2}:{sM2 + 1}]',
            f'v_mul_f32 v{s + 1}, v{s}, v{s}',
            f'v_cndmask_b32 v{g}, v{g}, v{g + 3}, s[{sM3}:{sM3 + 1}]',
            f'v_fma_f32 v{g}, v{g}, s{sC128}, -v{s + 1}',
            f'v_max_f32 v{g}, 0, v{g}',
            f'v_add_f32 v{g}, s{sEPS}, v{g}',
            f'v_rsq_f32 v{g}, v{g}',
            f'v_mul_f32 v{s}, v{s}, v{g}',
            f'ds_write2_b32 v{vSW}, v{g}, v{s} offset0:{64 * j} offset1:{64 * j + 16}',
            f'ds_read_b32 v{RQ(j)}, v{vSQ} offset:{256 * j}',
            f'ds_read_b128 v[{RK(j)}:{RK(j) + 3}], v{vSG} offset:{256 * j}',
            f'ds_read_b128 v[{MK(j)}:{MK(j) + 3}], v{vSG} offset:{256 * j + 64}',
        ]
    PA = lambda j, s, h: AF(j) + 8 * (s & 1) + 4 * h
    PF = lambda j, s: AF(j) + 16 + 4 * (s & 1)
    RHO = lambda j: AF(j) + 28
    blocks = []
    for s in range(4):
        for h in range(2):
            a = 2 * s + h
            blk = []
            nxt = [wread(4 * (a + 1) + e) for e in range(4)]
            for j in T:
                for e in range(4):
                    blk.append(mf32(PA(j, s, h), RING + 4 * ((4 * a + e) % 8), TOKN(j) + 4 * e, None if e == 0 else PA(j, s, h)))
            blocks.append(merge(blk[:4 * nt], nxt))

    def post_pair(s):
        o = []
        for j in T:
            o += [cvt(PF(j, s), PA(j, s, 0)), cvt(PF(j, s) + 1, PA(j, s, 0) + 2), cvt(PF(j, s) + 2, PA(j, s, 1)), cvt(PF(j, s) + 3, PA(j, s, 1) + 2)]
        m = []
        for j in T:
            m += [mf32(S(j), TOKN(j) + 4 * s, PF(j, s), None if s == 0 else S(j)),
                  mf32(RHO(j), vONES, PF(j, s), None if s == 0 else RHO(j))]
        return o, m
    seq = merge(blocks[0] + blocks[1], st1)
    for s in range(1, 4):
        o, m = post_pair(s - 1)
        seq += merge(blocks[2 * s], [None] * 2 + o) + m + blocks[2 * s + 1]
    for x in seq:
        if x:
            p(x)
    o3, m3 = post_pair(3)
    sm = []
    for j in T:
        x0, x1 = AF(j), AF(j) + 1
        y0, y1 = AF(j) + 4, AF(j) + 5
        s_, rk, mk = S(j), RK(j), MK(j)
        q = []
        for r in range(4):
            q.append(f'v_mul_f32 v{s_ + r}, v{s_ + r}, v{rk + r}')
        for r in range(4):
            q.append(f'v_fma_f32 v{s_ + r}, -v{RHO(j)}, v{mk + r}, v{s_ + r}')
        q += [
            f'v_mul_f32 v{y0}, s{sSCL}, v{RQ(j)}',
            f'v_max3_f32 v{x0}, v{s_}, v{s_ + 1}, v{s_ + 2}',
            f'v_max_f32 v{x0}, v{x0}, v{s_ + 3}',
            f'v_mov_b32 v{x1}, v{x0}',
            f'v_permlane16_swap_b32 v{x0}, v{x1}',
            f'v_max_f32 v{x0}, v{x0}, v{x1}',
            f'v_mul_f32 v{x0}, v{x0}, v{y0}',
        ]
        for r in range(4):
            q.append(f'v_fma_f32 v{s_ + r}, v{s_ + r}, v{y0}, -v{x0}')
        for r in range(4):
            q.append(f'v_exp_f32 v{s_ + r}, v{s_ + r}')
        q += [
            f'v_add_f32 v{x0}, v{s_}, v{s_ + 1}',
            f'v_add_f32 v{x1}, v{s_ + 2}, v{s_ + 3}',
            f'v_add_f32 v{x0}, v{x0}, v{x1}',
            f'v_mov_b32 v{x1}, v{x0}',
            f'v_permlane16_swap_b32 v{x0}, v{x1}',
            f'v_add_f32 v{x0}, v{x0}, v{x1}',
            f'v_rcp_f32 v{x0}, v{x0}',
        ]
        for r in range(4):
            q.append(f'v_mul_f32 v{s_ + r}, v{s_ + r}, v{rk + r}')
        for r in range(4):
            q.append(f'v_mul_f32 v{s_ + r}, v{s_ + r}, v{x0}')
        q += [cvt(x0, s_), cvt(x1, s_ + 2),
              f'v_cndmask_b32 v{BS(j) + 2}, 0, v{x0}, s[{sVALID}:{sVALID + 1}]',
              f'v_cndmask_b32 v{BS(j) + 3}, 0, v{x1}, s[{sVALID}:{sVALID + 1}]']
        sm.append(q)
    smx = []
    for i in range(len(sm[0])):
        for j in T:
            smx.append(sm[j][i])

    def tread(j, t):
        r = AF(j) + 4 * t
        return f'ds_read_b64_tr_b16 v[{r}:{r + 1}], v{vT} offset:{128 * j + 2560 * (t >> 1) + 320 * (t & 1)}'
    ublk = []
    pend = []
    kk = 0
    for t in range(8):
        if t < 7:
            nxt = [wread(32 + 4 * (t + 1) + e) for e in range(4)]
        else:
            nxt = [f'v_add_u32 v{vW}, 65536, v{vW}'] + \
                  [f'ds_read_b128 v[{RING + 4 * e}:{RING + 4 * e + 3}], v{vW} offset:{1024 * e}' for e in range(4)]
        blk = []
        for j in T:
            ua = UACC + 4 * (kk % 3)
            kk += 1
            blk += [mf32(ua, TOKN(j) + 4 * e, RING + 4 * ((32 + 4 * t + e) % 8), None if e == 0 else ua) for e in range(4)]
            pend.append([cvt(AF(j) + 4 * t + 2, ua), cvt(AF(j) + 4 * t + 3, ua + 2)])
            if len(pend) > 2:
                blk += pend.pop(0)
        ublk.append(merge(blk, nxt))
    tail = sum(pend, [])
    seq = merge(ublk[0], [None] * 2 + o3) + m3
    rest = sum(ublk[1:6], [])
    seq += merge(rest, [None] * 6 + smx)
    trs = [tread(j, t) for t in range(8) for j in T]
    seq += merge(ublk[6] + ublk[7], trs)
    seq += tail
    for x in seq:
        if x:
            p(x)
    for j in T:
        p(mf16(RK(j), BS(j) + 2, BS(j), None))
    OA = [UACC, UACC + 4, UACC + 8, RING + 16, RING + 20, RING + 24, RING + 28]
    k = 0
    pend = []
    seq = []
    for t in range(8):
        for j in T:
            d = OA[k % 7]
            k += 1
            seq.append(mf32(d, AF(j) + 4 * t, BS(j), None))
            pend.append([cvt(TOKN(j) + 2 * t, d), cvt(TOKN(j) + 2 * t + 1, d + 2)])
            if len(pend) > 4:
                seq += pend.pop(0)
    seq += sum(pend, [])
    for j in T:
        seq += [cvt(RK(j), RK(j)), cvt(RK(j) + 1, RK(j) + 2)]
    for x in seq:
        p(x)
    for j in T:
        for s4 in range(4):
            p(mf32(S(j), TOKN(j) + 4 * s4, TOKN(j) + 4 * s4, None if s4 == 0 else S(j)))
        for s4 in range(4):
            p(mf32(MK(j), RING + 4 * s4, TOKN(j) + 4 * s4, None if s4 == 0 else MK(j)))
    ch = []
    for j in T:
        g, l = S(j), MK(j)
        x0, x1 = RK(j) + 2, RK(j) + 3
        ch.append([
            f'v_cndmask_b32 v{g}, v{g}, v{g + 1}, s[{sM1}:{sM1 + 1}]',
            f'v_mul_f32 v{l}, s{sC128}, v{l}',
            f'v_cndmask_b32 v{g}, v{g}, v{g + 2}, s[{sM2}:{sM2 + 1}]',
            f'v_mul_f32 v{l + 2}, v{l}, v{l}',
            f'v_cndmask_b32 v{g}, v{g}, v{g + 3}, s[{sM3}:{sM3 + 1}]',
            f'v_fma_f32 v{g}, v{g}, s{sC128}, -v{l + 2}',
            f'v_fma_f32 v{l + 1}, -v{l}, v{vSWR}, v{l + 1}',
            f'v_max_f32 v{g}, 0, v{g}',
            f'v_add_f32 v{g}, s{sEPS}, v{g}',
            f'v_rsq_f32 v{g}, v{g}',
            f'v_mul_f32 v{l + 1}, s{sL2E}, v{l + 1}',
            f'v_mul_f32 v{g}, v{g}, v{l + 1}',
            f'ds_write_b32 v{vSW}, v{g} offset:{256 * j}',
            f'ds_read_b128 v[{g}:{g + 3}], v{vSG} offset:{256 * j}',
            f'ds_read_b128 v[{l}:{l + 3}], v{vSO} offset:{256 * j}',
            f'v_max3_f32 v{x0}, v{g}, v{g + 1}, v{g + 2}',
            f'v_max3_f32 v{x1}, v{l}, v{l + 1}, v{l + 2}',
            f'v_max3_f32 v{x0}, v{x0}, v{g + 3}, v{l + 3}',
            f'v_max_f32 v{x0}, v{x0}, v{x1}',
            f'v_sub_f32 v{g}, v{g}, v{x0}',
            f'v_sub_f32 v{g + 1}, v{g + 1}, v{x0}',
            f'v_sub_f32 v{g + 2}, v{g + 2}, v{x0}',
            f'v_sub_f32 v{g + 3}, v{g + 3}, v{x0}',
            f'v_exp_f32 v{g}, v{g}',
            f'v_exp_f32 v{g + 1}, v{g + 1}',
            f'v_exp_f32 v{g + 2}, v{g + 2}',
            f'v_exp_f32 v{g + 3}, v{g + 3}',
            f'v_add_f32 v{x0}, v{g}, v{g + 1}',
            f'v_add_f32 v{x1}, v{g + 2}, v{g + 3}',
            f'v_add_f32 v{x0}, v{x0}, v{x1}',
            f'v_mov_b32 v{x1}, v{x0}',
            f'v_permlane16_swap_b32 v{x0}, v{x1}',
            f'v_add_f32 v{x0}, v{x0}, v{x1}',
            f'v_rcp_f32 v{x0}, v{x0}',
            f'v_mul_f32 v{g}, v{g}, v{x0}',
            f'v_mul_f32 v{g + 1}, v{g + 1}, v{x0}',
            f'v_mul_f32 v{g + 2}, v{g + 2}, v{x0}',
            f'v_mul_f32 v{g + 3}, v{g + 3}, v{x0}',
            cvt(x0, g), cvt(x1, g + 2),
            f'v_cndmask_b32 v{l}, 0, v{x0}, s[{sCOL + 2 * j}:{sCOL + 2 * j + 1}]',
            f'v_cndmask_b32 v{l + 1}, 0, v{x1}, s[{sCOL + 2 * j}:{sCOL + 2 * j + 1}]',
            mf16(g, RK(j), l, None),
        ])
    for i in range(len(ch[0])):
        for j in T:
            p(ch[j][i])
    for j in T:
        p(cvt(MK(j) + 2, S(j)))
        p(cvt(MK(j) + 3, S(j) + 2))
    for j in T:
        for t in range(8):
            p(mf32(RING + 4 * t, AF(j) + 4 * t, MK(j), None if j == 0 else RING + 4 * t))
    for s4 in range(4):
        for i in range(4):
            p(cvt(TOKN(0) + 4 * s4 + i, RING + 8 * s4 + 2 * i))
        p(f'buffer_store_dwordx4 v[{TOKN(0) + 4 * s4}:{TOKN(0) + 4 * s4 + 3}], v{vOUT}, s[{sOUT}:{sOUT + 3}], 0 offen offset:{64 * s4}')
```

```python
import re

KN = 'gather_scatter__hybrid_graph_tf_nagphormer__graph_kernel'

_reg_re = re.compile(r'^(-|abs\()?\|?([vsa])(\d+)\)?\|?$')
_rng_re = re.compile(r'^(-)?([vsa])\[(\d+):(\d+)\]$')


def regs_of(tok):
    tok = tok.strip()
    m = _reg_re.match(tok)
    if m:
        return [(m.group(2), int(m.group(3)))]
    m = _rng_re.match(tok)
    if m:
        return [(m.group(2), i) for i in range(int(m.group(3)), int(m.group(4)) + 1)]
    if tok == 'vcc':
        return [('s', 'vcc_lo'), ('s', 'vcc_hi')]
    if tok in ('vcc_lo', 'vcc_hi'):
        return [('s', tok)]
    if tok == 'exec':
        return [('s', 'exec_lo'), ('s', 'exec_hi')]
    if tok in ('exec_lo', 'exec_hi'):
        return [('s', tok)]
    if tok == 'm0':
        return [('s', 'm0')]
    return []


TRANS = ('v_exp_f32', 'v_log_f32', 'v_rcp_f32', 'v_rsq_f32', 'v_sqrt_f32', 'v_sin_f32', 'v_cos_f32', 'v_rcp_iflag_f32')
EXEC = [('s', 'exec_lo'), ('s', 'exec_hi')]
VCC = [('s', 'vcc_lo'), ('s', 'vcc_hi')]


class Ins:
    __slots__ = ('text', 'op', 'kind', 'defs', 'uses', 'srcc', 'ab', 'dpp', 'wide', 'lds_dma', 'passes', 'sdwa_dst', 'masks', 'ghost')

    def __init__(s, text):
        s.text = text
        s.ghost = False
        t = text.split(';')[0].strip()
        parts = t.split(None, 1)
        op = parts[0]
        s.op = op
        rest = parts[1] if len(parts) > 1 else ''
        ops = []
        cur = ''
        depth = 0
        for ch in rest:
            if ch in '[(':
                depth += 1
            if ch in '])':
                depth -= 1
            if ch == ',' and depth == 0:
                ops.append(cur.strip())
                cur = ''
            else:
                cur += ch
        ops.append(cur.strip())
        mods = ''
        if ops:
            last = ops[-1]
            depth = 0
            for i, ch in enumerate(last):
                if ch in '[(':
                    depth += 1
                if ch in '])':
                    depth -= 1
                if ch == ' ' and depth == 0:
                    mods = last[i:]
                    ops[-1] = last[:i]
                    break
        s.defs = []
        s.uses = []
        s.srcc = []
        s.ab = []
        s.masks = []
        s.dpp = ('_dpp' in op) or ('quad_perm' in mods) or ('row_' in mods)
        s.wide = False
        s.lds_dma = False
        s.passes = 0
        s.sdwa_dst = ('dst_sel:' in mods and 'dst_sel:DWORD' not in mods)
        R = [regs_of(o) for o in ops]
        base = op.replace('_e32', '').replace('_e64', '').replace('_dpp', '').replace('_sdwa', '')
        if op.startswith('v_mfma'):
            s.kind = 'mfma'
            s.defs = R[0]
            s.ab = R[1] + R[2]
            s.srcc = R[3]
            s.uses = s.ab + s.srcc
            s.passes = 8 if '32x32' in op else 4
            if op in ('v_mfma_f32_16x16x4_f32',):
                raise NotImplementedError
        elif op.startswith('v_cmpx'):
            raise NotImplementedError('v_cmpx')
        elif op.startswith('v_cmp'):
            s.kind = 'valu'
            s.defs = R[0]
            s.uses = sum(R[1:], [])
        elif base in ('v_readfirstlane_b32', 'v_readlane_b32'):
            s.kind = 'valu'
            s.defs = R[0]
            s.uses = sum(R[1:], [])
        elif base in ('v_permlane16_swap_b32', 'v_permlane32_swap_b32', 'v_swap_b32'):
            s.kind = 'valu'
            s.defs = R[0] + R[1]
            s.uses = R[0] + R[1]
        elif base in ('v_add_co_u32', 'v_sub_co_u32', 'v_addc_co_u32', 'v_subb_co_u32'):
            s.kind = 'valu'
            s.defs = R[0] + R[1]
            s.uses = sum(R[2:], [])
        elif op.startswith('v_'):
            s.kind = 'valu'
            s.defs = R[0]
            s.uses = sum(R[1:], [])
            if base in ('v_fmac_f32', 'v_dot2c_f32_bf16', 'v_writelane_b32') or s.dpp or s.sdwa_dst:
                s.uses = s.uses + R[0]
            if base == 'v_cndmask_b32':
                s.masks = R[3] if len(R) > 3 else VCC
        elif op.startswith('ds_'):
            s.kind = 'lds'
            if op.startswith('ds_read') or op.startswith('ds_bpermute') or op.startswith('ds_permute') or op.startswith('ds_swizzle') or '_rtn' in op:
                s.defs = R[0]
                s.uses = sum(R[1:], [])
                if 'd16' in op:
                    s.uses = s.uses + R[0]
            else:
                s.uses = sum(R, [])
        elif op.startswith('buffer_') or op.startswith('global_'):
            s.kind = 'vmem'
            if op in ('buffer_inv', 'buffer_wbl2'):
                pass
            elif ' lds' in mods + ' ' and op.startswith('buffer_load'):
                s.lds_dma = True
                s.uses = sum(R, []) + [('s', 'm0')]
            elif op.startswith('global_load_lds'):
                s.lds_dma = True
                s.uses = sum(R, []) + [('s', 'm0')]
            elif '_load' in op:
                s.defs = R[0]
                s.uses = sum(R[1:], [])
                if 'd16' in op:
                    s.uses = s.uses + R[0]
            elif '_atomic' in op:
                s.uses = sum(R, [])
                if 'sc0' in mods:
                    s.defs = R[0]
            else:
                s.uses = sum(R, [])
                if 'x4' in op or 'x3' in op:
                    s.wide = True
                    s.srcc = R[0] if op.startswith('buffer') else R[1]
        elif op.startswith('s_load') or op.startswith('s_buffer_load') or op in ('s_memtime', 's_memrealtime'):
            s.kind = 'smem'
            s.defs = R[0]
            s.uses = sum(R[1:], [])
        elif op in ('s_waitcnt', 's_nop', 's_barrier', 's_sleep', 's_setprio', 's_endpgm'):
            s.kind = 'misc'
        elif op.startswith('s_cbranch') or op == 's_branch':
            s.kind = 'branch'
        elif op.startswith('s_cmp') or op.startswith('s_bitcmp'):
            s.kind = 'salu'
            s.uses = sum(R, [])
        elif op.startswith('s_'):
            s.kind = 'salu'
            s.defs = R[0]
            s.uses = sum(R[1:], [])
            if 'saveexec' in op:
                s.defs = s.defs + EXEC
                s.uses = s.uses + EXEC
            if op in ('s_addk_i32', 's_mulk_i32', 's_bitset1_b32', 's_bitset0_b32'):
                s.uses = s.uses + R[0]
        else:
            raise ValueError('unknown instruction ' + text)


class Prog:
    def __init__(s):
        s.L = []
        s.hist = []
        s.lgkm = []
        s.vm = []
        s.smem = []
        s.auto = True
        s.nnop = 0
        s.junk = set()

    def raw(s, t):
        for l in t.split('\n'):
            if l.strip():
                s.L.append(l.strip())

    def label(s, name, keep=False):
        if not keep:
            s.close()
        s.L.append(name + ':')

    def close(s, n=None):
        need = 0
        d = 0
        for h in reversed(s.hist):
            if isinstance(h, int):
                d += h
                continue
            w = 0
            if h.kind == 'mfma':
                w = 12 if h.passes == 8 else 8
            elif h.kind == 'valu':
                w = 5 if any(r[0] == 's' for r in h.defs) else 2
            elif h.kind == 'vmem' and h.wide:
                w = 2
            elif h.kind == 'salu' and ('s', 'm0') in h.defs:
                w = 1
            need = max(need, w - d)
            d += 0 if h.ghost else 1
            if d > 20:
                break
        s._nop(need)

    def _nop(s, n):
        while n > 0:
            k = min(n, 16)
            s.L.append(f'    s_nop {k - 1}')
            s.hist.append(k)
            s.nnop += k
            n -= k

    def opt_begin(s):
        s._optmark = len(s.hist)
        s._inopt = True

    def opt_end(s, label):
        new = []
        for h in s.hist[s._optmark:]:
            if isinstance(h, int):
                continue
            h.ghost = True
            new.append(h)
        s.hist = s.hist[:s._optmark] + new
        s._inopt = False
        s.L.append(label + ':')

    def forget(s):
        s.lgkm = []
        s.vm = []
        s.smem = []

    def _need_states(s, I):
        need = 0
        d = 0
        uses = set(I.uses)
        defs = set(I.defs)
        for h in reversed(s.hist):
            if isinstance(h, int):
                d += h
                if d > 20:
                    break
                continue
            w = 0
            hd = set(h.defs)
            if h.kind == 'mfma':
                big = h.passes == 8
                if I.kind == 'mfma':
                    if hd & set(I.ab):
                        w = max(w, 12 if big else 8)
                    if hd & set(I.srcc):
                        if not (I.srcc == h.defs and I.passes == h.passes):
                            w = max(w, 10 if big else 6)
                    elif hd & defs:
                        w = max(w, 10 if big else 6)
                elif I.kind in ('valu', 'lds', 'vmem'):
                    if hd & (uses | defs):
                        w = max(w, 12 if big else 8)
                    if I.kind == 'valu' and set(h.srcc) & defs:
                        w = max(w, 7 if big else 3)
                    if I.kind in ('lds', 'vmem') and set(h.srcc) & defs:
                        w = max(w, 7 if big else 3)
            elif h.kind == 'valu':
                vd = {r for r in hd if r[0] in 'va'}
                sd = {r for r in hd if r[0] == 's'}
                if I.kind == 'mfma' and vd & uses:
                    w = max(w, 2)
                if I.kind == 'valu':
                    b = I.op
                    if vd & uses:
                        if I.dpp or 'permlane' in b:
                            w = max(w, 2)
                        if b.startswith('v_readlane') or b.startswith('v_readfirstlane'):
                            w = max(w, 1)
                        if h.op.replace('_e32', '').replace('_e64', '') in TRANS and b.replace('_e32', '').replace('_e64', '') not in TRANS:
                            w = max(w, 1)
                        if h.sdwa_dst:
                            w = max(w, 1)
                    if sd & (uses | set(I.masks)):
                        w = max(w, 4 if (b.startswith('v_readlane') or b.startswith('v_writelane')) else 2)
                if I.kind == 'vmem' and sd & uses:
                    w = max(w, 5)
                if I.kind in ('salu', 'branch', 'smem') and sd & uses:
                    w = max(w, 1)
            elif h.kind == 'vmem' and h.wide:
                if set(h.srcc) & defs:
                    w = max(w, 2)
            elif h.kind == 'salu':
                if ('s', 'm0') in hd and I.lds_dma:
                    w = max(w, 1)
            need = max(need, w - d)
            d += 0 if h.ghost else 1
            if d > 20:
                break
        return need

    def _waits(s, I):
        touched = set(I.uses) | set(I.defs)
        lg = None
        vm = None
        for i, dset in enumerate(s.lgkm):
            if dset & touched:
                lg = len(s.lgkm) - 1 - i
        for i, dset in enumerate(s.vm):
            if dset & touched:
                vm = len(s.vm) - 1 - i
        if any(d & touched for d in s.smem):
            lg = 0
        if lg is not None and s.smem:
            lg = 0
        if lg is not None or vm is not None:
            s.wait(vm=vm, lg=lg)

    def wait(s, vm=None, lg=None):
        t = []
        if vm is not None:
            vm = min(vm, 63)
            t.append(f'vmcnt({vm})')
            s.vm = s.vm[len(s.vm) - vm:] if vm < len(s.vm) else s.vm
            if vm == 0:
                s.vm = []
        if lg is not None:
            lg = min(lg, 15)
            t.append(f'lgkmcnt({lg})')
            s.lgkm = s.lgkm[len(s.lgkm) - lg:] if lg < len(s.lgkm) else s.lgkm
            if lg == 0:
                s.lgkm = []
                s.smem = []
        s.L.append('    s_waitcnt ' + ' '.join(t))
        s.hist.append(1)

    def __call__(s, text):
        for line in text.split('\n'):
            t = line.strip()
            if not t or t.startswith(';'):
                if t:
                    s.L.append(t)
                continue
            if t.endswith(':'):
                s.label(t[:-1])
                continue
            s.emit(t)

    def emit(s, t):
        I = Ins(t)
        if I.op == 's_waitcnt':
            m = re.search(r'vmcnt\((\d+)\)', t)
            n = re.search(r'lgkmcnt\((\d+)\)', t)
            s.wait(vm=int(m.group(1)) if m else None, lg=int(n.group(1)) if n else None)
            return
        if I.op == 's_nop':
            k = int(t.split()[1]) + 1
            s.L.append('    ' + t)
            s.hist.append(k)
            return
        if s.auto:
            s._waits(I)
        s._nop(s._need_states(I))
        s.L.append('    ' + t)
        s.hist.append(I)
        if len(s.hist) > 200 and not getattr(s, '_inopt', False):
            s.hist = s.hist[-100:]
        if I.kind == 'lds':
            s.lgkm.append(set(I.defs))
        elif I.kind == 'vmem':
            s.vm.append(set(I.defs) - s.junk)
        elif I.kind == 'smem':
            s.smem.append(set(I.defs))

    def text(s):
        return '\n'.join(s.L) + '\n'

    def kstart(s, name):
        s.raw(f'.globl {name}\n.p2align 8\n.type {name},@function\n{name}:')
        s.hist = []
        s.forget()

    def kdesc(s, name, vgpr=256, sgpr=102, accum=None):
        if accum is None:
            accum = (vgpr + 3) // 4 * 4
        s.raw(f'''.amdhsa_kernel {name}
  .amdhsa_next_free_vgpr {vgpr}
  .amdhsa_next_free_sgpr {sgpr}
  .amdhsa_accum_offset {accum}
  .amdhsa_group_segment_fixed_size 0
  .amdhsa_kernarg_size 96
  .amdhsa_user_sgpr_count 2
  .amdhsa_user_sgpr_kernarg_segment_ptr 1
  .amdhsa_system_sgpr_workgroup_id_x 1
  .amdhsa_float_denorm_mode_32 3
.end_amdhsa_kernel''')


def merge(a, b):
    if not a:
        return list(b)
    out = []
    nb = len(b)
    na = len(a)
    j = 0
    for i, x in enumerate(a):
        out.append(x)
        tgt = (i + 1) * nb // na
        while j < tgt:
            out.append(b[j])
            j += 1
    out += b[j:]
    return out


def vr(a, n=1):
    return f'v{a}' if n == 1 else f'v[{a}:{a + n - 1}]'


def sr(a, n=1):
    return f's{a}' if n == 1 else f's[{a}:{a + n - 1}]'
```

```python
import sys
from prog import *
from parts_tf import *
from parts_hops import *
from gen_tftest import k_prep, k_tf

def k_hops(p, name, st):
    p.kstart(name)
    p.junk = {('v', 2), ('v', 3)}
    emit_prologue(p, st)
    emit_b1(p, st)
    emit_b2(p, st)
    emit_hops(p, st)
    p.junk = set()
    if st:
        emit_stamps_out(p)
    p.label('L_end')
    p('s_endpgm')
    p.raw('L_code_end:')

def gen(st):
    p = Prog()
    p.raw('; @launch kernel=prep_kernel grid=(17,1,1) block=(64,1,1) lds=0')
    p.raw('; @launch kernel=hops_kernel grid=(256,1,1) block=(512,1,1) lds=163840')
    p.raw('; @launch kernel=tf_kernel grid=(256,1,1) block=(512,1,1) lds=163840')
    p.raw('.amdgcn_target "amdgcn-amd-amdhsa--gfx950"\n.text')
    k_prep(p, 'prep_kernel')
    k_hops(p, 'hops_kernel', st)
    k_tf(p, 'tf_kernel', stamps=False)
    p.raw('.section .rodata,"a"')
    for k, v in (('prep_kernel', 128), ('hops_kernel', 256), ('tf_kernel', 256)):
        p.raw('.p2align 6')
        p.kdesc(k, vgpr=v)
    print('nops', p.nnop, 'lines', len(p.L))
    return p.text()
if __name__ == '__main__':
    open('v1_st.s', 'w').write(gen(True))
    open('v1.s', 'w').write(gen(False))
```

```python
import sys, json
from prog import *
from parts_tf import *

F_HOP = 0x0000
F_B1 = 0x8000
F_B2 = 0xA000
F_TOK = 0xC000
F_PREP = 0xE000

TBL = 81920
CNT1, CNT2, UF, BUCK, IMG = 0, 128, 1664, 2048, 34816
DUMMY = 10239

sWS, sSRC, sDST, sX_, sDIS, sDBG, sOUT = 4, 8, 12, 16, 20, 24, 28
sPA, sPB, sPR = 32, 36, 40
sW, sXC, sR, sJ, sSL, sU, sSLOW, sQ, sK, sGO, sTO, sFA, sFB, sSPIN = 44, 45, 46, 47, 48, 49, 50, 51, 52, 53, 54, 55, 56, 57
sM3 = 58
sMK = 60
sLA, sLB = 100, 101

D0, D1, D2 = 4, 8, 12
GA, GB, HA, HB = 16, 20, 24, 28
vD0, vD1, vD2 = 30, 31, 32
vGA, vGB, vDA, vDB, vFP, vFO, vPL, vT0, vT1, vT2, vT3 = 33, 34, 35, 36, 37, 38, 39, 40, 41, 42, 43
vBETA, vUB = 44, 45
vTP, vTF = 44, 45
EDG = 46
XA, XB, XD = 84, 88, 92
vBL, vK0, vK1 = 96, 97, 98
vP2 = 95
vST = 99
ADDR = lambda b, q: 100 + 10 * b + q
DATA = lambda b, q: 200 + 20 * (b & 1) + 2 * q
SEL = 240
SPIN_MAX = 1 << 22
WSR = f's[{sWS}:{sWS + 3}]'


class Cfg:
    st = False
    prio_until = 5


def srd(p, d, lo, size):
    p(f's_mov_b32 s{d}, s{lo}\ns_mov_b32 s{d + 1}, s{lo + 1}\ns_mov_b32 s{d + 2}, {size}\ns_mov_b32 s{d + 3}, 0x20000')


class Uniq:
    n = 0


def lbl(x):
    Uniq.n += 1
    return f'L_{x}_{Uniq.n}'


LATE = []


def xstore(p, ins):
    a, b = lbl('xs'), lbl('xe')
    p(f's_cmp_lg_u32 s{sSLOW}, 0\ns_cbranch_scc1 {a}')
    p.opt_begin()
    for i in ins:
        p(i)
    p.opt_end(b)
    LATE.append((a, ['s_nop 4'] + [i + (' sc1' if i.startswith('buffer_store') else '') for i in ins] + ['s_nop 1'], b))


def emit_late(p):
    for a, ins, b in LATE:
        p.raw(a + ':')
        for i in ins:
            p.raw('    ' + i)
        p.raw(f'    s_branch {b}')
    LATE.clear()


def poll(p, vaddr, srdreg, ex, cond, first_issued=False, res=vPL):
    a, b = lbl('pl'), lbl('pd')
    setex = f's_mov_b64 exec, {ex}' if ex != 32 else 's_mov_b32 exec_hi, 0'
    body = [f'buffer_load_dword v{res}, v{vaddr}, s[{srdreg}:{srdreg + 3}], 0 offen sc1',
            f's_add_u32 s{sSPIN}, s{sSPIN}, 1',
            f's_cmp_gt_u32 s{sSPIN}, {SPIN_MAX}',
            's_cbranch_scc1 L_end',
            's_waitcnt vmcnt(0)'] + cond + [f's_cbranch_vccnz {a}']
    p(setex)
    if first_issued:
        for c in cond:
            p(c)
        p(f's_cbranch_vccnz {a}')
        p.raw(b + ':')
        LATE.append((a, body, b))
    else:
        p.label(a)
        for c in body:
            p(c)
    p('s_mov_b64 exec, -1')


def finish(D, dis, H, G):
    o = [f'v_mul_f32 v{D + i}, v{D + i}, v{dis}' for i in range(4)]
    o += [cvt(H, D), cvt(H + 1, D + 2)]
    return o + scale_g(D, dis, H, G)


def scale_g(D, dis, H, G):
    o = [f'v_lshlrev_b32 v{D}, 16, v{H}', f'v_and_b32 v{D + 1}, 0xffff0000, v{H}',
         f'v_lshlrev_b32 v{D + 2}, 16, v{H + 1}', f'v_and_b32 v{D + 3}, 0xffff0000, v{H + 1}']
    o += [f'v_mul_f32 v{D + i}, v{D + i}, v{dis}' for i in range(4)]
    o += [cvt(G, D), cvt(G + 1, D + 2)]
    return o


STAMPS = []


def stamp(p, name, hop=False):
    if not Cfg.st:
        return
    if hop:
        i = 24 + sum(1 for n in STAMPS if n.startswith('h:')) * 8
        STAMPS.append('h:' + name)
        p(f's_memtime s[90:91]\ns_add_u32 m0, s{sK}, {i - 1}\ns_waitcnt lgkmcnt(0)\nv_writelane_b32 v{vST}, s90, m0')
    else:
        i = sum(1 for n in STAMPS if not n.startswith('h:'))
        STAMPS.append(name)
        p(f's_memtime s[90:91]\ns_waitcnt lgkmcnt(0)\nv_writelane_b32 v{vST}, s90, {i}')


def emit_prologue(p):
    p('s_cmp_ge_u32 s2, 256\ns_cbranch_scc1 L_end')
    if Cfg.st:
        p(f's_memrealtime s[90:91]\ns_waitcnt lgkmcnt(0)\nv_writelane_b32 v{vST}, s90, 21')
    stamp(p, 'entry')
    p(f'''
    s_load_dwordx8 s[32:39], s[0:1], 0
    s_load_dwordx4 s[92:95], s[0:1], 80
    s_load_dwordx8 s[60:67], s[0:1], 32
    s_load_dwordx4 s[68:71], s[0:1], 64
    v_readfirstlane_b32 s{sW}, v0
    v_and_b32 v1, 63, v0
    s_and_b32 s{sXC}, s2, 7
    s_lshr_b32 s{sR}, s2, 3
    s_lshr_b32 s{sW}, s{sW}, 6
    s_and_b32 s{sJ}, s{sR}, 7
    s_lshr_b32 s{sSL}, s{sR}, 3
    s_lshl_b32 s96, s{sXC}, 2
    s_add_u32 s{sSL}, s{sSL}, s96
    s_lshl_b32 s{sU}, s{sW}, 3
    s_add_u32 s{sU}, s{sU}, s{sJ}
    s_mov_b32 s{sSPIN}, 0
    s_lshl_b32 s96, s{sSL}, 3
    s_add_u32 s96, s96, s{sW}
    s_lshl_b32 s96, s96, 7
    v_lshl_add_u32 v{vFP}, v1, 2, s96
    s_lshl_b32 s97, s{sJ}, 2
    s_add_u32 s96, s96, s97
    v_mov_b32 v{vFO}, s96
    v_mov_b32 v{vT0}, s96
    s_lshl_b32 s96, s{sXC}, 3
    s_add_u32 s96, s96, s{sW}
    s_lshl_b32 s96, s96, 5
    s_add_u32 s96, s96, s{sR}
    s_lshl_b32 s96, s96, 2
    s_add_u32 s96, s96, {F_B1}
    v_writelane_b32 v{vT0}, s96, 1
    s_lshl_b32 s96, s{sXC}, 5
    s_add_u32 s96, s96, s{sR}
    s_lshl_b32 s96, s96, 3
    s_add_u32 s96, s96, s{sW}
    s_lshl_b32 s96, s96, 2
    s_add_u32 s96, s96, {F_B2}
    v_writelane_b32 v{vT0}, s96, 2
    s_lshl_b32 s96, s{sU}, 5
    s_add_u32 s96, s96, s{sSL}
    s_lshl_b32 s96, s96, 2
    s_add_u32 s96, s96, {F_TOK}
    v_writelane_b32 v{vT0}, s96, 3
    s_lshl_b32 s96, s{sW}, 8
    s_add_u32 s96, s96, s2
    s_lshl_b32 s96, s96, 2
    s_add_u32 s96, s96, {F_PREP}
    v_writelane_b32 v{vT0}, s96, 4
    v_mov_b32 v{vT1}, 0
    v_lshlrev_b32 v{vT2}, 4, v0
    v_lshlrev_b32 v{vT3}, 3, v0
    s_mul_i32 s96, s{sR}, 20000
    s_add_u32 s97, s96, 8192
    s_add_u32 s98, s96, 16384
    s_waitcnt lgkmcnt(0)
    ''')
    srd(p, sDST, 36, 640000)
    srd(p, sSRC, 34, 640000)
    srd(p, sWS, 94, 0x10000000)
    p(f'''
    s_mov_b64 exec, 31
    buffer_store_dword v{vT1}, v{vT0}, {WSR}, 0 offen sc1
    s_mov_b64 exec, -1
    buffer_load_dwordx4 v[{EDG}:{EDG + 3}], v{vT2}, s[{sDST}:{sDST + 3}], s96 offen
    buffer_load_dwordx4 v[{EDG + 10}:{EDG + 13}], v{vT2}, s[{sSRC}:{sSRC + 3}], s96 offen
    buffer_load_dwordx4 v[{EDG + 4}:{EDG + 7}], v{vT2}, s[{sDST}:{sDST + 3}], s97 offen
    buffer_load_dwordx4 v[{EDG + 14}:{EDG + 17}], v{vT2}, s[{sSRC}:{sSRC + 3}], s97 offen
    buffer_load_dwordx2 v[{EDG + 8}:{EDG + 9}], v{vT3}, s[{sDST}:{sDST + 3}], s98 offen
    buffer_load_dwordx2 v[{EDG + 18}:{EDG + 19}], v{vT3}, s[{sSRC}:{sSRC + 3}], s98 offen
    ''')
    stamp(p, 'srd')
    srd(p, sX_, 32, 2560000)
    srd(p, sDIS, 38, 20000)
    srd(p, sDBG, 92, 256)
    srd(p, sOUT, 70, 2560000)
    p('s_getpc_b64 s[96:97]')
    p.raw('L_pc:')
    p(f'''
    s_lshl_b32 s98, s{sR}, 3
    s_add_u32 s98, s98, s{sW}
    s_lshl_b32 s98, s98, 8
    v_lshl_add_u32 v{vT0}, v1, 2, s98
    v_min_u32 v{vT0}, L_code_end-L_pc-4, v{vT0}
    global_load_dword v3, v{vT0}, s[96:97]
    ''')
    p('v_mov_b32 v66, -1\nv_mov_b32 v67, -1\nv_mov_b32 v68, -1\nv_mov_b32 v69, -1\nv_lshlrev_b32 v70, 4, v0')
    for i in range(4):
        p(f'ds_write_b128 v70, v[66:69] offset:{BUCK + 8192 * i}')
    p(f'''
    v_lshlrev_b32 v71, 2, v0
    v_lshlrev_b32 v72, 10, v0
    v_add_u32 v72, {BUCK}, v72
    v_cmp_gt_u32 vcc, 32, v0
    s_and_saveexec_b64 s[96:97], vcc
    ds_write_b32 v71, v72 offset:{CNT1}
    s_mov_b64 exec, s[96:97]
    v_cmp_gt_u32 vcc, 0x1c4, v0
    s_mov_b64 s[{sM3}:{sM3 + 1}], vcc
    s_getreg_b32 s96, hwreg(HW_REG_XCC_ID, 0, 4)
    s_or_b32 s96, s96, 0x80
    s_lshl_b32 s97, s{sXC}, 5
    s_add_u32 s97, s97, s{sR}
    v_mov_b32 v72, s96
    v_mov_b32 v73, s97
    s_mul_i32 s99, s96, 0x01010101
    ''')
    stamp(p, 'init issued')
    p(f's_waitcnt vmcnt({len(p.vm) - 1}) lgkmcnt(0)')
    stamp(p, 'zero acked')
    p(f'''
    s_barrier
    s_cmp_lg_u32 s{sW}, 0
    s_cbranch_scc1 L_noarr
    s_mov_b64 exec, 1
    buffer_store_byte v72, v73, s[{sDBG}:{sDBG + 3}], 0 offen sc1
    s_mov_b64 exec, -1
    ''')
    p.vm.pop()
    p.label('L_noarr')
    p(f'''
    s_lshr_b32 s92, s{sR}, 3
    s_lshl_b32 s92, s92, 5
    s_lshl_b32 s93, s{sU}, 7
    s_add_u32 s92, s92, s93
    s_lshr_b32 s93, s92, 2
    s_add_u32 s93, s93, 8192
    v_lshrrev_b32 v{vT0}, 1, v1
    v_and_b32 v{vT1}, 1, v1
    v_lshlrev_b32 v{vT2}, 8, v{vT0}
    v_lshl_add_u32 v{vT2}, v{vT1}, 4, v{vT2}
    s_lshl_b32 s96, s{sXC}, 5
    s_lshl_b32 s97, s92, 8
    s_add_u32 s97, s97, s96
    buffer_load_dwordx4 v[{XA}:{XA + 3}], v{vT2}, s[{sX_}:{sX_ + 3}], s97 offen
    s_lshl_b32 s97, s93, 8
    s_add_u32 s97, s97, s96
    s_mov_b64 exec, 0xffff
    buffer_load_dwordx4 v[{XB}:{XB + 3}], v{vT2}, s[{sX_}:{sX_ + 3}], s97 offen
    s_mov_b64 exec, -1
    v_lshlrev_b32 v{vT2}, 1, v{vT0}
    s_lshl_b32 s97, s92, 1
    buffer_load_ushort v{XD}, v{vT2}, s[{sDIS}:{sDIS + 3}], s97 offen
    s_lshl_b32 s97, s93, 1
    buffer_load_ushort v{XD + 1}, v{vT2}, s[{sDIS}:{sDIS + 3}], s97 offen
    v_mul_u32_u24 v{vT1}, {2 * 81920}, v{vT1}
    v_lshl_add_u32 v{XD + 2}, v{vT0}, 3, v{vT1}
    s_mul_i32 s96, s{sXC}, {4 * 81920}
    s_lshl_b32 s92, s92, 3
    s_add_u32 s94, s92, s96
    s_lshl_b32 s93, s93, 3
    s_add_u32 s95, s93, s96
    v_lshrrev_b32 v{vT1}, 4, v1
    v_and_b32 v{vT2}, 15, v1
    v_lshl_add_u32 v{vT1}, v{vT1}, 3, v{vT2}
    v_mov_b32 v{vT3}, 0x2000000
    v_cmp_gt_u32 vcc, 8, v{vT2}
    v_cndmask_b32 v{vBL}, v{vT3}, v{vT1}, vcc
    s_mul_i32 s96, s{sSL}, 81920
    s_lshl_b32 s97, s{sU}, 10
    s_add_u32 s97, s97, s96
    v_lshl_add_u32 v{vGA}, v1, 4, s97
    s_lshl_b32 s97, s{sU}, 8
    s_add_u32 s97, s97, s96
    s_add_u32 s97, s97, 65536
    v_lshl_add_u32 v{vGB}, v{vBL}, 3, s97
    s_mov_b32 s{sGO}, {WS_G}
    buffer_load_dword v2, v{vGA}, {WSR}, s{sGO} offen
    buffer_load_dword v2, v{vGB}, {WSR}, s{sGO} offen
    s_bitcmp1_b32 s{sW}, 0
    s_cselect_b32 s72, s62, s60
    s_cselect_b32 s73, s63, s61
    s_cselect_b32 s74, s66, s64
    s_cselect_b32 s75, s67, s65
    s_bitcmp1_b32 s{sW}, 1
    s_cselect_b32 s72, s74, s72
    s_cselect_b32 s73, s75, s73
    s_lshr_b32 s92, s{sW}, 2
    s_lshl_b32 s93, s{sR}, 1
    s_add_u32 s92, s92, s93
    s_lshl_b32 s92, s92, 9
    v_lshl_add_u32 v{vT1}, v1, 3, s92
    global_load_dword v3, v{vT1}, s[72:73]
    s_lshl_b32 s97, s{sW}, 13
    s_add_u32 s{sLA}, s97, {TBL}
    s_add_u32 s97, s97, s96
    v_lshl_add_u32 v{vDA}, v1, 4, s97
    s_lshl_b32 s97, s{sW}, 11
    s_add_u32 s{sLB}, s97, {TBL + 65536}
    s_add_u32 s97, s97, s96
    s_add_u32 s97, s97, 65536
    v_lshl_add_u32 v{vDB}, v1, 4, s97
    s_mov_b32 s{sTO}, {WS_TOK}
    ''')
    p(f'''
    s_cmp_ge_u32 s2, 8
    s_cselect_b32 s{sPA}, s64, s60
    s_cselect_b32 s{sPA + 1}, s65, s61
    s_cselect_b32 s{sPB}, s66, s62
    s_cselect_b32 s{sPB + 1}, s67, s63
    s_mov_b32 s{sPA + 2}, 32768
    s_mov_b32 s{sPA + 3}, 0x20000
    s_mov_b32 s{sPB + 2}, 32768
    s_mov_b32 s{sPB + 3}, 0x20000
    ''')
    srd(p, sPR, 68, 256)
    for i in range(4):
        p(f'v_mov_b32 v{72 + i}, 0x{DUMMY | DUMMY << 16:x}')
    for i in range(3):
        p(f'ds_write_b128 v70, v[72:75] offset:{IMG + 8192 * i}')
    p(f'v_lshlrev_b32 v70, 4, v1\nds_write_b128 v70, v[72:75] offset:{IMG + 24576}')
    p(f'''
    ; A counter t<256
    v_lshrrev_b32 v{vUB}, 7, v0
    v_and_b32 v72, 1, v0
    v_bfe_u32 v73, v0, 3, 2
    v_lshl_add_u32 v{vBETA}, v72, 2, v73
    v_bfe_u32 v72, v0, 1, 2
    v_bfe_u32 v73, v0, 5, 2
    v_lshl_add_u32 v72, v72, 4, v73
    ; B counter 256<=t<320
    v_bfe_u32 v74, v0, 5, 1
    v_bfe_u32 v75, v0, 2, 1
    v_add_u32 v75, 8, v75
    v_and_b32 v76, 3, v0
    v_bfe_u32 v77, v0, 3, 2
    v_lshl_add_u32 v76, v76, 4, v77
    v_cmp_gt_u32 vcc, 0x100, v0
    v_cndmask_b32 v{vUB}, v74, v{vUB}, vcc
    v_cndmask_b32 v{vBETA}, v75, v{vBETA}, vcc
    v_cndmask_b32 v72, v76, v72, vcc
    v_mul_u32_u24 v72, 40, v72
    v_lshl_add_u32 v72, v{vBETA}, 2, v72
    v_mul_u32_u24 v73, 12800, v{vUB}
    v_add_u32 v72, v72, v73
    v_add_u32 v72, {IMG}, v72
    v_lshlrev_b32 v72, 16, v72
    v_mov_b32 v73, 0x8000
    v_cmp_gt_u32 vcc, 0x140, v0
    v_cndmask_b32 v72, v73, v72, vcc
    v_cmp_gt_u32 vcc, 0x180, v0
    v_cndmask_b32 v72, 0, v72, vcc
    v_cmp_gt_u32 vcc, 0x184, v0
    s_and_saveexec_b64 s[96:97], vcc
    ds_write_b32 v71, v72 offset:{CNT2}
    s_mov_b64 exec, s[96:97]
    v_and_b32 v70, 15, v1
    v_lshrrev_b32 v71, 4, v1
    v_and_b32 v72, 3, v70
    v_lshrrev_b32 v70, 2, v70
    v_mov_b32 v73, 0x{ONE2:x}
    v_cmp_eq_u32 vcc, v71, v72
    v_cndmask_b32 v73, 0, v73, vcc
    ''')
    for b in range(4):
        p(f'v_cmp_eq_u32 vcc, {b}, v70')
        for r in range(4):
            p(f'v_cndmask_b32 v{SEL + 4 * b + r}, 0, v73, vcc')


def emit_b1(p):
    E, S_, R = EDG, EDG + 10, EDG + 20
    p(f's_movk_i32 s96, 0xfe00\nv_mov_b32 v{vT0}, 4\nv_lshlrev_b32 v{vT3}, 2, v1')
    stamp(p, 'pre edges')
    for i in range(10):
        if i == 8:
            p(f's_mov_b64 exec, s[{sM3}:{sM3 + 1}]')
        d, s, r = E + i, S_ + i, R + i
        p(f'''
        v_lshrrev_b32 v{vT1}, 6, v{d}
        v_lshl_or_b32 v{s}, v{d}, 18, v{s}
        v_and_b32 v{vT2}, -4, v{vT1}
        v_lshl_add_u32 v{vT1}, v{vT1}, 2, s96
        v_min_u32 v{vT1}, v{vT1}, v{vT2}
        ds_add_rtn_u32 v{r}, v{vT1}, v{vT0} offset:{CNT1}
        ''')
        if i == 0:
            stamp(p, 'edges0')
        if 4 <= i < 8:
            p(f'ds_write_b32 v{R + i - 4}, v{S_ + i - 4}')
    p('s_mov_b64 exec, -1')
    for i in range(4, 8):
        p(f'ds_write_b32 v{R + i}, v{S_ + i}')
    p(f's_mov_b64 exec, s[{sM3}:{sM3 + 1}]')
    p(f'ds_write_b32 v{R + 8}, v{S_ + 8}\nds_write_b32 v{R + 9}, v{S_ + 9}')
    p('s_mov_b64 exec, -1')
    stamp(p, 'b1 issued')
    p(f'buffer_load_dword v{vPL}, v{vT3}, s[{sDBG}:{sDBG + 3}], 0 offen sc1')
    p(f'v_lshlrev_b32 v{XD}, 16, v{XD}\nv_lshlrev_b32 v{XD + 1}, 16, v{XD + 1}')
    for x in scale_g(D0, XD, XA, GA) + scale_g(D1, XD, XA + 2, GA + 2) + scale_g(D0, XD + 1, XB, HA) + scale_g(D1, XD + 1, XB + 2, HA + 2):
        p(x)
    p('s_waitcnt lgkmcnt(0)\ns_barrier')
    stamp(p, 'b1 done')
    p(f'''
    v_lshlrev_b32 v{vT0}, 4, v1
    s_lshl_b32 s96, s{sW}, 12
    v_add_u32 v{vT1}, s96, v{vT0}
    ''')
    for i in range(4):
        p(f'ds_read_b128 v[{EDG + 4 * i}:{EDG + 4 * i + 3}], v{vT1} offset:{BUCK + 1024 * i}')
    p(f'ds_read_b32 v{vP2}, v{vT3} offset:{CNT1}')
    poll(p, vT3, sDBG, -1, [f'v_and_b32 v{vT1}, 0x80808080, v{vPL}', f'v_cmp_ne_u32 vcc, 0x80808080, v{vT1}'], first_issued=True)
    p.vm = []
    p(f'''
    v_cmp_ne_u32 vcc, s99, v{vPL}
    s_lshl_b32 s96, s{sXC}, 3
    s_lshr_b64 s[96:97], vcc, s96
    s_and_b32 s{sSLOW}, s96, 0xff
    s_lshl_b32 s96, s{sXC}, 20
    s_lshl_b32 s97, s{sW}, 17
    s_add_u32 s96, s96, s97
    s_lshl_b32 s97, s{sR}, 10
    s_add_u32 s96, s96, s97
    s_add_u32 s72, s96, {WS_D}
    s_add_u32 s73, s72, 0x8000
    s_add_u32 s74, s72, 0x10000
    s_add_u32 s75, s72, 0x18000
    s_add_u32 s92, s94, {WS_G}
    s_add_u32 s93, s94, {WS_G + 81920}
    s_add_u32 s96, s95, {WS_G}
    s_add_u32 s97, s95, {WS_G + 81920}
    s_waitcnt lgkmcnt(0)
    ''')
    stamp(p, 'arrived')
    xstore(p, [f'buffer_store_dwordx4 v[{EDG + 4 * i}:{EDG + 4 * i + 3}], v{vT0}, {WSR}, s{72 + i} offen' for i in range(4)] +
           [f'buffer_store_dwordx2 v[{GA}:{GA + 1}], v{XD + 2}, {WSR}, s92 offen',
            f'buffer_store_dwordx2 v[{GA + 2}:{GA + 3}], v{XD + 2}, {WSR}, s93 offen',
            's_mov_b64 exec, 0xffff',
            f'buffer_store_dwordx2 v[{HA}:{HA + 1}], v{XD + 2}, {WSR}, s96 offen',
            f'buffer_store_dwordx2 v[{HA + 2}:{HA + 3}], v{XD + 2}, {WSR}, s97 offen',
            's_mov_b64 exec, -1'])
    p(f'''
    v_lshlrev_b32 v{vT2}, 10, v1
    v_sub_u32 v{vT1}, v{vP2}, v{vT2}
    s_mov_b32 exec_hi, 0
    v_cmp_lt_u32 vcc, {BUCK + 1024}, v{vT1}
    s_mov_b64 exec, -1
    s_cmp_lg_u32 vcc_lo, 0
    s_cselect_b32 s96, 3, 1
    s_lshl_b32 s97, s{sXC}, 3
    s_add_u32 s97, s97, s{sW}
    s_lshl_b32 s97, s97, 5
    s_add_u32 s97, s97, s{sR}
    s_lshl_b32 s97, s97, 2
    s_add_u32 s97, s97, {F_B1}
    v_mov_b32 v{vT1}, v{vFO}
    v_mov_b32 v{vT2}, 2
    v_writelane_b32 v{vT1}, s97, 1
    v_writelane_b32 v{vT2}, s96, 1
    s_lshr_b32 s96, s{sR}, 2
    s_lshl_b32 s97, s{sXC}, 3
    s_add_u32 s96, s96, s97
    s_lshl_b32 s96, s96, 3
    s_add_u32 s96, s96, s{sW}
    s_lshl_b32 s96, s96, 4
    s_add_u32 s96, s96, {F_B1}
    v_lshl_add_u32 v{vT3}, v1, 2, s96
    s_waitcnt vmcnt(0)
    s_mov_b64 exec, 3
    ''')
    xstore(p, [f'buffer_store_dword v{vT2}, v{vT1}, {WSR}, 0 offen'])
    p('s_mov_b64 exec, -1')
    stamp(p, 'b1 flag')
    p(f'''
    s_lshl_b32 s{sM3}, s{sW}, 8
    s_add_u32 s{sM3}, s{sM3}, s2
    s_cmp_lt_u32 s{sM3}, 17
    s_cbranch_scc1 L_prep
    ''')
    p.label('L_prep_back')


def emit_prep_block(p):
    p.label('L_prep')
    p.forget()
    p('s_cmp_eq_u32 s2, 16\ns_cbranch_scc1 L_prep_lin')
    emit_prep(p, 2, 1, 100, sPA, sPB, sWS, 72, 'f', 'sc1')
    p('s_branch L_prep_back')
    p.label('L_prep_lin')
    p.forget()
    emit_prep_lin(p, 1, 100, sPR, sWS, 72, 'sc1')
    p('s_branch L_prep_back')
    p.forget()


def fill_list():
    o = [f's_mov_b32 m0, s{sLA}']
    o += [f'buffer_load_dwordx4 v{vDA}, {WSR}, s{sGO} offen offset:{1024 * j} sc1 lds' for j in range(4)]
    o += [f's_add_u32 m0, s{sLA}, 4096\ns_add_u32 s92, s{sGO}, 4096']
    o += [f'buffer_load_dwordx4 v{vDA}, {WSR}, s92 offen offset:{1024 * j} sc1 lds' for j in range(4)]
    o += [f's_mov_b32 m0, s{sLB}']
    o += [f'buffer_load_dwordx4 v{vDB}, {WSR}, s{sGO} offen offset:{1024 * j} sc1 lds' for j in range(2)]
    return o


def emit_b2(p):
    E, R = EDG, EDG + 16
    a0, a1 = 82, 83
    poll(p, vT3, sWS, 15, [f'v_cmp_eq_u32 vcc, 0, v{vPL}'])
    p(f'''
    s_lshl_b32 s96, s{sXC}, 5
    s_add_u32 s96, s96, s{sR}
    s_lshl_b32 s96, s96, 15
    s_add_u32 s98, s96, {WS_D}
    s_lshl_b32 s97, s{sW}, 12
    s_add_u32 s96, s98, s97
    ''')
    for i in range(4):
        p(f'buffer_load_dwordx4 v[{E + 4 * i}:{E + 4 * i + 3}], v{vT0}, {WSR}, s96 offen offset:{1024 * i} sc1')
    p(f'''
    v_lshrrev_b32 v{vT3}, 3, v1
    v_lshlrev_b32 v{vT3}, 10, v{vT3}
    v_and_b32 v{vT1}, 7, v1
    v_lshl_add_u32 v{vT3}, v{vT1}, 2, v{vT3}
    s_lshl_b32 s96, s{sXC}, 12
    s_lshl_b32 s97, s{sW}, 7
    s_add_u32 s96, s96, s97
    v_add_u32 v{vT3}, s96, v{vT3}
    s_mov_b32 exec_hi, 0
    buffer_load_dword v{vP2}, v{vT3}, {WSR}, 0 offen sc1
    s_mov_b64 exec, -1
    s_lshl_b32 s96, s{sU}, 8
    v_lshlrev_b32 v{vT1}, 2, v1
    buffer_load_dword v{vD0}, v{vT1}, s[{sDIS}:{sDIS + 3}], s96 offen
    s_lshl_b32 s96, s{sU}, 6
    s_add_u32 s96, s96, 16384
    v_lshlrev_b32 v{vT1}, 1, v{vBL}
    buffer_load_ushort v{vD2}, v{vT1}, s[{sDIS}:{sDIS + 3}], s96 offen
    s_mov_b32 s96, {WS_G + G_PAR}
    buffer_load_dword v2, v{vGA}, {WSR}, s96 offen
    buffer_load_dword v2, v{vGB}, {WSR}, s96 offen
    ''')
    stamp(p, 'seg issued')
    a = lbl('nov')
    p(f'''
    s_mov_b64 exec, 15
    v_cmp_eq_u32 vcc, 3, v{vPL}
    s_mov_b64 exec, -1
    s_cbranch_vccz {a}
    v_mov_b32 v{vT1}, 0x100000
    v_lshrrev_b32 v{vT2}, 2, v{vT0}
    v_and_b32 v{vT2}, 4, v{vT2}
    ds_or_b32 v{vT2}, v{vT1} offset:{UF}
    ''')
    p.lgkm = []
    p.label(a)
    p(f'''
    v_lshlrev_b32 v{vT2}, 2, v1
    v_add_u32 v{vT2}, 1280, v{vT2}
    v_mov_b32 v{vT1}, 1
    s_lshl_b32 s96, s{sR}, 10
    s_lshl_b32 s97, s{sR}, 8
    s_add_u32 s97, s97, 31744
    ''')
    for i in range(16):
        p(f'''
        v_lshrrev_b32 v{a0}, 16, v{E + i}
        v_subrev_u32 v{a1}, s96, v{a0}
        v_subrev_u32 v{a0}, s97, v{a0}
        v_min3_u32 v{R + i}, v{a0}, v{a1}, v{vT2}
        ds_add_rtn_u32 v{R + i}, v{R + i}, v{vT1} offset:{CNT2}
        ''')
    stamp(p, 'b2 atomics')
    poll(p, vT3, sWS, 32, [f'v_cmp_gt_u32 vcc, 2, v{vP2}'], first_issued=True, res=vP2)
    p('s_movk_i32 s96, 160\ns_movk_i32 s97, 2560')
    body = []
    for i in range(16):
        r = R + i
        body += [
            f'v_and_b32 v{a0}, 3, v{r}',
            f'v_lshrrev_b32 v{a1}, 16, v{r}',
            f'v_mad_u32_u24 v{a0}, v{a0}, s96, v{a1}',
            f'v_bfe_u32 v{a1}, v{r}, 3, 13',
            f'v_cmp_gt_u32 s[{sMK + 2 * i}:{sMK + 2 * i + 1}], 5, v{a1}',
            f'v_mad_u32_u24 v{a0}, v{a1}, s97, v{a0}',
            f'v_bfe_u32 v{a1}, v{r}, 2, 1',
            f'v_lshl_add_u32 v{r}, v{a1}, 1, v{a0}']
    for x in merge(body, fill_list()):
        p(x)
    for i in range(16):
        p(f's_mov_b64 exec, s[{sMK + 2 * i}:{sMK + 2 * i + 1}]\nds_write_b16 v{R + i}, v{E + i}')
    p('s_mov_b64 exec, -1\ns_waitcnt lgkmcnt(0)\ns_barrier')
    stamp(p, 'b2 done')
    p(f'''
    s_lshr_b32 s96, s{sW}, 2
    s_mul_i32 s96, s96, 12800
    s_and_b32 s97, s{sW}, 3
    s_mul_i32 s92, s97, 2560
    s_add_u32 s92, s92, s96
    s_mul_i32 s93, s97, 640
    s_add_u32 s93, s93, s96
    s_add_u32 s93, s93, 10240
    v_add_u32 v{vT3}, s92, v{vT0}
    v_add_u32 v{a0}, s93, v{vT0}
    v_lshlrev_b32 v{vT1}, 2, v0
    ds_read_b128 v[{E}:{E + 3}], v{vT3} offset:{IMG}
    ds_read_b128 v[{E + 4}:{E + 7}], v{vT3} offset:{IMG + 1024}
    ds_read_b128 v[{E + 8}:{E + 11}], v{vT3} offset:{IMG + 2048}
    ds_read_b128 v[{E + 12}:{E + 15}], v{a0} offset:{IMG}
    ds_read_b32 v{vT2}, v{vT1} offset:{CNT2}
    s_waitcnt lgkmcnt(1)
    ''')
    xstore(p, [f'buffer_store_dwordx4 v[{E}:{E + 3}], v{vT3}, {WSR}, s98 offen',
               f'buffer_store_dwordx4 v[{E + 4}:{E + 7}], v{vT3}, {WSR}, s98 offen offset:1024',
               's_mov_b32 exec_hi, 0',
               f'buffer_store_dwordx4 v[{E + 8}:{E + 11}], v{vT3}, {WSR}, s98 offen offset:2048',
               's_mov_b32 exec_hi, 0xff',
               f'buffer_store_dwordx4 v[{E + 12}:{E + 15}], v{a0}, {WSR}, s98 offen',
               's_mov_b64 exec, -1'])
    p(f'''
    v_and_b32 v{vT2}, 0xffff, v{vT2}
    v_lshlrev_b32 v{vT1}, v{vBETA}, 1
    v_cmp_lt_u32 vcc, 24, v{vT2}
    v_cndmask_b32 v{a1}, 0, v{vT1}, vcc
    v_lshlrev_b32 v{vT1}, 10, v{vT1}
    v_cmp_lt_u32 vcc, 32, v{vT2}
    v_cndmask_b32 v{vT1}, 0, v{vT1}, vcc
    v_or_b32 v{a1}, v{a1}, v{vT1}
    v_mov_b32 v{vT1}, 0x100000
    v_cmp_lt_u32 vcc, 40, v{vT2}
    v_cndmask_b32 v{vT1}, 0, v{vT1}, vcc
    v_or_b32 v{a1}, v{a1}, v{vT1}
    v_cmp_gt_u32 vcc, 0x140, v0
    v_cndmask_b32 v{a1}, 0, v{a1}, vcc
    v_lshlrev_b32 v{vT1}, 2, v{vUB}
    v_cmp_ne_u32 vcc, 0, v{a1}
    s_and_saveexec_b64 s[96:97], vcc
    ds_or_b32 v{vT1}, v{a1} offset:{UF}
    s_mov_b64 exec, s[96:97]
    s_waitcnt lgkmcnt(0)
    s_barrier
    s_lshr_b32 s96, s{sW}, 2
    s_lshl_b32 s96, s96, 2
    v_mov_b32 v{vT1}, s96
    ds_read_b32 v{vT2}, v{vT1} offset:{UF}
    s_lshl_b32 s96, s{sXC}, 5
    s_add_u32 s96, s96, s{sR}
    s_lshl_b32 s96, s96, 3
    s_add_u32 s96, s96, s{sW}
    s_lshl_b32 s96, s96, 2
    s_add_u32 s96, s96, {F_B2}
    v_mov_b32 v{vT1}, s96
    s_lshl_b32 s96, s{sXC}, 6
    s_add_u32 s96, s96, s{sU}
    s_lshl_b32 s96, s96, 4
    s_add_u32 s96, s96, {F_B2}
    v_lshl_add_u32 v{vT3}, v1, 2, s96
    s_lshl_b32 s96, s{sM3}, 2
    s_add_u32 s96, s96, {F_PREP}
    v_mov_b32 v{vT0}, s96
    v_or_b32 v{vT2}, 0x80000000, v{vT2}
    s_waitcnt vmcnt(0)
    s_mov_b64 exec, 1
    ''')
    xstore(p, [f'buffer_store_dword v{vT2}, v{vT1}, {WSR}, 0 offen'])
    stamp(p, 'b2 flag')
    poll(p, vT3, sWS, 15, [f'v_cmp_eq_u32 vcc, 0, v{vPL}'])
    X = 46
    p(f'''
    v_readfirstlane_b32 s{sQ}, v{vPL}
    s_lshr_b32 s96, s{sU}, 1
    s_lshl_b32 s97, s{sXC}, 5
    s_add_u32 s96, s96, s97
    s_lshl_b32 s96, s96, 15
    s_and_b32 s97, s{sU}, 1
    s_mul_i32 s97, s97, 12800
    s_add_u32 s96, s96, s97
    s_add_u32 s96, s96, {WS_D}
    v_mul_u32_u24 v{vT1}, 40, v1
    s_mov_b32 s93, {TBL}
    ''')

    def plane(pl):
        r = X + 10 * pl if pl < 4 else 200
        if pl:
            p('s_add_u32 s96, s96, 2560')
        p(f'''
        buffer_load_dwordx4 v[{r}:{r + 3}], v{vT1}, {WSR}, s96 offen sc1
        buffer_load_dwordx4 v[{r + 4}:{r + 7}], v{vT1}, {WSR}, s96 offen offset:16 sc1
        buffer_load_dwordx2 v[{r + 8}:{r + 9}], v{vT1}, {WSR}, s96 offen offset:32 sc1
        ''')

    def unpack(pl):
        r = X + 10 * pl if pl < 4 else 200
        for b in range(10):
            p(f'v_mad_u32_u16 v{ADDR(b, 2 * pl)}, v{r + b}, 8, s93')
            p(f'v_mad_u32_u16 v{ADDR(b, 2 * pl + 1)}, v{r + b}, 8, s93 op_sel:[1,0,0,0]')
    for pl in range(4):
        plane(pl)
    p(f'''
    s_mov_b64 exec, 1
    buffer_store_dword v{vT2}, v{vT0}, {WSR}, 0 offen sc1
    s_mov_b64 exec, -1
    ''')
    stamp(p, 'img issued')
    a = lbl('np4')
    p(f's_and_b32 s97, s{sQ}, 0xffc00\ns_cbranch_scc0 {a}')
    vm = list(p.vm)
    plane(4)
    unpack(4)
    p.vm = vm
    p.label(a)
    p(f'''
    v_and_b32 v{vD1}, 0xffff0000, v{vD0}
    v_lshlrev_b32 v{vD0}, 16, v{vD0}
    v_lshlrev_b32 v{vD2}, 16, v{vD2}
    s_lshr_b32 s96, s2, 2
    s_lshl_b32 s96, s96, 7
    s_add_u32 s96, s96, {F_TOK}
    v_lshl_add_u32 v{vTP}, v1, 2, s96
    s_lshl_b32 s96, s{sU}, 5
    s_add_u32 s96, s96, s{sSL}
    s_lshl_b32 s96, s96, 2
    s_add_u32 s96, s96, {F_TOK}
    v_mov_b32 v{vTF}, s96
    s_lshl_b32 s96, s2, 8
    s_lshr_b32 s97, s96, 2
    s_add_u32 s97, s97, {65536 - 256}
    s_mov_b32 s92, 81920
    s_lshl_b32 s94, s{sW}, 6
    ''')
    for v, add in ((vK0, 0), (vK1, 512)):
        p(f'''
        v_add_u32 v{vT0}, s94, v1
        v_add_u32 v{vT0}, {add}, v{vT0}
        v_mul_u32_u24 v{vT1}, 3277, v{vT0}
        v_lshrrev_b32 v{vT1}, 16, v{vT1}
        v_mul_u32_u24 v{vT2}, 20, v{vT1}
        v_sub_u32 v{vT2}, v{vT0}, v{vT2}
        v_mul_lo_u32 v{vT1}, v{vT1}, s92
        v_lshl_add_u32 v{vT1}, v{vT2}, 4, v{vT1}
        v_mov_b32 v{vT0}, s97
        v_mov_b32 v{vT3}, s96
        v_cmp_gt_u32 vcc, 16, v{vT2}
        v_cndmask_b32 v{vT0}, v{vT0}, v{vT3}, vcc
        v_add_u32 v{v}, v{vT1}, v{vT0}
        ''')
    for pl in range(4):
        unpack(pl)
    p(f'''
    v_and_b32 v{vT0}, 7, v1
    v_lshrrev_b32 v{vT1}, 3, v1
    v_lshlrev_b32 v{vT2}, 8, v{vT0}
    v_lshl_add_u32 v{vT2}, v{vT1}, 4, v{vT2}
    s_lshl_b32 s96, s2, 5
    s_lshr_b32 s97, s{sW}, 1
    s_lshl_b32 s97, s97, 3
    s_add_u32 s97, s97, s96
    s_lshl_b32 s97, s97, 8
    s_and_b32 s94, s{sW}, 1
    s_lshl_b32 s95, s94, 7
    s_add_u32 s97, s97, s95
    buffer_load_dwordx4 v[46:49], v{vT2}, s[{sX_}:{sX_ + 3}], s97 offen
    s_lshr_b32 s96, s96, 2
    s_add_u32 s96, s96, 8192
    s_lshl_b32 s96, s96, 8
    s_add_u32 s96, s96, s95
    buffer_load_dwordx4 v[50:53], v{vT2}, s[{sX_}:{sX_ + 3}], s96 offen
    v_mul_u32_u24 v{vT1}, 640, v{vT1}
    v_lshl_add_u32 v{vT1}, v{vT0}, 3, v{vT1}
    s_mul_i32 s94, s94, 5120
    v_add_u32 v55, s94, v{vT1}
    s_lshr_b32 s97, s{sW}, 1
    s_lshl_b32 s97, s97, 6
    v_add_u32 v54, s97, v55
    s_mov_b32 s{sK}, 1
    s_waitcnt vmcnt(2)
    s_barrier
    ''')
    stamp(p, 'ready')


def emit_reads(p, b):
    rd = lambda q: f'ds_read_b64_tr_b16 v[{DATA(b, q)}:{DATA(b, q) + 1}], v{ADDR(b, q)}'
    for q in range(6):
        p(rd(q))
    a, r = lbl('r'), lbl('rr')
    p(f's_bitcmp1_b32 s{sQ}, {b}\ns_cbranch_scc1 {a}')
    p.raw(r + ':')
    LATE.append((a, [rd(6), rd(7), f's_bitcmp1_b32 s{sQ}, {10 + b}', f's_cbranch_scc0 {r}', rd(8), rd(9)], r))


def emit_mfmas(p, b):
    D = (D0, D1, D2)[b >> 2]
    sel = SEL + 4 * (b & 3)
    for i in range(3):
        p(mf32(D, DATA(b, 2 * i), sel, None if (b & 3) == 0 and i == 0 else D))
    a, r = lbl('m'), lbl('mr')
    p(f's_bitcmp1_b32 s{sQ}, {b}\ns_cbranch_scc1 {a}')
    p.raw(r + ':')
    g = Ins(mf32(D, DATA(b, 6), sel, D))
    g.ghost = True
    p.hist.append(g)
    LATE.append((a, [mf32(D, DATA(b, 6), sel, D), f's_bitcmp1_b32 s{sQ}, {10 + b}', f's_cbranch_scc0 {r}', mf32(D, DATA(b, 8), sel, D)], r))


def stage_plane(p, spl):
    a = lbl('sp')
    p(f'''
    s_mul_i32 s92, s{spl}, {TOK_PL}
    s_add_u32 s92, s92, {WS_TOK}
    s_mul_i32 s93, s{spl}, {L_PL}
    s_lshl_b32 s94, s{sW}, 10
    s_add_u32 s93, s93, s94
    s_mov_b32 m0, s93
    s_cmp_ge_u32 s{sW}, 2
    buffer_load_dwordx4 v{vK0}, {WSR}, s92 offen sc1 lds
    s_cbranch_scc1 {a}
    s_add_u32 m0, s93, 8192
    s_nop 0
    buffer_load_dwordx4 v{vK1}, {WSR}, s92 offen sc1 lds
    ''')
    p.vm.pop()
    p.raw(a + ':')


def emit_slow_unit(p):
    n0, n1, n2, ed, es, m0_, m1_ = 200, 201, 202, 203, 204, 205, 206
    X = 208
    p.label('L_slow')
    p.forget()
    for i in range(12):
        p(f'v_mov_b32 v{D0 + i}, 0')
    p(f'''
    s_lshl_b32 s96, s{sU}, 7
    v_lshl_add_u32 v{n0}, v1, 1, s96
    v_add_u32 v{n1}, 1, v{n0}
    s_lshl_b32 s96, s{sU}, 5
    s_add_u32 s96, s96, 8192
    v_add_u32 v{n2}, s96, v{vBL}
    v_lshlrev_b32 v{X + 8}, 2, v1
    s_mov_b32 s92, 0
    s_add_u32 s94, s{sU}, 256
    ''')
    p.label('L_slow_e')
    p(f'''
    buffer_load_dword v{ed}, v{X + 8}, s[{sDST}:{sDST + 3}], s92 offen
    buffer_load_dword v{es}, v{X + 8}, s[{sSRC}:{sSRC + 3}], s92 offen
    s_waitcnt vmcnt(0)
    v_lshrrev_b32 v{m0_}, 7, v{ed}
    v_lshrrev_b32 v{m1_}, 5, v{ed}
    v_cmp_eq_u32 s[96:97], s{sU}, v{m0_}
    v_cmp_eq_u32 vcc, s94, v{m1_}
    s_or_b64 s[96:97], s[96:97], vcc
    ''')
    p.label('L_slow_b')
    p(f'''
    s_cmp_eq_u64 s[96:97], 0
    s_cbranch_scc1 L_slow_n
    s_ff1_i32_b64 s95, s[96:97]
    s_bitset0_b64 s[96:97], s95
    v_readlane_b32 s98, v{ed}, s95
    v_readlane_b32 s99, v{es}, s95
    s_lshl_b32 s99, s99, 3
    s_add_u32 s99, s99, {TBL}
    v_mov_b32 v{X + 6}, s99
    ds_read_b64 v[{X + 4}:{X + 5}], v{X + 6}
    s_waitcnt lgkmcnt(0)
    v_lshlrev_b32 v{X}, 16, v{X + 4}
    v_and_b32 v{X + 1}, 0xffff0000, v{X + 4}
    v_lshlrev_b32 v{X + 2}, 16, v{X + 5}
    v_and_b32 v{X + 3}, 0xffff0000, v{X + 5}
    ''')
    for D, n in ((D0, n0), (D1, n1), (D2, n2)):
        p(f'v_cmp_eq_u32 vcc, s98, v{n}\ns_mov_b64 exec, vcc')
        for i in range(4):
            p(f'v_add_f32 v{D + i}, v{D + i}, v{X + i}')
        p('s_mov_b64 exec, -1')
    p('s_branch L_slow_b')
    p.label('L_slow_n')
    p('s_add_u32 s92, s92, 256\ns_cmp_lt_u32 s92, 640000\ns_cbranch_scc1 L_slow_e')
    emit_stage_step(p)
    for x in finish(D0, vD0, HA, GA) + finish(D1, vD1, HA + 2, GA + 2):
        p(x)
    xstore(p, [f'buffer_store_dwordx4 v[{GA}:{GA + 3}], v{vGA}, {WSR}, s{sGO} offen'])
    emit_flag_a(p)
    p('s_branch L_gath_done')


def emit_stage_step(p):
    a = lbl('ns')
    p(f's_cmp_lt_u32 s{sK}, 3\ns_cbranch_scc1 {a}')
    p(f's_sub_u32 s95, s{sK}, 2\ns_waitcnt vmcnt(2)')
    poll(p, vTP, sWS, 32, [f'v_cmp_gt_u32 vcc, s95, v{vP2}'], first_issued=True, res=vP2)
    stage_plane(p, 95)
    p.raw(a + ':')


def emit_flag_a(p):
    p(f'v_mov_b32 v{vT0}, s{sFA}\ns_waitcnt vmcnt(0)')
    xstore(p, ['s_mov_b64 exec, 1', f'buffer_store_dword v{vT0}, v{vFO}, {WSR}, 0 offen', 's_mov_b64 exec, -1'])


def emit_hops(p):
    p(f's_branch L_hop1')
    p.label('L_hop')
    p(f'''
    s_mov_b32 exec_hi, 0
    buffer_load_dword v{vP2}, v{vTP}, {WSR}, 0 offen sc1
    s_mov_b64 exec, -1
    buffer_store_dwordx4 v[{HA}:{HA + 3}], v{vGA}, {WSR}, s{sTO} offen sc1
    buffer_store_dwordx2 v[{HB}:{HB + 1}], v{vGB}, {WSR}, s{sTO} offen sc1
    ''')
    p.label('L_hop1')
    p.auto = False
    p(f'''
    s_xor_b32 s{sGO}, s{sGO}, {WS_G ^ (WS_G + G_PAR)}
    s_add_u32 s{sTO}, s{sTO}, {TOK_PL}
    s_lshl_b32 s{sFA}, s{sK}, 1
    s_add_u32 s{sFA}, s{sFA}, 1
    s_add_u32 s{sFB}, s{sFA}, 1
    s_bitcmp1_b32 s{sQ}, 20
    s_cbranch_scc1 L_slow
    ''')
    if Cfg.prio_until:
        p(f's_cmp_lt_u32 s{sW}, 4\ns_cbranch_scc1 L_np\ns_setprio 1')
        p.raw('L_np:')
    emit_reads(p, 0)
    for b in range(10):
        if b < 9:
            emit_reads(p, b + 1)
        p(f's_waitcnt lgkmcnt({6 if b < 9 else 0})')
        emit_mfmas(p, b)
        if b == 1:
            emit_stage_step(p)
        if b == 4:
            for x in finish(D0, vD0, HA, GA):
                p(x)
        if b == Cfg.prio_until:
            p('s_setprio 0')
        if b == 7:
            for x in finish(D1, vD1, HA + 2, GA + 2):
                p(x)
            xstore(p, [f'buffer_store_dwordx4 v[{GA}:{GA + 3}], v{vGA}, {WSR}, s{sGO} offen'])
        if b == 8:
            emit_flag_a(p)
    p.label('L_gath_done', keep=True)
    p.forget()
    p(f'''
    s_cmp_eq_u32 s{sK}, 7
    s_cbranch_scc1 L_hops_done
    s_mov_b64 exec, 0xff
    buffer_load_dword v{vPL}, v{vFP}, {WSR}, 0 offen sc1
    s_mov_b64 exec, -1
    s_sub_u32 s95, s{sK}, 1
    v_mov_b32 v{vT1}, s{sFB}
    v_mov_b32 v{vT2}, s95
    ''')
    for x in finish(D2, vD2, HB, GB):
        p(x)
    xstore(p, [f'buffer_store_dwordx2 v[{GB}:{GB + 1}], v{vGB}, {WSR}, s{sGO} offen'])
    p(f'''
    s_mov_b64 exec, 1
    buffer_store_dword v{vT2}, v{vTF}, {WSR}, 0 offen sc1
    s_mov_b64 exec, -1
    ''')
    stamp(p, 'gath', True)
    p('s_barrier')
    stamp(p, 'bar1', True)
    p('s_waitcnt vmcnt(2)')
    poll(p, vFP, sWS, 0xff, [f'v_cmp_gt_u32 vcc, s{sFA}, v{vPL}'], first_issued=True)
    stamp(p, 'pollA', True)
    dA = lambda so, j: f'buffer_load_dwordx4 v{vDA}, {WSR}, s{so} offen offset:{1024 * j} sc1 lds'
    p(f's_mov_b32 m0, s{sLA}\ns_add_u32 s97, s{sGO}, 4096')
    for j in range(3):
        p(dA(sGO, j))
    p('s_waitcnt vmcnt(4)')
    xstore(p, ['s_mov_b64 exec, 1', f'buffer_store_dword v{vT1}, v{vFO}, {WSR}, 0 offen', 's_mov_b64 exec, -1'])
    p(dA(sGO, 3))
    p(f's_add_u32 m0, s{sLA}, 4096')
    p(dA(97, 0))
    p(f'''
    s_mov_b64 exec, 0xff
    buffer_load_dword v{vPL}, v{vFP}, {WSR}, 0 offen sc1
    s_mov_b64 exec, -1
    ''')
    for j in range(1, 4):
        p(dA(97, j))
    a, r = lbl('t0'), lbl('t0r')
    p(f's_cmp_eq_u32 s{sK}, 1\ns_cbranch_scc1 {a}')
    p.raw(r + ':')
    LATE.append((a, ['ds_write_b64 v54, v[46:47]', 'ds_write_b64 v54, v[48:49] offset:320',
                     f's_cmp_ge_u32 s{sW}, 2', f's_cbranch_scc1 {r}',
                     'ds_write_b64 v55, v[50:51] offset:256', 'ds_write_b64 v55, v[52:53] offset:576'], r))
    p('s_waitcnt vmcnt(3)')
    poll(p, vFP, sWS, 0xff, [f'v_cmp_gt_u32 vcc, s{sFB}, v{vPL}'], first_issued=True)
    stamp(p, 'pollB', True)
    p(f's_mov_b32 m0, s{sLB}')
    for j in range(2):
        p(f'buffer_load_dwordx4 v{vDB}, {WSR}, s{sGO} offen offset:{1024 * j} sc1 lds')
    p('s_waitcnt vmcnt(0)\ns_barrier')
    stamp(p, 'bar2', True)
    p(f's_add_u32 s{sK}, s{sK}, 1\ns_branch L_hop')
    p.auto = True
    emit_slow_unit(p)
    emit_prep_block(p)
    emit_late(p)


def emit_handoff(p):
    p.label('L_hops_done')
    p.forget()
    p.auto = False
    p(f'''
    v_mov_b32 v{vT2}, 6
    v_lshlrev_b32 v{vT0}, 2, v1
    v_add_u32 v{vT3}, {F_PREP}, v{vT0}
    s_mov_b64 exec, 0x1ffff
    buffer_load_dword v{vPL}, v{vT3}, {WSR}, 0 offen sc1
    s_mov_b64 exec, 1
    buffer_store_dword v{vT2}, v{vTF}, {WSR}, 0 offen sc1
    s_mov_b64 exec, -1
    ''')
    for x in finish(D2, vD2, HB, GB)[:6]:
        p(x)
    p(f'''
    buffer_store_dwordx4 v[{HA}:{HA + 3}], v{vGA}, {WSR}, s{sTO} offen sc1
    buffer_store_dwordx2 v[{HB}:{HB + 1}], v{vGB}, {WSR}, s{sTO} offen sc1
    ''')
    stamp(p, 'gath7')
    p('s_barrier\ns_waitcnt vmcnt(3)')
    poll(p, vT3, sWS, 0x1ffff, [f'v_cmp_eq_u32 vcc, 0, v{vPL}'], first_issued=True)
    p(f'''
    v_lshlrev_b32 v{vT0}, 4, v1
    s_lshl_b32 s92, s{sW}, 13
    s_add_u32 s93, s92, {WS_WF}
    s_add_u32 s92, s92, {L_W}
    s_mov_b32 m0, s92
    s_add_u32 s94, s93, 4096
    ''')
    for i in range(4):
        p(f'buffer_load_dwordx4 v{vT0}, {WSR}, s93 offen offset:{1024 * i} sc1 lds')
    p('s_add_u32 m0, s92, 4096')
    for i in range(4):
        p(f'buffer_load_dwordx4 v{vT0}, {WSR}, s94 offen offset:{1024 * i} sc1 lds')
    p(f'''
    s_and_b32 s92, s{sW}, 3
    s_lshl_b32 s92, s92, 10
    s_add_u32 s93, s92, {WS_WF + 65536}
    s_add_u32 m0, s92, {L_LIN}
    v_mov_b32 v{vT1}, {WS_WF + 69632}
    v_mov_b32 v{vT2}, 7
    buffer_load_dwordx4 v{vT0}, {WSR}, s93 offen sc1 lds
    buffer_load_dword v{vSWR}, v{vT1}, {WSR}, 0 offen sc1
    s_waitcnt vmcnt(10)
    s_mov_b64 exec, 1
    buffer_store_dword v{vT2}, v{vTF}, {WSR}, 0 offen sc1
    s_mov_b64 exec, -1
    s_lshr_b32 s78, s2, 2
    s_and_b32 s79, s2, 3
    ''')
    stamp(p, 'tok7 flag')
    p.auto = True
    emit_tf_setup(p, sW, 78, 79, 92)
    poll(p, vTP, sWS, 32, [f'v_cmp_gt_u32 vcc, 6, v{vP2}'], res=vP2)
    p('s_mov_b32 s95, 6')
    stage_plane(p, 95)
    poll(p, vTP, sWS, 32, [f'v_cmp_gt_u32 vcc, 7, v{vP2}'], first_issued=True, res=vP2)
    stamp(p, 'tok7 seen')
    p('s_mov_b32 s95, 7')
    stage_plane(p, 95)
    if Cfg.st:
        stamp(p, 'x')
        p(f'''
        v_writelane_b32 v{vST}, s{sQ}, 22
        v_writelane_b32 v{vST}, s{sSLOW}, 23
        s_lshl_b32 s80, s2, 3
        s_add_u32 s80, s80, s{sW}
        s_lshl_b32 s80, s80, 8
        s_add_u32 s80, s80, {WS_OVF}
        v_lshl_add_u32 v{vT0}, v1, 2, s80
        buffer_store_dword v{vST}, v{vT0}, {WSR}, 0 offen
        ''')
    p('s_waitcnt vmcnt(0) lgkmcnt(0)\ns_barrier')
    if Cfg.st:
        p('s_memtime s[82:83]\ns_waitcnt lgkmcnt(0)')
    p(f's_cmp_ge_u32 s{sW}, 4\ns_cbranch_scc1 L_tf_two')
    emit_tf(p, 3, sOUT)
    p('s_branch L_tf_fin')
    emit_late(p)
    p.label('L_tf_two')
    p.forget()
    emit_tf(p, 2, sOUT)
    p.label('L_tf_fin')
    if Cfg.st:
        p(f'''
        s_memtime s[84:85]
        s_memrealtime s[86:87]
        s_waitcnt lgkmcnt(0)
        v_mov_b32 v2, s80
        v_mov_b32 v4, s82
        v_mov_b32 v5, s84
        v_mov_b32 v6, s86
        s_mov_b64 exec, 1
        buffer_store_dwordx2 v[4:5], v2, {WSR}, 0 offen offset:248
        buffer_store_dword v6, v2, {WSR}, 0 offen offset:80
        ''')


def gen(st=False, **kw):
    Cfg.st = st
    for k, v in kw.items():
        setattr(Cfg, k, v)
    STAMPS.clear()
    p = Prog()
    p.raw('; @launch grid=(256,1,1) block=(512,1,1) lds=163840')
    p.raw('.amdgcn_target "amdgcn-amd-amdhsa--gfx950"\n.text')
    p.kstart(KN)
    p.junk = {('v', 2), ('v', 3)}
    emit_prologue(p)
    emit_b1(p)
    emit_b2(p)
    emit_hops(p)
    p.junk = set()
    emit_handoff(p)
    p.label('L_end')
    p('s_endpgm')
    p.raw('L_code_end:')
    p.raw('.section .rodata,"a"\n.p2align 6')
    p.kdesc(KN, vgpr=256)
    if st:
        json.dump(STAMPS, open('stamps.json', 'w'))
    print('nops', p.nnop, 'lines', len(p.L))
    return p.text()


if __name__ == '__main__':
    open('f_st.s', 'w').write(gen(True))
    open('f.s', 'w').write(gen(False))
```

```python
import sys, json
from prog import *
from parts_tf import *

F_HOP = 0x0000
F_TOK = 0x8000
F_HI = 0x10000
F_B2 = 0x20000
WS_D2 = WS_D + 0x200000
WS_TAG = 0x3ff80
PAD = 0xFFFC3FFF

TBL = 81920
CNT1, CNT2, UF, BUCK, IMG, PSUM = 0, 256, 1152, 2048, 10240, 25600
DUMMY = 10239

sWS, sSRC, sDST, sX_, sDIS, sDBG, sOUT = 4, 8, 12, 16, 20, 24, 28
sPA, sPB, sPR = 32, 36, 84
sW, sXC, sR, sJ, sSL, sU, sSLOW, sQ, sK, sGO, sTO, sFA, sFB, sSPIN = 44, 45, 46, 47, 48, 49, 50, 51, 52, 53, 54, 55, 56, 57
sTAG = 43
sBU = 76
sTASK = 77
sNEG = 58
sMK = 60
sLA, sLB = 100, 101

D0, D1, D2 = 4, 8, 12
GA, GB, HA, HB = 16, 20, 24, 28
vD0, vD1, vD2 = 30, 31, 32
vGA, vGB, vDA, vDB, vFP, vFO, vG0, vT0, vT1, vT2, vT3 = 33, 34, 35, 36, 37, 38, 39, 40, 41, 42, 43
vFV, vNON = 22, 23
vPL = 94
vBETA, vUB = 44, 45
vTP, vTF = 44, 45
XA, XB, XD = 100, 104, 108
sOFF = 80
vBL, vK0, vK1 = 96, 97, 98
vOWN = 93
vP2 = 86
vST = 99
PS = 88
ADDR = lambda b, q: 100 + 10 * b + q
DATA = lambda b, q: 200 + 20 * (b & 1) + 2 * q
SEL = 240
SPIN_MAX = 1 << 22
WSR = f's[{sWS}:{sWS + 3}]'


class Cfg:
    st = False
    prio_until = 5
    force_slow = 0
    dump_tbl = 0
    pollb_at = 3
    xearly = 0
    hopst = ('gath', 'bar1', 'pollA', 'pollB', 'bar2')


def srd(p, d, lo, size):
    p(f's_mov_b32 s{d}, s{lo}\ns_mov_b32 s{d + 1}, s{lo + 1}\ns_mov_b32 s{d + 2}, {size}\ns_mov_b32 s{d + 3}, 0x20000')


class Uniq:
    n = 0


def lbl(x):
    Uniq.n += 1
    return f'L_{x}_{Uniq.n}'


LATE = []


def xstore(p, ins):
    a, b = lbl('xs'), lbl('xe')
    p(f's_cmp_lg_u32 s{sSLOW}, 0\ns_cbranch_scc1 {a}')
    p.opt_begin()
    for i in ins:
        p(i)
    p.opt_end(b)
    LATE.append((a, ['s_nop 4'] + [i + (' sc1' if i.startswith('buffer_store') else '') for i in ins] + ['s_nop 1'], b))


def emit_late(p):
    for a, ins, b in LATE:
        p.raw(a + ':')
        for i in ins:
            p.raw(i)
        p.raw(f'    s_branch {b}')
    LATE.clear()


def poll_load(vaddr, res):
    return f'buffer_load_dwordx2 v[{res}:{res + 1}], v{vaddr}, {WSR}, 0 offen sc1'


def poll(p, vaddr, ex, need, first_issued=False, res=None, bound='64'):
    res = vPL if res is None else res
    a, b = lbl('pl'), lbl('pd')
    setex = {32: 's_mov_b32 exec_hi, 0', 40: 's_mov_b32 exec_hi, 0xff'}.get(ex, f's_mov_b64 exec, {ex}')
    cond = [f'v_lshl_add_u64 v[{vT0}:{vT1}], v[{res}:{res + 1}], 0, s[{sNEG}:{sNEG + 1}]',
            f'v_cmp_le_u64 vcc, {bound}, v[{vT0}:{vT1}]']
    body = [poll_load(vaddr, res),
            f's_add_u32 s{sSPIN}, s{sSPIN}, 1',
            f's_cmp_gt_u32 s{sSPIN}, {SPIN_MAX}',
            's_cbranch_scc1 L_end',
            's_waitcnt vmcnt(0)'] + cond + [f's_cbranch_vccnz {a}']
    p(f's_sub_u32 s{sNEG}, 0, {need}')
    p(setex)
    if first_issued:
        for c in cond:
            p(c)
        p(f's_cbranch_vccnz {a}')
        p.raw(b + ':')
        LATE.append((a, body, b))
    else:
        p.label(a)
        for c in body:
            p(c)
    p('s_mov_b64 exec, -1')


def flag_store(vaddr):
    return f'buffer_store_dwordx2 v[{vFV}:{vNON}], v{vaddr}, {WSR}, 0 offen'


def finish(D, dis, H, G):
    o = [f'v_mul_f32 v{D + i}, v{D + i}, v{dis}' for i in range(4)]
    o += [cvt(H, D), cvt(H + 1, D + 2)]
    return o + scale_g(D, dis, H, G)


def scale_g(D, dis, H, G):
    o = [f'v_lshlrev_b32 v{D}, 16, v{H}', f'v_and_b32 v{D + 1}, 0xffff0000, v{H}',
         f'v_lshlrev_b32 v{D + 2}, 16, v{H + 1}', f'v_and_b32 v{D + 3}, 0xffff0000, v{H + 1}']
    o += [f'v_mul_f32 v{D + i}, v{D + i}, v{dis}' for i in range(4)]
    o += [cvt(G, D), cvt(G + 1, D + 2)]
    return o


STAMPS = []


def stamp(p, name, hop=False):
    if not Cfg.st:
        return
    if hop and name not in Cfg.hopst:
        return
    if hop:
        i = 24 + sum(1 for n in STAMPS if n.startswith('h:')) * 8
        STAMPS.append('h:' + name)
        p(f's_memtime s[90:91]\ns_add_u32 m0, s{sK}, {i - 1}\ns_waitcnt lgkmcnt(0)\nv_writelane_b32 v{vST}, s90, m0')
    else:
        i = sum(1 for n in STAMPS if not n.startswith('h:'))
        STAMPS.append(name)
        p(f's_memtime s[90:91]\ns_waitcnt lgkmcnt(0)\nv_writelane_b32 v{vST}, s90, {i}')


def emit_desc(p):
    p(f'''
    s_cmp_ge_u32 s{sTASK}, 8
    s_cselect_b32 s{sPA}, s64, s60
    s_cselect_b32 s{sPA + 1}, s65, s61
    s_cselect_b32 s{sPB}, s66, s62
    s_cselect_b32 s{sPB + 1}, s67, s63
    s_mov_b32 s{sPA + 2}, 32768
    s_mov_b32 s{sPA + 3}, 0x20000
    s_mov_b32 s{sPB + 2}, 32768
    s_mov_b32 s{sPB + 3}, 0x20000
    ''')
    srd(p, sPR, 68, 256)


PV, PRA, PBF, PRT, PD, PI = 112, 116, 132, 148, 164, 196


def emit_prep_blocks(p):
    va, t0, t1 = PV, PV + 1, PV + 2
    p.label('L_prepA')
    p.forget()
    emit_desc(p)
    emit_lane_consts_prep(p, 1, va, t0)
    p(f'''
    s_cmp_eq_u32 s{sTASK}, 16
    s_cbranch_scc1 L_prepA_lin
    s_lshr_b32 s72, s{sW}, 1
    s_lshl_b32 s72, s72, 13
    s_and_b32 s73, s{sW}, 1
    s_lshl_b32 s73, s73, 10
    s_add_u32 s72, s72, s73
    s_bfe_u32 s73, s{sTASK}, 0x20001
    s_lshl_b32 s73, s73, 5
    s_and_b32 s74, s{sTASK}, 1
    s_lshl_b32 s74, s74, 2
    s_add_u32 s73, s73, s74
    ''')
    for e4 in range(4):
        p(f'buffer_load_dwordx4 v[{PRA + 4 * e4}:{PRA + 4 * e4 + 3}], v{va}, s[{sPA}:{sPA + 3}], s72 offen offset:{64 * e4}')
    p(f's_cmp_ge_u32 s{sTASK}, 8\ns_cbranch_scc1 L_prepA_w\ns_lshl_b32 s73, s73, 8')
    for e4 in range(4):
        p(f'buffer_load_dwordx4 v[{PBF + 4 * e4}:{PBF + 4 * e4 + 3}], v{va}, s[{sPB}:{sPB + 3}], s73 offen offset:{64 * e4}')
    p('s_branch L_prepA_back')
    p.label('L_prepA_w')
    p('s_lshl_b32 s73, s73, 1')
    for et in range(8):
        p(f's_add_u32 s74, s73, {phi_base(et) * 256}')
        p(f'buffer_load_dwordx2 v[{PRT + 2 * et}:{PRT + 2 * et + 1}], v{va}, s[{sPB}:{sPB + 3}], s74 offen')
    p('s_branch L_prepA_back')
    p.label('L_prepA_lin')
    p(f'v_and_b32 v{t0}, 48, v1')
    for s4 in range(4):
        p(f'buffer_load_dwordx4 v[{PRA + 4 * s4}:{PRA + 4 * s4 + 3}], v{t0}, s[{sPR}:{sPR + 3}], 0 offen offset:{64 * s4}')
    p('s_branch L_prepA_back')
    p.label('L_prepB')
    p.forget()
    p(f's_cmp_eq_u32 s{sTASK}, 16\ns_cbranch_scc1 L_prepB_lin\ns_cmp_lt_u32 s{sTASK}, 8\ns_cbranch_scc1 L_prepB_m')
    emit_i16(p, 1, PI, t0, t1)
    for et in range(8):
        p(mf16(PD + 4 * et, PRT + 2 * et, PI, None))
    for et in range(8):
        p(cvt(PBF + 2 * et, PD + 4 * et))
        p(cvt(PBF + 2 * et + 1, PD + 4 * et + 2))
    p.label('L_prepB_m')
    for e4 in range(4):
        p(mf32(PD, PRA + 4 * e4, PBF + 4 * e4, None if e4 == 0 else PD))
    p(f'''
    v_lshlrev_b32 v{va}, 5, v1
    s_lshl_b32 s72, s{sW}, 2
    v_add_u32 v{va}, s72, v{va}
    v_add_f32 v{t0}, v{PD}, v{PD + 1}
    v_add_f32 v{t1}, v{PD + 2}, v{PD + 3}
    v_add_f32 v{t0}, v{t0}, v{t1}
    v_mov_b32 v{t1}, v{t0}
    v_permlane16_swap_b32 v{t0}, v{t1}
    v_add_f32 v{t0}, v{t0}, v{t1}
    v_mov_b32 v{t1}, v{t0}
    v_permlane32_swap_b32 v{t0}, v{t1}
    v_add_f32 v{t0}, v{t0}, v{t1}
    s_mov_b64 exec, 0xffff
    ds_write_b32 v{va}, v{t0} offset:{PSUM}
    s_mov_b64 exec, -1
    s_waitcnt lgkmcnt(0)
    s_barrier
    s_branch L_prepC
    ''')
    p.label('L_prepB_lin')
    F, O = PRA, PBF
    p(f'''
    v_and_b32 v{t1}, 3, v1
    v_cmp_eq_u32 s[72:73], 1, v{t1}
    v_cmp_eq_u32 vcc, 0, v{t1}
    v_mov_b32 v{t1}, 0x{ONE2:x}
    ''')
    for i in range(4):
        p(f'v_mov_b32 v{O + i}, 0x{ONE2:x}')
    p(f'v_cndmask_b32 v{t1}, 0, v{t1}, vcc')
    for i in range(16):
        p(f'v_cndmask_b32 v{F + i}, v{t1}, v{F + i}, s[72:73]')
    for s4 in range(4):
        p(mf32(PD, F + 4 * s4, O, None if s4 == 0 else PD))
    p(f'v_lshlrev_b32 v{t0}, 4, v1\ns_mov_b32 s74, {WS_WF + 65536}')
    for s4 in range(4):
        p(f'buffer_store_dwordx4 v[{F + 4 * s4}:{F + 4 * s4 + 3}], v{t0}, {WSR}, s74 offen offset:{1024 * s4} sc1')
    p(f'''
    v_lshlrev_b32 v{t0}, 2, v1
    s_mov_b32 s74, {WS_WF + 69632}
    buffer_store_dword v{PD + 1}, v{t0}, {WSR}, s74 offen sc1
    s_branch L_prepB_back
    ''')
    p.label('L_prepC')
    p.forget()
    p(f'''
    v_and_b32 v{va}, 15, v1
    v_lshlrev_b32 v{va}, 5, v{va}
    ds_read_b128 v[{PRA}:{PRA + 3}], v{va} offset:{PSUM}
    ds_read_b128 v[{PRA + 4}:{PRA + 7}], v{va} offset:{PSUM + 16}
    s_lshl_b32 s72, s{sTASK}, 12
    s_lshr_b32 s73, s{sW}, 1
    s_lshl_b32 s73, s73, 10
    s_add_u32 s72, s72, s73
    s_and_b32 s73, s{sW}, 1
    s_lshl_b32 s73, s73, 3
    s_add_u32 s72, s72, s73
    s_add_u32 s72, s72, {WS_WF}
    v_lshlrev_b32 v{va}, 4, v1
    v_add_f32 v{t0}, v{PRA}, v{PRA + 1}
    v_add_f32 v{t1}, v{PRA + 2}, v{PRA + 3}
    v_add_f32 v{t0}, v{t0}, v{PRA + 4}
    v_add_f32 v{t1}, v{t1}, v{PRA + 5}
    v_add_f32 v{t0}, v{t0}, v{PRA + 6}
    v_add_f32 v{t1}, v{t1}, v{PRA + 7}
    v_add_f32 v{t0}, v{t0}, v{t1}
    v_mul_f32 v{t0}, 0x3c000000, v{t0}
    ''')
    for i in range(4):
        p(f'v_sub_f32 v{PD + i}, v{PD + i}, v{t0}')
    p(cvt(PBF, PD))
    p(cvt(PBF + 1, PD + 2))
    p(f'buffer_store_dwordx2 v[{PBF}:{PBF + 1}], v{va}, {WSR}, s72 offen sc1\ns_branch L_prepB_back')
    p.forget()


def fill_list():
    o = [f's_mov_b32 m0, s{sLA}']
    o += [f'buffer_load_dwordx4 v{vDA}, {WSR}, s{sGO} offen offset:{1024 * j} sc1 lds' for j in range(4)]
    o += [f's_add_u32 m0, s{sLA}, 4096\ns_add_u32 s92, s{sGO}, 4096']
    o += [f'buffer_load_dwordx4 v{vDA}, {WSR}, s92 offen offset:{1024 * j} sc1 lds' for j in range(4)]
    o += [f's_mul_i32 s92, s{sSL}, 81920\ns_lshl_b32 s93, s{sW}, 11\ns_add_u32 m0, s93, {TBL + 65536}\n'
          f's_add_u32 s92, s92, s93\ns_add_u32 s92, s92, {WS_G + 65536}\nv_lshlrev_b32 v{vT3}, 4, v1']
    o += [f'buffer_load_dwordx4 v{vT3}, {WSR}, s92 offen offset:{1024 * j} sc1 lds' for j in range(2)]
    return o


def emit_prologue(p):
    p('s_cmp_ge_u32 s2, 256\ns_cbranch_scc1 L_end')
    if Cfg.st:
        p(f's_memrealtime s[90:91]\ns_waitcnt lgkmcnt(0)\nv_writelane_b32 v{vST}, s90, 21')
    stamp(p, 'entry')
    p(f"""
    s_load_dwordx8 s[32:39], s[0:1], 0
    s_load_dwordx4 s[92:95], s[0:1], 80
    s_load_dwordx8 s[60:67], s[0:1], 32
    s_load_dwordx4 s[68:71], s[0:1], 64
    v_readfirstlane_b32 s{sW}, v0
    v_and_b32 v1, 63, v0
    s_and_b32 s{sXC}, s2, 7
    s_lshr_b32 s{sR}, s2, 3
    s_lshr_b32 s{sW}, s{sW}, 6
    """)
    p('s_getpc_b64 s[96:97]')
    p.raw('L_pc:')
    p(f"""
    s_lshl_b32 s98, s{sR}, 3
    s_add_u32 s98, s98, s{sW}
    s_lshl_b32 s98, s98, 7
    v_lshl_add_u32 v{vT0}, v1, 1, s98
    v_min_u32 v{vT0}, L_code_end-L_pc-4, v{vT0}
    v_and_b32 v{vT0}, -4, v{vT0}
    global_load_dword v3, v{vT0}, s[96:97]
    v_lshlrev_b32 v{vT3}, 3, v0
    s_mul_i32 s96, s2, 2560
    v_mov_b32 v64, 0x{PAD:x}
    v_mov_b32 v65, v64
    v_mov_b32 v66, v64
    v_mov_b32 v67, v64
    v_lshlrev_b32 v70, 4, v0
    v_lshlrev_b32 v71, 2, v0
    v_lshlrev_b32 v72, 7, v1
    v_add_u32 v72, {BUCK}, v72
    v_lshlrev_b32 v73, 2, v1
    s_waitcnt lgkmcnt(0)
    s_load_dword s78, s[94:95], {WS_TAG}
    """)
    srd(p, sDST, 36, 640000)
    srd(p, sSRC, 34, 640000)
    p(f"""
    buffer_load_dwordx2 v[56:57], v{vT3}, s[{sDST}:{sDST + 3}], s96 offen
    buffer_load_dwordx2 v[58:59], v{vT3}, s[{sSRC}:{sSRC + 3}], s96 offen
    ds_write_b128 v70, v[64:67] offset:{BUCK}
    ds_write_b32 v73, v72 offset:{CNT1}
    """)
    stamp(p, 'srd')
    srd(p, sWS, 94, 0x10000000)
    srd(p, sX_, 32, 2560000)
    srd(p, sDIS, 38, 20000)
    srd(p, sOUT, 70, 2560000)
    p(f"""
    s_and_b32 s{sJ}, s{sR}, 7
    s_lshr_b32 s{sSL}, s{sR}, 3
    s_lshl_b32 s96, s{sXC}, 2
    s_add_u32 s{sSL}, s{sSL}, s96
    s_lshl_b32 s{sU}, s{sW}, 3
    s_add_u32 s{sU}, s{sU}, s{sJ}
    s_mov_b32 s{sSPIN}, 0
    v_lshrrev_b32 v{vT1}, 3, v1
    v_and_b32 v{vT2}, 7, v1
    v_cmp_eq_u32 s[74:75], 7, v{vT2}
    v_lshlrev_b32 v{vT2}, 4, v{vT2}
    v_lshl_add_u32 v75, v{vT1}, 15, v{vT2}
    s_lshl_b32 s72, s{sW}, 18
    s_lshl_b32 s97, s2, 7
    s_add_u32 s72, s72, s97
    s_add_u32 s72, s72, {WS_D}
    s_getreg_b32 s99, hwreg(HW_REG_XCC_ID, 0, 4)
    s_add_u32 s96, s99, 1
    v_mov_b32 v{vFV}, s96
    s_lshl_b32 s96, s{sXC}, 12
    s_add_u32 s96, s96, {F_HI}
    v_lshl_add_u32 v{vG0}, v1, 7, s96
    s_lshl_b32 s97, s{sR}, 7
    s_add_u32 s96, s96, s97
    v_mov_b32 v{vT3}, s96
    v_lshlrev_b32 v{vT0}, 4, v1
    v_and_b32 v{vT0}, 16, v{vT0}
    """)
    if Cfg.xearly:
        emit_offsets(p)
        emit_x_loads(p)
        p(f'buffer_load_dword v2, v{vGA}, {WSR}, s{sGO} offen\nbuffer_load_dword v2, v{vGB}, {WSR}, s{sGO} offen')
        p(f's_lshl_b32 s96, s{sXC}, 12\ns_lshl_b32 s97, s{sR}, 7\ns_add_u32 s96, s96, s97\ns_add_u32 s96, s96, {F_HI}\nv_mov_b32 v{vT3}, s96')
    p(f"""
    s_waitcnt lgkmcnt(0)
    s_barrier
    s_add_u32 s78, s78, 0x100
    s_lshr_b32 s79, s78, 4
    s_not_b32 s79, s79
    s_and_b32 s79, s79, 15
    s_and_b32 s78, s78, -16
    s_or_b32 s{sTAG}, s78, s79
    s_not_b32 s{sNEG + 1}, s{sTAG}
    v_mov_b32 v{vNON}, s{sTAG}
    s_mov_b32 s79, 0x3c000
    v_lshrrev_b32 v{vT0}, v{vT0}, v{vNON}
    s_cmp_lg_u32 s{sW}, 7
    s_cbranch_scc1 L_nohi
    s_mov_b64 exec, 1
    {flag_store(vT3)} sc1
    s_mov_b64 exec, -1
    """)
    p.vm.pop()
    p.raw('L_nohi:')
    for r in range(4):
        p(f'v_lshlrev_b32 v{PS + r}, {14 - 4 * r}, v{vT0}\nv_and_b32 v{PS + r}, s79, v{PS + r}')
    stamp(p, 'init issued')


def emit_g1(p):
    p(f"""
    s_cmp_ge_u32 s{sW}, 5
    s_cbranch_scc1 L_g1_skip
    s_cmp_ge_u32 s2, 250
    s_cbranch_scc1 L_g1_skip
    s_movk_i32 s96, 0xfc00
    v_mov_b32 v{vT0}, 4
    """)
    vm = list(p.vm)
    for i in range(2):
        p(f"""
        v_lshrrev_b32 v{vT1}, 5, v{56 + i}
        v_lshl_or_b32 v{58 + i}, v{56 + i}, 18, v{58 + i}
        v_and_b32 v{vT2}, -4, v{vT1}
        v_lshl_add_u32 v{vT1}, v{vT1}, 2, s96
        v_min_u32 v{vT1}, v{vT1}, v{vT2}
        ds_add_rtn_u32 v{60 + i}, v{vT1}, v{vT0} offset:{CNT1}
        """)
    p('ds_write_b32 v60, v58\nds_write_b32 v61, v59\ns_waitcnt lgkmcnt(0)')
    p.vm = vm
    p.label('L_g1_skip')
    stamp(p, 'g1')
    p(f"""
    s_barrier
    ds_read_b32 v74, v73 offset:{CNT1}
    ds_read_b128 v[64:67], v70 offset:{BUCK}
    s_sub_u32 s{sTASK}, s2, 8
    s_lshr_b32 s{sBU}, s{sR}, 2
    s_lshl_b32 s{sBU}, s{sBU}, 3
    s_add_u32 s{sBU}, s{sBU}, s{sXC}
    v_sub_u32 v74, v74, v72
    v_cmp_lt_u32 vcc, 0x7c, v74
    s_cmp_lg_u64 vcc, 0
    s_cselect_b32 s97, 1, 0
    s_sub_u32 s97, 0x{PAD:x}, s97
    v_mov_b32 v74, s97
    v_xor_b32 v64, v64, v{PS}
    v_cndmask_b32 v67, v67, v74, s[74:75]
    v_xor_b32 v65, v65, v{PS + 1}
    v_xor_b32 v66, v66, v{PS + 2}
    v_xor_b32 v67, v67, v{PS + 3}
    buffer_store_dwordx4 v[64:67], v75, {WSR}, s72 offen sc1
    """)
    stamp(p, 'b1 out')
    p(f's_and_b32 s96, s{sR}, 3\ns_cbranch_scc0 L_builder')
    Cfg.vm_builder = list(p.vm)
    if Cfg.xearly:
        p(f's_mov_b32 exec_hi, 0\n{poll_load(vG0, vP2)}\ns_mov_b64 exec, -1')
    else:
        emit_offsets(p)
        emit_x_loads(p)
        emit_touch(p)
    p(f's_cmp_lt_u32 s{sTASK}, 17\ns_cbranch_scc1 L_prepA')
    p.label('L_prepA_back')
    emit_sel(p)
    emit_imgpat(p)
    emit_g0(p, True)
    stamp(p, 'g0 flag')
    p(f's_cmp_lt_u32 s{sTASK}, 17\ns_cbranch_scc1 L_prepB')
    p.label('L_prepB_back')
    emit_misc_loads(p)
    p('s_branch L_fill0')


def emit_offsets(p):
    p(f"""
    v_lshrrev_b32 v{vT1}, 4, v1
    v_and_b32 v{vT2}, 15, v1
    v_lshl_add_u32 v{vT1}, v{vT1}, 3, v{vT2}
    v_mov_b32 v{vT3}, 0x2000000
    v_cmp_gt_u32 vcc, 8, v{vT2}
    v_cndmask_b32 v{vBL}, v{vT3}, v{vT1}, vcc
    s_mul_i32 s96, s{sSL}, 81920
    s_lshl_b32 s97, s{sU}, 10
    s_add_u32 s97, s97, s96
    v_lshl_add_u32 v{vGA}, v1, 4, s97
    s_lshl_b32 s97, s{sU}, 8
    s_add_u32 s97, s97, s96
    s_add_u32 s97, s97, 65536
    v_lshl_add_u32 v{vGB}, v{vBL}, 3, s97
    s_mov_b32 s{sGO}, {WS_G}
    s_mov_b32 s{sTO}, {WS_TOK}
    s_lshl_b32 s97, s{sW}, 13
    s_add_u32 s{sLA}, s97, {TBL}
    s_add_u32 s97, s97, s96
    v_lshl_add_u32 v{vDA}, v1, 4, s97
    s_lshl_b32 s97, s{sW}, 12
    s_add_u32 s{sLB}, s97, {TBL + 65536}
    s_add_u32 s97, s97, s96
    s_add_u32 s97, s97, 65536
    v_lshl_add_u32 v{vDB}, v1, 4, s97
    s_lshl_b32 s96, s{sSL}, 3
    s_add_u32 s96, s96, s{sW}
    s_lshl_b32 s96, s96, 7
    v_lshl_add_u32 v{vFP}, v1, 3, s96
    s_lshl_b32 s97, s{sJ}, 3
    s_add_u32 s96, s96, s97
    v_mov_b32 v{vFO}, s96
    """)


def emit_x_loads(p):
    p(f"""
    s_lshr_b32 s92, s{sR}, 3
    s_lshl_b32 s92, s92, 5
    s_lshl_b32 s93, s{sU}, 7
    s_add_u32 s92, s92, s93
    s_lshr_b32 s93, s92, 2
    s_add_u32 s93, s93, 8192
    v_lshrrev_b32 v{XD + 2}, 1, v1
    v_and_b32 v{XD + 3}, 1, v1
    v_lshlrev_b32 v{XD}, 8, v{XD + 2}
    v_lshl_add_u32 v{XD}, v{XD + 3}, 4, v{XD}
    s_lshl_b32 s96, s{sXC}, 5
    s_lshl_b32 s97, s92, 8
    s_add_u32 s97, s97, s96
    buffer_load_dwordx4 v[{XA}:{XA + 3}], v{XD}, s[{sX_}:{sX_ + 3}], s97 offen
    s_lshl_b32 s97, s93, 8
    s_add_u32 s97, s97, s96
    s_mov_b64 exec, 0xffff
    buffer_load_dwordx4 v[{XB}:{XB + 3}], v{XD}, s[{sX_}:{sX_ + 3}], s97 offen
    s_mov_b64 exec, -1
    v_lshlrev_b32 v{XD + 1}, 1, v{XD + 2}
    s_lshl_b32 s97, s92, 1
    buffer_load_ushort v{XD}, v{XD + 1}, s[{sDIS}:{sDIS + 3}], s97 offen
    s_lshl_b32 s97, s93, 1
    buffer_load_ushort v{XD + 1}, v{XD + 1}, s[{sDIS}:{sDIS + 3}], s97 offen
    v_mul_u32_u24 v{XD + 3}, {2 * 81920}, v{XD + 3}
    v_lshl_add_u32 v{XD + 2}, v{XD + 2}, 3, v{XD + 3}
    s_mul_i32 s96, s{sXC}, {4 * 81920}
    s_add_u32 s96, s96, {WS_G}
    s_lshl_b32 s92, s92, 3
    s_add_u32 s40, s92, s96
    s_lshl_b32 s93, s93, 3
    s_add_u32 s41, s93, s96
    """)


def emit_touch(p):
    p(f"""
    buffer_load_dword v2, v{vGA}, {WSR}, s{sGO} offen
    buffer_load_dword v2, v{vGB}, {WSR}, s{sGO} offen
    s_mov_b32 exec_hi, 0
    {poll_load(vG0, vP2)}
    s_mov_b64 exec, -1
    """)


def emit_sel(p):
    p(f"""
    v_and_b32 v80, 15, v1
    v_lshrrev_b32 v81, 4, v1
    v_and_b32 v82, 3, v80
    v_lshrrev_b32 v80, 2, v80
    v_mov_b32 v83, 0x{ONE2:x}
    v_cmp_eq_u32 vcc, v81, v82
    v_cndmask_b32 v83, 0, v83, vcc
    """)
    for b in range(4):
        p(f'v_cmp_eq_u32 vcc, {b}, v80')
        for r in range(4):
            p(f'v_cndmask_b32 v{SEL + 4 * b + r}, 0, v83, vcc')


def emit_g0(p, st=False):
    p(f'v_lshlrev_b32 v{XD}, 16, v{XD}\nv_lshlrev_b32 v{XD + 1}, 16, v{XD + 1}')
    for x in scale_g(D0, XD, XA, GA) + scale_g(D1, XD, XA + 2, GA + 2) + scale_g(D0, XD + 1, XB, HA) + scale_g(D1, XD + 1, XB + 2, HA + 2):
        p(x)
    if st:
        stamp(p, 'x in')
    poll(p, vG0, 32, 1, first_issued=True, res=vP2)
    if st:
        stamp(p, 'hello')
    p(f"""
    v_subrev_u32 v{vT1}, 1, v{vP2}
    v_cmp_ne_u32 vcc, s99, v{vT1}
    s_add_u32 s92, s40, 81920
    s_add_u32 s93, s41, 81920
    v_mov_b32 v{vFV}, 2
    s_mov_b32 s{sSLOW}, vcc_lo
    """)
    xstore(p, [f'buffer_store_dwordx2 v[{GA}:{GA + 1}], v{XD + 2}, {WSR}, s40 offen',
               f'buffer_store_dwordx2 v[{GA + 2}:{GA + 3}], v{XD + 2}, {WSR}, s92 offen',
               's_mov_b64 exec, 0xffff',
               f'buffer_store_dwordx2 v[{HA}:{HA + 1}], v{XD + 2}, {WSR}, s41 offen',
               f'buffer_store_dwordx2 v[{HA + 2}:{HA + 3}], v{XD + 2}, {WSR}, s93 offen',
               's_mov_b64 exec, -1'])
    p(f"""
    v_lshrrev_b32 v{vG0}, 3, v1
    v_lshlrev_b32 v{vG0}, 10, v{vG0}
    v_and_b32 v{vT1}, 7, v1
    v_lshl_add_u32 v{vG0}, v{vT1}, 3, v{vG0}
    s_lshl_b32 s96, s{sXC}, 12
    s_lshl_b32 s97, s{sW}, 7
    s_add_u32 s96, s96, s97
    v_add_u32 v{vG0}, s96, v{vG0}
    s_waitcnt vmcnt(0)
    """)
    xstore(p, ['s_mov_b64 exec, 1', flag_store(vFO), 's_mov_b64 exec, -1'])


def emit_misc_loads(p):
    p(f"""
    s_lshl_b32 s96, s{sU}, 8
    v_lshlrev_b32 v{vT1}, 2, v1
    buffer_load_dword v{vD0}, v{vT1}, s[{sDIS}:{sDIS + 3}], s96 offen
    s_lshl_b32 s96, s{sU}, 6
    s_add_u32 s96, s96, 16384
    v_lshlrev_b32 v{vT1}, 1, v{vBL}
    buffer_load_ushort v{vD2}, v{vT1}, s[{sDIS}:{sDIS + 3}], s96 offen
    s_mov_b32 s96, {WS_G + G_PAR}
    buffer_load_dword v2, v{vGA}, {WSR}, s96 offen
    buffer_load_dword v2, v{vGB}, {WSR}, s96 offen
    """)


def emit_imgpat(p):
    a0 = 82
    for r in range(4):
        p(f'v_lshlrev_b32 v{a0}, 14, v{PS + r}\nv_and_b32 v{a0}, 0xc0000000, v{a0}\nv_and_b32 v{PS + r}, 0xc000, v{PS + r}\nv_or_b32 v{PS + r}, v{PS + r}, v{a0}')


def emit_b2(p):
    E, R = 46, 62
    a0, a1 = 82, 83
    p.label('L_builder')
    p.vm = list(Cfg.vm_builder)
    p.lgkm = []
    if Cfg.xearly:
        p(f's_mov_b32 exec_hi, 0\n{poll_load(vG0, vP2)}\ns_mov_b64 exec, -1')
    p(f"""
    v_lshlrev_b32 v84, 4, v1
    s_lshl_b32 s98, s{sBU}, 15
    s_lshl_b32 s97, s{sW}, 12
    s_add_u32 s98, s98, s97
    s_add_u32 s98, s98, {WS_D}
    """)
    for i in range(4):
        p(f'v_mov_b32 v{76 + i}, 0x{DUMMY | DUMMY << 16:x}')
    p(f"""
    ds_write_b128 v70, v[76:79] offset:{IMG}
    ds_write_b128 v70, v[76:79] offset:{IMG + 7168}
    ; A counter t<128
    v_and_b32 v76, 1, v0
    v_bfe_u32 v77, v0, 3, 2
    v_lshl_add_u32 v{vBETA}, v76, 2, v77
    v_bfe_u32 v76, v0, 1, 2
    v_bfe_u32 v77, v0, 5, 2
    v_lshl_add_u32 v76, v76, 4, v77
    ; B counter 128<=t<160
    v_bfe_u32 v78, v0, 2, 1
    v_add_u32 v78, 8, v78
    v_and_b32 v79, 3, v0
    v_bfe_u32 v77, v0, 3, 2
    v_lshl_add_u32 v79, v79, 4, v77
    v_cmp_gt_u32 vcc, 0x80, v0
    v_cndmask_b32 v{vBETA}, v78, v{vBETA}, vcc
    v_cndmask_b32 v76, v79, v76, vcc
    v_lshlrev_b32 v76, 4, v76
    v_and_b32 v77, 1, v{vBETA}
    v_lshl_add_u32 v76, v77, 3, v76
    v_lshrrev_b32 v77, 1, v{vBETA}
    v_lshl_add_u32 v76, v77, 10, v76
    v_add_u32 v76, {IMG}, v76
    v_lshlrev_b32 v76, 16, v76
    v_mov_b32 v77, 0x8000
    v_cmp_gt_u32 vcc, 0xa0, v0
    v_cndmask_b32 v76, v77, v76, vcc
    v_cmp_gt_u32 vcc, 0xe0, v0
    v_cndmask_b32 v76, 0, v76, vcc
    v_cmp_gt_u32 vcc, 0xe4, v0
    s_and_saveexec_b64 s[92:93], vcc
    ds_write_b32 v71, v76 offset:{CNT2}
    s_mov_b64 exec, s[92:93]
    """)
    if not Cfg.xearly:
        emit_offsets(p)
    emit_sel(p)
    if Cfg.xearly:
        emit_g0(p)
    p('s_waitcnt lgkmcnt(0)\ns_barrier')
    p.label('L_segagain')
    for i in range(4):
        p(f'buffer_load_dwordx4 v[{E + 4 * i}:{E + 4 * i + 3}], v84, {WSR}, s98 offen offset:{1024 * i} sc1')
    p(f's_add_u32 s{sSPIN}, s{sSPIN}, 1\ns_cmp_gt_u32 s{sSPIN}, {SPIN_MAX}\ns_cbranch_scc1 L_end')
    for i in range(16):
        p(f'v_xor_b32 v{E + i}, v{E + i}, v{PS + (i & 3)}')
    p(f'v_or3_b32 v{a0}, v{E}, v{E + 1}, v{E + 2}')
    for i in range(3, 15, 2):
        p(f'v_or3_b32 v{a0}, v{a0}, v{E + i}, v{E + i + 1}')
    p(f"""
    v_or_b32 v{a0}, v{a0}, v{E + 15}
    v_and_b32 v{a0}, 0x3c000, v{a0}
    v_cmp_ne_u32 vcc, 0, v{a0}
    s_cbranch_vccnz L_segagain
    """)
    stamp(p, 'seg issued')
    p(f"""
    v_lshlrev_b32 v{vT2}, 2, v1
    v_add_u32 v{vT2}, 640, v{vT2}
    v_mov_b32 v{vT3}, 1
    s_lshl_b32 s96, s{sBU}, 9
    s_lshl_b32 s97, s{sBU}, 7
    s_add_u32 s97, s97, 32256
    """)
    for i in range(16):
        p(f"""
        v_lshrrev_b32 v{a0}, 16, v{E + i}
        v_subrev_u32 v{a1}, s96, v{a0}
        v_subrev_u32 v{a0}, s97, v{a0}
        v_min3_u32 v{R + i}, v{a0}, v{a1}, v{vT2}
        ds_add_rtn_u32 v{R + i}, v{R + i}, v{vT3} offset:{CNT2}
        """)
    stamp(p, 'b2 atomics')
    if not Cfg.xearly:
        emit_x_loads(p)
        emit_touch(p)
    a, r_ = lbl('ov'), lbl('ovr')
    p(f"""
    v_mov_b32 v{a1}, 0x{PAD - 1:x}
    v_cmp_eq_u32 vcc, v{a1}, v{E + 3}
    v_cmp_eq_u32 s[92:93], v{a1}, v{E + 7}
    v_cmp_eq_u32 s[94:95], v{a1}, v{E + 11}
    v_cmp_eq_u32 s[96:97], v{a1}, v{E + 15}
    s_or_b64 vcc, vcc, s[92:93]
    s_or_b64 s[94:95], s[94:95], s[96:97]
    s_or_b64 vcc, vcc, s[94:95]
    s_cbranch_vccnz {a}
    """)
    p.raw(r_ + ':')
    LATE.append((a, [f'v_mov_b32 v{a0}, 0x100000', f'v_mov_b32 v{a1}, 0', f'ds_or_b32 v{a1}, v{a0} offset:{UF}', 's_waitcnt lgkmcnt(0)'], r_))
    p(f's_movk_i32 s97, 5120\ns_mov_b32 s98, s{sBU}')
    for i in range(16):
        r = R + i
        p(f"""
        v_and_b32 v{a0}, 3, v{r}
        v_lshrrev_b32 v{a1}, 16, v{r}
        v_lshl_add_u32 v{a0}, v{a0}, 6, v{a1}
        v_bfe_u32 v{a1}, v{r}, 4, 12
        v_cmp_gt_u32 vcc, 3, v{a1}
        v_mad_u32_u24 v{a0}, v{a1}, s97, v{a0}
        v_bfe_u32 v{a1}, v{r}, 2, 2
        v_lshl_add_u32 v{r}, v{a1}, 1, v{a0}
        s_mov_b64 exec, vcc
        ds_write_b16 v{r}, v{E + i}
        s_mov_b64 exec, -1
        """)
    emit_imgpat(p)
    p(f"""
    v_lshlrev_b32 v{vT2}, 2, v0
    s_mul_i32 s96, s{sW}, 1920
    v_lshl_add_u32 v{vT3}, v1, 4, s96
    s_lshl_b32 s96, s98, 14
    s_add_u32 s96, s96, {WS_D2}
    s_waitcnt lgkmcnt(0)
    s_barrier
    """)
    stamp(p, 'b2 done')
    p(f"""
    ds_read_b32 v{vT2}, v{vT2} offset:{CNT2}
    ds_read_b128 v[{E}:{E + 3}], v{vT3} offset:{IMG}
    ds_read_b128 v[{E + 4}:{E + 7}], v{vT3} offset:{IMG + 1024}
    v_lshlrev_b32 v{vT1}, v{vBETA}, 1
    v_and_b32 v{vT2}, 0xffff, v{vT2}
    v_cmp_lt_u32 vcc, 24, v{vT2}
    v_cndmask_b32 v{a1}, 0, v{vT1}, vcc
    v_lshlrev_b32 v{vT1}, 10, v{vT1}
    v_cmp_lt_u32 vcc, 32, v{vT2}
    v_cndmask_b32 v{vT1}, 0, v{vT1}, vcc
    v_or_b32 v{a1}, v{a1}, v{vT1}
    v_mov_b32 v{vT1}, 0x100000
    v_cmp_lt_u32 vcc, 40, v{vT2}
    v_cndmask_b32 v{vT1}, 0, v{vT1}, vcc
    v_or_b32 v{a1}, v{a1}, v{vT1}
    v_cmp_gt_u32 vcc, 0xa0, v0
    v_cndmask_b32 v{a1}, 0, v{a1}, vcc
    v_mov_b32 v{vT1}, 0
    v_cmp_ne_u32 vcc, 0, v{a1}
    s_and_saveexec_b64 s[92:93], vcc
    ds_or_b32 v{vT1}, v{a1} offset:{UF}
    s_mov_b64 exec, s[92:93]
    s_waitcnt lgkmcnt(0)
    """)
    for i in range(8):
        p(f'v_xor_b32 v{E + i}, v{E + i}, v{PS + (i & 3)}')
    p(f"""
    buffer_store_dwordx4 v[{E}:{E + 3}], v{vT3}, {WSR}, s96 offen sc1
    s_mov_b32 exec_hi, 0xffffff
    buffer_store_dwordx4 v[{E + 4}:{E + 7}], v{vT3}, {WSR}, s96 offen offset:1024 sc1
    s_mov_b64 exec, -1
    s_barrier
    s_cmp_lg_u32 s{sW}, 0
    s_cbranch_scc1 L_nohdr
    ds_read_b32 v{vFV}, v{vT1} offset:{UF}
    s_lshl_b32 s96, s98, 7
    s_add_u32 s96, s96, {F_B2}
    v_mov_b32 v{vT2}, s96
    v_or_b32 v{vFV}, 0x80000000, v{vFV}
    s_mov_b64 exec, 1
    {flag_store(vT2)} sc1
    s_mov_b64 exec, -1
    """)
    p.vm.pop()
    p.label('L_nohdr')
    stamp(p, 'b2 flag')
    if not Cfg.xearly:
        emit_g0(p)
    emit_misc_loads(p)
    p.label('L_fill0')
    p.forget()
    poll(p, vG0, 32, 2)
    stamp(p, 'g0 seen')
    for x in fill_list():
        p(x)
    X = 46
    p(f's_lshl_b32 s96, s{sU}, 7\ns_add_u32 s96, s96, {F_B2}\nv_mov_b32 v{vT3}, s96')
    p(f"""
    v_and_b32 v{vD1}, 0xffff0000, v{vD0}
    v_lshlrev_b32 v{vD0}, 16, v{vD0}
    v_lshlrev_b32 v{vD2}, 16, v{vD2}
    s_bfe_u32 s96, s2, 0x30002
    s_lshl_b32 s96, s96, 12
    s_add_u32 s96, s96, {F_TOK}
    v_lshl_add_u32 v{vTP}, v1, 7, s96
    s_lshl_b32 s96, s{sJ}, 5
    s_add_u32 s96, s96, s{sSL}
    s_lshl_b32 s96, s96, 7
    s_add_u32 s96, s96, {F_TOK}
    v_mov_b32 v{vTF}, s96
    s_mov_b32 s{sK}, 1
    v_lshrrev_b32 v{vT0}, 3, v1
    v_lshlrev_b32 v{vT0}, 7, v{vT0}
    v_and_b32 v{vT1}, 7, v1
    v_lshl_add_u32 v{vT0}, v{vT1}, 3, v{vT0}
    s_lshl_b32 s96, s{sSL}, 10
    s_lshl_b32 s97, s{sW}, 8
    s_add_u32 s96, s96, s97
    v_add_u32 v{vG0}, s96, v{vT0}
    s_cmp_eq_u32 s{sW}, 7
    s_cselect_b64 vcc, -1, 0
    v_cndmask_b32 v{vG0}, v{vG0}, v{vTP}, vcc
    s_lshl_b32 s96, s{sU}, 10
    s_add_u32 s96, s96, {TBL}
    v_lshl_add_u32 v{vOWN}, v1, 4, s96
    s_lshl_b32 s96, s2, 8
    s_lshr_b32 s97, s96, 2
    s_add_u32 s97, s97, {65536 - 256}
    s_mov_b32 s92, 81920
    s_lshl_b32 s94, s{sW}, 6
    """)
    for i in range(7):
        p(f's_add_u32 s95, s{sJ}, {i + 1}\ns_and_b32 s95, s95, 7\ns_lshl_b32 s{sOFF + i}, s95, 10')
    for v, add in ((vK0, 0), (vK1, 512)):
        p(f"""
        v_add_u32 v{vT0}, s94, v1
        v_add_u32 v{vT0}, {add}, v{vT0}
        v_mul_u32_u24 v{vT1}, 3277, v{vT0}
        v_lshrrev_b32 v{vT1}, 16, v{vT1}
        v_mul_u32_u24 v{vT2}, 20, v{vT1}
        v_sub_u32 v{vT2}, v{vT0}, v{vT2}
        v_mov_b32 v{vT0}, s97
        v_mov_b32 v{v}, s96
        v_cmp_gt_u32 vcc, 16, v{vT2}
        v_mul_lo_u32 v{vT1}, v{vT1}, s92
        v_cndmask_b32 v{vT0}, v{vT0}, v{v}, vcc
        v_lshl_add_u32 v{vT0}, v{vT2}, 4, v{vT0}
        v_add_u32 v{v}, v{vT1}, v{vT0}
        """)
    p('s_mov_b32 s92, 0x200000\ns_mov_b32 s93, 0')
    poll(p, vT3, 1, '0x80000000', bound='s[92:93]')
    p(f"""
    v_readfirstlane_b32 s{sQ}, v{vPL}
    v_lshlrev_b32 v{vT1}, 4, v1
    s_mov_b32 s93, {TBL}
    """)
    if Cfg.force_slow:
        p(f's_and_b32 s96, s{sU}, {Cfg.force_slow - 1}\ns_cselect_b32 s96, 0, 0x100000\ns_or_b32 s{sQ}, s{sQ}, s96')
    stamp(p, 'hdr seen')
    p.label('L_imp')
    p(f's_lshl_b32 s96, s{sU}, 14\ns_add_u32 s96, s96, {WS_D2}')
    reg = lambda c: X + 4 * c if c < 10 else 200 + 4 * (c - 10)

    def chunk(c):
        if c and c % 4 == 0:
            p('s_add_u32 s96, s96, 4096')
        p(f'buffer_load_dwordx4 v[{reg(c)}:{reg(c) + 3}], v{vT1}, {WSR}, s96 offen offset:{1024 * (c % 4)} sc1')

    def unpack(c):
        r = reg(c)
        for i in range(4):
            p(f'v_xor_b32 v{r + i}, v{r + i}, v{PS + i}')
        p(f'v_or3_b32 v{vT2}, v{vT2}, v{r}, v{r + 1}\nv_or3_b32 v{vT2}, v{vT2}, v{r + 2}, v{r + 3}')
        for i in range(4):
            b, q = 2 * (c % 5) + (i >> 1), 4 * (c // 5) + 2 * (i & 1)
            if q < 10:
                p(f'v_mad_u32_u16 v{ADDR(b, q)}, v{r + i}, 8, s93')
                p(f'v_mad_u32_u16 v{ADDR(b, q + 1)}, v{r + i}, 8, s93 op_sel:[1,0,0,0]')
    for c in range(10):
        chunk(c)
    p(f'v_mov_b32 v{vT2}, 0')
    a = lbl('np4')
    p(f's_and_b32 s97, s{sQ}, 0xffc00\ns_cbranch_scc0 {a}')
    vm = list(p.vm)
    for c in range(10, 15):
        chunk(c)
    for c in range(10, 15):
        unpack(c)
    p.vm = vm
    p.label(a)
    for c in range(10):
        unpack(c)
    p(f"""
    v_and_b32 v{vT2}, 0xc000c000, v{vT2}
    v_cmp_ne_u32 vcc, 0, v{vT2}
    s_cbranch_vccnz L_impagain
    """)
    LATE.append(('L_impagain', [f's_add_u32 s{sSPIN}, s{sSPIN}, 1', f's_cmp_gt_u32 s{sSPIN}, {SPIN_MAX}', 's_cbranch_scc1 L_end'], 'L_imp'))
    p(f"""
    s_barrier
    v_and_b32 v{vT0}, 7, v1
    v_lshrrev_b32 v{vT1}, 3, v1
    v_lshlrev_b32 v{vT2}, 8, v{vT0}
    v_lshl_add_u32 v{vT2}, v{vT1}, 4, v{vT2}
    s_lshl_b32 s96, s2, 13
    s_lshr_b32 s97, s{sW}, 1
    s_lshl_b32 s92, s97, 11
    s_and_b32 s94, s{sW}, 1
    s_lshl_b32 s95, s94, 7
    s_add_u32 s92, s92, s95
    s_add_u32 s92, s92, s96
    buffer_load_dwordx4 v[46:49], v{vT2}, s[{sX_}:{sX_ + 3}], s92 offen
    s_lshr_b32 s96, s96, 2
    s_add_u32 s96, s96, s95
    s_add_u32 s96, s96, {8192 * 256}
    buffer_load_dwordx4 v[50:53], v{vT2}, s[{sX_}:{sX_ + 3}], s96 offen
    v_mul_u32_u24 v{vT1}, 640, v{vT1}
    v_lshl_add_u32 v{vT1}, v{vT0}, 3, v{vT1}
    s_mul_i32 s94, s94, 5120
    v_add_u32 v55, s94, v{vT1}
    s_lshl_b32 s97, s97, 6
    v_add_u32 v54, s97, v55
    s_or_b32 s96, s2, s{sW}
    s_cbranch_scc1 L_keeptag
    v_mov_b32 v{vT0}, {WS_TAG}
    s_mov_b64 exec, 1
    buffer_store_dword v{vNON}, v{vT0}, {WSR}, 0 offen sc1
    s_mov_b64 exec, -1
    """)
    p.label('L_keeptag')
    if Cfg.dump_tbl:
        p(f'v_lshlrev_b32 v60, 4, v0\nv_add_u32 v61, {TBL}, v60\ns_mul_i32 s96, s2, 81920\ns_add_u32 s96, s96, 0x4000000')
        for i in range(10):
            p(f'ds_read_b128 v[64:67], v61 offset:{8192 * i if i < 8 else 0}' if i < 8 else f'v_add_u32 v62, {8192 * i}, v61\nds_read_b128 v[64:67], v62')
            p(f'buffer_store_dwordx4 v[64:67], v60, {WSR}, s96 offen\ns_add_u32 s96, s96, 8192\ns_waitcnt vmcnt(0)')
    stamp(p, 'ready')


def emit_reads(p, b):
    rd = lambda q: f'ds_read_b64_tr_b16 v[{DATA(b, q)}:{DATA(b, q) + 1}], v{ADDR(b, q)}'
    for q in range(6):
        p(rd(q))
    a, r = lbl('r'), lbl('rr')
    p(f's_bitcmp1_b32 s{sQ}, {b}\ns_cbranch_scc1 {a}')
    p.raw(r + ':')
    LATE.append((a, [rd(6), rd(7), f's_bitcmp1_b32 s{sQ}, {10 + b}', f's_cbranch_scc0 {r}', rd(8), rd(9)], r))


def emit_mfmas(p, b):
    D = (D0, D1, D2)[b >> 2]
    sel = SEL + 4 * (b & 3)
    for i in range(3):
        p(mf32(D, DATA(b, 2 * i), sel, None if (b & 3) == 0 and i == 0 else D))
    a, r = lbl('m'), lbl('mr')
    p(f's_bitcmp1_b32 s{sQ}, {b}\ns_cbranch_scc1 {a}')
    p.raw(r + ':')
    g = Ins(mf32(D, DATA(b, 6), sel, D))
    g.ghost = True
    p.hist.append(g)
    LATE.append((a, [mf32(D, DATA(b, 6), sel, D), f's_bitcmp1_b32 s{sQ}, {10 + b}', f's_cbranch_scc0 {r}', mf32(D, DATA(b, 8), sel, D)], r))


def stage_plane(p, spl):
    a = lbl('sp')
    p(f'''
    s_mul_i32 s92, s{spl}, {TOK_PL}
    s_add_u32 s92, s92, {WS_TOK}
    s_mul_i32 s93, s{spl}, {L_PL}
    s_lshl_b32 s94, s{sW}, 10
    s_add_u32 s93, s93, s94
    s_mov_b32 m0, s93
    s_cmp_ge_u32 s{sW}, 2
    buffer_load_dwordx4 v{vK0}, {WSR}, s92 offen sc1 lds
    s_cbranch_scc1 {a}
    s_add_u32 m0, s93, 8192
    s_nop 0
    buffer_load_dwordx4 v{vK1}, {WSR}, s92 offen sc1 lds
    ''')
    p.vm.pop()
    p.raw(a + ':')


def emit_slow_unit(p):
    n0, n1, n2, ed, es, m0_, m1_ = 200, 201, 202, 203, 204, 205, 206
    X = 208
    p.label('L_slow')
    p.forget()
    for i in range(12):
        p(f'v_mov_b32 v{D0 + i}, 0')
    p(f'''
    s_lshl_b32 s96, s{sU}, 7
    v_lshl_add_u32 v{n0}, v1, 1, s96
    v_add_u32 v{n1}, 1, v{n0}
    s_lshl_b32 s96, s{sU}, 5
    s_add_u32 s96, s96, 8192
    v_add_u32 v{n2}, s96, v{vBL}
    v_lshlrev_b32 v{X + 8}, 2, v1
    s_mov_b32 s92, 0
    s_add_u32 s94, s{sU}, 256
    ''')
    p.label('L_slow_e')
    p(f'''
    buffer_load_dword v{ed}, v{X + 8}, s[{sDST}:{sDST + 3}], s92 offen
    buffer_load_dword v{es}, v{X + 8}, s[{sSRC}:{sSRC + 3}], s92 offen
    s_waitcnt vmcnt(0)
    v_lshrrev_b32 v{m0_}, 7, v{ed}
    v_lshrrev_b32 v{m1_}, 5, v{ed}
    v_cmp_eq_u32 s[96:97], s{sU}, v{m0_}
    v_cmp_eq_u32 vcc, s94, v{m1_}
    s_or_b64 s[96:97], s[96:97], vcc
    ''')
    p.label('L_slow_b')
    p(f'''
    s_cmp_eq_u64 s[96:97], 0
    s_cbranch_scc1 L_slow_n
    s_ff1_i32_b64 s95, s[96:97]
    s_bitset0_b64 s[96:97], s95
    v_readlane_b32 s98, v{ed}, s95
    v_readlane_b32 s99, v{es}, s95
    s_lshl_b32 s99, s99, 3
    s_add_u32 s99, s99, {TBL}
    v_mov_b32 v{X + 6}, s99
    ds_read_b64 v[{X + 4}:{X + 5}], v{X + 6}
    s_waitcnt lgkmcnt(0)
    v_lshlrev_b32 v{X}, 16, v{X + 4}
    v_and_b32 v{X + 1}, 0xffff0000, v{X + 4}
    v_lshlrev_b32 v{X + 2}, 16, v{X + 5}
    v_and_b32 v{X + 3}, 0xffff0000, v{X + 5}
    ''')
    for D, n in ((D0, n0), (D1, n1), (D2, n2)):
        p(f'v_cmp_eq_u32 vcc, s98, v{n}\ns_mov_b64 exec, vcc')
        for i in range(4):
            p(f'v_add_f32 v{D + i}, v{D + i}, v{X + i}')
        p('s_mov_b64 exec, -1')
    p('s_branch L_slow_b')
    p.label('L_slow_n')
    p('s_add_u32 s92, s92, 256\ns_cmp_lt_u32 s92, 640000\ns_cbranch_scc1 L_slow_e')
    for x in finish(D0, vD0, HA, GA) + finish(D1, vD1, HA + 2, GA + 2):
        p(x)
    xstore(p, [f'buffer_store_dwordx4 v[{GA}:{GA + 3}], v{vGA}, {WSR}, s{sGO} offen'])
    emit_flag_a(p)
    p('s_branch L_gath_done')


def emit_flag_a(p):
    p(f'v_mov_b32 v{vFV}, s{sFA}\ns_waitcnt vmcnt(0)')
    xstore(p, ['s_mov_b64 exec, 1', flag_store(vFO), 's_mov_b64 exec, -1'])


def emit_hops(p):
    p(f's_branch L_hop1')
    p.label('L_hop')
    p(f'''
    s_sub_u32 s95, s{sK}, 2
    v_mov_b32 v{vFV}, s95
    s_cmp_lg_u32 s{sW}, 0
    s_cbranch_scc1 L_notf
    s_mov_b64 exec, 1
    {flag_store(vTF)} sc1
    s_mov_b64 exec, -1
    L_notf:
    buffer_store_dwordx4 v[{HA}:{HA + 3}], v{vGA}, {WSR}, s{sTO} offen sc1
    buffer_store_dwordx2 v[{HB}:{HB + 1}], v{vGB}, {WSR}, s{sTO} offen sc1
    s_sub_u32 s95, s{sK}, 3
    s_cmp_lt_u32 s{sK}, 4
    s_cbranch_scc1 L_hop1
    s_lshl_b32 s92, s{sR}, 3
    s_add_u32 s92, s92, s{sW}
    s_mul_i32 s92, s92, 288
    s_add_u32 s92, s92, {WS_WF}
    v_lshlrev_b32 v{vT0}, 5, v1
    s_mov_b64 exec, 0x1ff
    buffer_load_dword v2, v{vT0}, {WSR}, s92 offen
    s_mov_b64 exec, -1
    ''')
    stage_plane(p, 95)
    p.label('L_hop1')
    p.auto = False
    p(f'''
    s_xor_b32 s{sGO}, s{sGO}, {WS_G ^ (WS_G + G_PAR)}
    s_add_u32 s{sTO}, s{sTO}, {TOK_PL}
    s_lshl_b32 s{sFA}, s{sK}, 1
    s_add_u32 s{sFA}, s{sFA}, 1
    s_add_u32 s{sFB}, s{sFA}, 1
    s_bitcmp1_b32 s{sQ}, 20
    s_cbranch_scc1 L_slow
    ''')
    if Cfg.prio_until:
        p(f's_cmp_lt_u32 s{sW}, 4\ns_cbranch_scc1 L_np\ns_setprio 1')
        p.raw('L_np:')
    emit_reads(p, 0)
    for b in range(10):
        if b < 9:
            emit_reads(p, b + 1)
        p(f's_waitcnt lgkmcnt({6 if b < 9 else 0})')
        emit_mfmas(p, b)
        if b == 4:
            for x in finish(D0, vD0, HA, GA):
                p(x)
        if Cfg.prio_until and b == Cfg.prio_until:
            p('s_setprio 0')
        if b == 7:
            for x in finish(D1, vD1, HA + 2, GA + 2):
                p(x)
            xstore(p, [f'buffer_store_dwordx4 v[{GA}:{GA + 3}], v{vGA}, {WSR}, s{sGO} offen'])
        if b == 8:
            emit_flag_a(p)
    p.label('L_gath_done', keep=True)
    p.forget()
    p(f'''
    s_cmp_eq_u32 s{sK}, 7
    s_cbranch_scc1 L_hops_done
    s_mov_b64 exec, 0xff
    {poll_load(vFP, vPL)}
    s_mov_b64 exec, -1
    ''')
    for x in finish(D2, vD2, HB, GB):
        p(x)
    xstore(p, [f'buffer_store_dwordx2 v[{GB}:{GB + 1}], v{vGB}, {WSR}, s{sGO} offen'])
    stamp(p, 'gath', True)
    p('s_barrier')
    stamp(p, 'bar1', True)
    p(f'v_mov_b32 v{vFV}, s{sFB}\ns_waitcnt vmcnt(0)')
    xstore(p, ['s_mov_b64 exec, 1', flag_store(vFO), 's_mov_b64 exec, -1'])
    poll(p, vFP, 0xff, f's{sFA}', first_issued=True)
    stamp(p, 'pollA', True)

    def dA(i):
        p(f's_add_u32 m0, s{sLA}, s{sOFF + i}\ns_add_u32 s97, s{sGO}, s{sOFF + i}')
        p(f'buffer_load_dwordx4 v{vDA}, {WSR}, s97 offen sc1 lds')
    for i in range(Cfg.pollb_at):
        dA(i)
    p(f"""
    s_cmp_lt_u32 s{sW}, 4
    s_cselect_b32 exec_lo, 0xffff, 0
    s_cmp_eq_u32 s{sW}, 7
    s_cselect_b32 exec_lo, -1, exec_lo
    s_mov_b32 exec_hi, 0
    {poll_load(vG0, vPL)}
    s_mov_b64 exec, -1
    """)
    for i in range(Cfg.pollb_at, 7):
        dA(i)
    p(f'ds_write_b128 v{vOWN}, v[{GA}:{GA + 3}]')
    a, r = lbl('t0'), lbl('t0r')
    p(f's_cmp_eq_u32 s{sK}, 1\ns_cbranch_scc1 {a}')
    p.raw(r + ':')
    LATE.append((a, ['ds_write_b64 v54, v[46:47]', 'ds_write_b64 v54, v[48:49] offset:320',
                     'ds_write_b64 v55, v[50:51] offset:256', 'ds_write_b64 v55, v[52:53] offset:576'], r))
    p(f's_cmp_ge_u32 s{sW}, 4\ns_cbranch_scc1 L_hiw\ns_waitcnt vmcnt({7 - Cfg.pollb_at})')
    poll(p, vG0, 0xffff, f's{sFB}', first_issued=True)
    stamp(p, 'pollB', True)
    p(f's_mov_b32 m0, s{sLB}')
    for j in range(4):
        p(f'buffer_load_dwordx4 v{vDB}, {WSR}, s{sGO} offen offset:{1024 * j} sc1 lds')
    q = Prog()
    q(f's_cmp_lg_u32 s{sW}, 7\ns_cbranch_scc1 L_nob\ns_cmp_lt_u32 s{sK}, 3\ns_cbranch_scc1 L_nob\ns_sub_u32 s95, s{sK}, 2\ns_waitcnt vmcnt(0)')
    poll(q, vG0, 32, 's95', first_issued=True)
    LATE.append(('L_hiw', [l.strip() for l in q.L], 'L_nob'))
    p.raw('L_nob:')
    p('s_waitcnt lgkmcnt(0)')
    p('s_waitcnt vmcnt(0)\ns_barrier')
    stamp(p, 'bar2', True)
    p(f's_add_u32 s{sK}, s{sK}, 1\ns_branch L_hop')
    p.auto = True
    emit_slow_unit(p)
    emit_prep_blocks(p)
    emit_late(p)


def emit_handoff(p):
    p.label('L_hops_done')
    p.forget()
    p.auto = False
    p(f'''
    v_and_b32 v{vT3}, 7, v1
    v_lshlrev_b32 v{vT3}, 9, v{vT3}
    v_lshrrev_b32 v{vT2}, 3, v1
    v_lshl_add_u32 v{vT3}, v{vT2}, 12, v{vT3}
    v_add_u32 v{vT3}, {F_TOK + 4096}, v{vT3}
    s_mov_b64 exec, 0x1ffff
    {poll_load(vT3, vPL)}
    s_mov_b64 exec, -1
    ''')
    for x in finish(D2, vD2, HB, GB)[:6]:
        p(x)
    p(f'''
    buffer_store_dwordx4 v[{HA}:{HA + 3}], v{vGA}, {WSR}, s{sTO} offen sc1
    buffer_store_dwordx2 v[{HB}:{HB + 1}], v{vGB}, {WSR}, s{sTO} offen sc1
    v_mov_b32 v{vFV}, 6
    ''')
    stamp(p, 'gath7')
    p(f'''
    s_barrier
    s_cmp_lg_u32 s{sW}, 0
    s_cbranch_scc1 L_nt6
    s_mov_b64 exec, 1
    {flag_store(vTF)} sc1
    s_mov_b64 exec, -1
    ''')
    p.raw('L_nt6:')
    p('s_waitcnt vmcnt(2)')
    poll(p, vT3, 0x1ffff, 1, first_issued=True)
    p(f'''
    v_lshlrev_b32 v{vT2}, 4, v1
    s_lshl_b32 s92, s{sW}, 13
    s_add_u32 s93, s92, {WS_WF}
    s_add_u32 s92, s92, {L_W}
    s_mov_b32 m0, s92
    s_add_u32 s94, s93, 4096
    ''')
    for i in range(4):
        p(f'buffer_load_dwordx4 v{vT2}, {WSR}, s93 offen offset:{1024 * i} sc1 lds')
    p('s_add_u32 m0, s92, 4096')
    for i in range(4):
        p(f'buffer_load_dwordx4 v{vT2}, {WSR}, s94 offen offset:{1024 * i} sc1 lds')
    p(f'''
    s_and_b32 s92, s{sW}, 3
    s_lshl_b32 s92, s92, 10
    s_add_u32 s93, s92, {WS_WF + 65536}
    s_add_u32 m0, s92, {L_LIN}
    v_mov_b32 v{vT1}, {WS_WF + 69632}
    v_mov_b32 v{vFV}, 7
    buffer_load_dwordx4 v{vT2}, {WSR}, s93 offen sc1 lds
    buffer_load_dword v{vSWR}, v{vT1}, {WSR}, 0 offen sc1
    s_waitcnt vmcnt(10)
    s_barrier
    s_cmp_lg_u32 s{sW}, 0
    s_cbranch_scc1 L_nt7
    s_mov_b64 exec, 1
    {flag_store(vTF)} sc1
    s_mov_b64 exec, -1
    ''')
    p.raw('L_nt7:')
    p('s_lshr_b32 s78, s2, 2\ns_and_b32 s79, s2, 3')
    stamp(p, 'tok7 flag')
    p.auto = True
    emit_tf_setup(p, sW, 78, 79, 92)
    poll(p, vTP, 32, 6, res=vP2)
    p('s_mov_b32 s95, 5')
    stage_plane(p, 95)
    p('s_mov_b32 s95, 6')
    stage_plane(p, 95)
    poll(p, vTP, 32, 7, first_issued=True, res=vP2)
    stamp(p, 'tok7 seen')
    p('s_mov_b32 s95, 7')
    stage_plane(p, 95)
    if Cfg.st:
        stamp(p, 'x')
        p(f'''
        v_writelane_b32 v{vST}, s{sQ}, 22
        v_writelane_b32 v{vST}, s{sSLOW}, 23
        s_lshl_b32 s80, s2, 3
        s_add_u32 s80, s80, s{sW}
        s_lshl_b32 s80, s80, 8
        s_add_u32 s80, s80, {WS_OVF}
        v_lshl_add_u32 v{vT0}, v1, 2, s80
        buffer_store_dword v{vST}, v{vT0}, {WSR}, 0 offen
        ''')
    p('s_waitcnt vmcnt(0) lgkmcnt(0)\ns_barrier')
    if Cfg.st:
        p('s_memtime s[82:83]\ns_waitcnt lgkmcnt(0)')
    p(f's_cmp_ge_u32 s{sW}, 4\ns_cbranch_scc1 L_tf_two')
    emit_tf(p, 3, sOUT)
    p('s_branch L_tf_fin')
    emit_late(p)
    p.label('L_tf_two')
    p.forget()
    emit_tf(p, 2, sOUT)
    p.label('L_tf_fin')
    if Cfg.st:
        p(f'''
        s_memtime s[84:85]
        s_memrealtime s[86:87]
        s_waitcnt lgkmcnt(0)
        v_mov_b32 v2, s80
        v_mov_b32 v4, s82
        v_mov_b32 v5, s84
        v_mov_b32 v6, s86
        s_mov_b64 exec, 1
        buffer_store_dwordx2 v[4:5], v2, {WSR}, 0 offen offset:248
        buffer_store_dword v6, v2, {WSR}, 0 offen offset:80
        ''')


def gen(st=False, **kw):
    Cfg.st = st
    for k, v in kw.items():
        setattr(Cfg, k, v)
    STAMPS.clear()
    p = Prog()
    p.raw('; @launch grid=(256,1,1) block=(512,1,1) lds=163840')
    p.raw('.amdgcn_target "amdgcn-amd-amdhsa--gfx950"\n.text')
    p.kstart(KN)
    p.junk = {('v', 2), ('v', 3)}
    emit_prologue(p)
    emit_g1(p)
    emit_b2(p)
    emit_hops(p)
    p.junk = set()
    emit_handoff(p)
    p.label('L_end')
    p('s_endpgm')
    p.raw('L_code_end:')
    p.raw('.section .rodata,"a"\n.p2align 6')
    p.kdesc(KN, vgpr=256)
    if st:
        json.dump(STAMPS, open(kw.get('names', 'stamps.json'), 'w'))
    print('nops', p.nnop, 'lines', len(p.L))
    return p.text()


if __name__ == '__main__':
    open('g_st.s', 'w').write(gen(True, names='g_st.s.json'))
    open('g_st1.s', 'w').write(gen(True, hopst=('bar2',), names='g_st1.s.json'))
    open('g_st2.s', 'w').write(gen(True, hopst=('bar2',), xearly=1, names='g_st2.s.json'))
    open('g_slow8.s', 'w').write(gen(False, xearly=0, force_slow=8))
    open('g.s', 'w').write(gen(False, force_slow=0))
```

```python
from prog import *
from parts_tf import *
import fused3 as F
from fused3 import *
import json
def gen(kind, fl):
    F.STAMPS.clear(); Cfg.st=True
    p = Prog()
    p.raw('; @launch grid=(256,1,1) block=(512,1,1) lds=163840')
    p.raw('.amdgcn_target "amdgcn-amd-amdhsa--gfx950"\n.text')
    p.kstart(KN)
    p.auto=False
    p('s_cmp_ge_u32 s2, 256\ns_cbranch_scc1 L_end')
    p(f's_memrealtime s[90:91]\ns_waitcnt lgkmcnt(0)\nv_writelane_b32 v{vST}, s90, 21')
    stamp(p,'entry')
    p(f'''
    s_load_dwordx8 s[32:39], s[0:1], 0
    s_load_dwordx4 s[92:95], s[0:1], 80
    v_readfirstlane_b32 s{sW}, v0
    v_and_b32 v1, 63, v0
    s_lshr_b32 s{sW}, s{sW}, 6
    s_and_b32 s{sXC}, s2, 7
    s_lshr_b32 s{sR}, s2, 3
    s_and_b32 s{sJ}, s{sR}, 7
    s_lshl_b32 s{sU}, s{sW}, 3
    s_add_u32 s{sU}, s{sU}, s{sJ}
    s_waitcnt lgkmcnt(0)''')
    srd(p, sWS, 94, 0x10000000); srd(p, sX_, 32, 2560000)
    p(f'v_mov_b32 v40, 0\nbuffer_load_dword v2, v40, s[{sX_}:{sX_+3}], 0 offen\nbuffer_load_dword v2, v40, {WSR}, 0 offen\ns_waitcnt vmcnt(0)')
    stamp(p,'tlb')
    lds = ' lds' if 'lds' in fl else ''
    f2 = fl.replace('lds','').strip()
    d = lambda r: '' if lds else f'v[{r}:{r+3}], '
    p(f's_lshl_b32 s98, s{sW}, 12\ns_mov_b32 m0, s98')
    if kind=='x32':
        p(f'''
        s_lshr_b32 s92, s{sR}, 3
        s_lshl_b32 s92, s92, 5
        s_lshl_b32 s93, s{sU}, 7
        s_add_u32 s92, s92, s93
        s_lshr_b32 s93, s92, 2
        s_add_u32 s93, s93, 8192
        v_lshrrev_b32 v110, 1, v1
        v_and_b32 v111, 1, v1
        v_lshlrev_b32 v108, 8, v110
        v_lshl_add_u32 v108, v111, 4, v108
        s_lshl_b32 s96, s{sXC}, 5
        s_lshl_b32 s97, s92, 8
        s_add_u32 s97, s97, s96
        buffer_load_dwordx4 {d(100)}v108, s[{sX_}:{sX_ + 3}], s97 offen {f2}{lds}
        s_lshl_b32 s97, s93, 8
        s_add_u32 s97, s97, s96
        s_mov_b64 exec, 0xffff
        buffer_load_dwordx4 {d(104)}v108, s[{sX_}:{sX_ + 3}], s97 offen {f2}{lds}
        s_mov_b64 exec, -1''')
    if kind=='xrow':
        p(f'''s_mul_i32 s96, s2, 10240
        v_lshlrev_b32 v40, 4, v0
        buffer_load_dwordx4 {d(100)}v40, s[{sX_}:{sX_+3}], s96 offen {f2}{lds}
        s_add_u32 s96, s96, 8192
        s_mov_b64 exec, 0xffff
        buffer_load_dwordx4 {d(104)}v40, s[{sX_}:{sX_+3}], s96 offen {f2}{lds}
        s_mov_b64 exec, -1''')
    if kind=='ws32k':
        p(f'''s_lshl_b32 s96, s2, 15
        s_add_u32 s96, s96, {WS_D}
        s_lshl_b32 s97, s{sW}, 12
        s_add_u32 s96, s96, s97
        v_lshlrev_b32 v40, 4, v1''')
        for i in range(4): p(f'buffer_load_dwordx4 {d(100+4*i)}v40, {WSR}, s96 offen offset:{1024*i} {f2}{lds}')
    if kind=='touch32k':
        p(f'''s_lshl_b32 s96, s2, 15
        s_add_u32 s96, s96, {WS_D}
        s_lshl_b32 s97, s{sW}, 12
        s_add_u32 s96, s96, s97
        v_lshlrev_b32 v40, 7, v1
        s_mov_b32 exec_hi, 0
        buffer_load_dword v100, v40, {WSR}, s96 offen {f2}
        s_mov_b64 exec, -1''')
    stamp(p,'issued')
    p('s_waitcnt vmcnt(0)')
    stamp(p,'done')
    p(f'''
    s_memrealtime s[90:91]
    s_waitcnt lgkmcnt(0)
    v_writelane_b32 v{vST}, s90, 20
    s_lshl_b32 s80, s2, 3
    s_add_u32 s80, s80, s{sW}
    s_lshl_b32 s80, s80, 8
    s_add_u32 s80, s80, {WS_OVF}
    v_lshl_add_u32 v{vT0}, v1, 2, s80
    buffer_store_dword v{vST}, v{vT0}, {WSR}, 0 offen''')
    p.label('L_end'); p('s_endpgm')
    p.raw('.section .rodata,"a"\n.p2align 6'); p.kdesc(KN)
    return p.text(), list(F.STAMPS)
names={}
for k,fl in [('x32',''),('x32','sc1'),('x32','nt'),('x32','lds'),('xrow',''),('ws32k',''),('ws32k','lds'),('ws32k','sc1'),('touch32k','')]:
    n=f'mb9_{k}_{fl}.s'; t,s=gen(k,fl); open(n,'w').write(t); names[n]=s
json.dump(names,open('mb5.json','w')); print(' '.join(names))
```

```python
import sys, json
from prog import *
from parts_tf import *

F_HOP = 0x0000
F_TOK = 0xC0000
F_G0 = 0x80000
F_B2 = 0x20000
WS_D2 = WS_D + 0x200000
WS_X7 = WS_TOK + 8 * TOK_PL
WS_TAG = 0x3ff80
PAD = 0xFFFC3FFF

TBL = 81920
CNT1, CNT2, UF, BUCK, IMG, PSUM = 10496, 10752, 11648, 12288, 20480, 72192
DUMMY = 10239
Z0, Z1, Z2 = 56, 60, 64

sWS, sSRC, sDST, sX_, sDIS, sDBG, sOUT = 4, 8, 12, 16, 20, 24, 28
sPA, sPB, sPR = 32, 36, 24
sW, sXC, sR, sJ, sSL, sU, sSLOW, sQ, sK, sGO, sTO, sFA, sFB, sSPIN = 44, 45, 46, 47, 48, 49, 50, 51, 52, 53, 54, 55, 56, 57
sTAG = 43
sKA = 88
sFC = 42
sBU = 76
sTASK = 41
sNEG = 58
sMK = 60
sLA, sLB = 100, 101

D0, D1, D2 = 4, 8, 12
GA, GB, HA, HB = 16, 20, 24, 28
vD0, vD1, vD2 = 30, 31, 32
vGA, vGB, vDA, vDB, vFP, vFO, vG0, vT0, vT1, vT2, vT3 = 33, 34, 35, 36, 37, 38, 39, 40, 41, 42, 43
vFV, vNON = 22, 23
vPL = 94
vBETA, vUB = 44, 45
vTP, vTF = 44, 45
XA, XB, XD = 100, 104, 108
sOFF = 80
vBL, vK0, vK1 = 96, 97, 98
vOWN = 3
vP2 = 92
vST = 99
PS = 88
ADDR = lambda b, q: 100 + 10 * b + q
DATA = lambda b, q: 200 + 20 * (b & 1) + 2 * q
SEL = 240
SPIN_MAX = 1 << 22
WSR = f's[{sWS}:{sWS + 3}]'


class Cfg:
    st = False
    prio_until = 5
    force_slow = 0
    dump_tbl = 0
    pollb_at = 3
    pollc_at = 4
    x7_at = 10
    lag = 3
    nap = 4
    tpoll_at = 3
    gflag = ''
    early_a = 0
    hopst = ('gath', 'bar1', 'pollA', 'pollB', 'bar2')


def srd(p, d, lo, size):
    p(f's_mov_b32 s{d}, s{lo}\ns_mov_b32 s{d + 1}, s{lo + 1}\ns_mov_b32 s{d + 2}, {size}\ns_mov_b32 s{d + 3}, 0x20000')


class Uniq:
    n = 0


def lbl(x):
    Uniq.n += 1
    return f'L_{x}_{Uniq.n}'


LATE = []


def xstore(p, ins):
    a, b = lbl('xs'), lbl('xe')
    p(f's_cmp_lg_u32 s{sSLOW}, 0\ns_cbranch_scc1 {a}')
    p.opt_begin()
    for i in ins:
        p(i + (' ' + Cfg.gflag if i.startswith('buffer_store') else ''))
    p.opt_end(b)
    LATE.append((a, ['s_nop 4'] + [i + (' sc1' if i.startswith('buffer_store') else '') for i in ins] + ['s_nop 1'], b))


def emit_late(p):
    for a, ins, b in LATE:
        p.raw(a + ':')
        for i in ins:
            p.raw(i)
        p.raw(f'    s_branch {b}')
    LATE.clear()


def poll_load(vaddr, res, so='0'):
    return f'buffer_load_dwordx2 v[{res}:{res + 1}], v{vaddr}, {WSR}, {so} offen sc1'


def poll(p, vaddr, ex, need, first_issued=False, res=None, bound='64', nap=0, so='0'):
    res = vPL if res is None else res
    a, b = lbl('pl'), lbl('pd')
    setex = {32: 's_mov_b32 exec_hi, 0', 40: 's_mov_b32 exec_hi, 0xff'}.get(ex, f's_mov_b64 exec, {ex}')
    cond = [f'v_lshl_add_u64 v[{vT0}:{vT1}], v[{res}:{res + 1}], 0, s[{sNEG}:{sNEG + 1}]',
            f'v_cmp_le_u64 vcc, {bound}, v[{vT0}:{vT1}]']
    body = [poll_load(vaddr, res, so),
            f's_add_u32 s{sSPIN}, s{sSPIN}, 1',
            f's_cmp_gt_u32 s{sSPIN}, {SPIN_MAX}',
            's_cbranch_scc1 L_end',
            's_waitcnt vmcnt(0)'] + cond + [f's_cbranch_vccnz {a}']
    if nap:
        c_ = lbl('pn')
        body = body[:-1] + [f's_cbranch_vccz {c_}', f's_sleep {nap}', f's_branch {a}', c_ + ':']
    p(f's_sub_u32 s{sNEG}, 0, {need}')
    p(setex)
    if first_issued:
        for c in cond:
            p(c)
        p(f's_cbranch_vccnz {a}')
        p.raw(b + ':')
        LATE.append((a, body, b))
    else:
        p.label(a)
        for c in body:
            p(c)
    p('s_mov_b64 exec, -1')


def flag_store(vaddr, so='0'):
    return f'buffer_store_dwordx2 v[{vFV}:{vNON}], v{vaddr}, {WSR}, {so} offen'


def finish(D, dis, H, G):
    o = [f'v_mul_f32 v{D + i}, v{D + i}, v{dis}' for i in range(4)]
    o += [cvt(H, D), cvt(H + 1, D + 2)]
    return o + scale_g(D, dis, H, G)


def scale_g(D, dis, H, G):
    o = [f'v_lshlrev_b32 v{D}, 16, v{H}', f'v_and_b32 v{D + 1}, 0xffff0000, v{H}',
         f'v_lshlrev_b32 v{D + 2}, 16, v{H + 1}', f'v_and_b32 v{D + 3}, 0xffff0000, v{H + 1}']
    o += [f'v_mul_f32 v{D + i}, v{D + i}, v{dis}' for i in range(4)]
    o += [cvt(G, D), cvt(G + 1, D + 2)]
    return o


STAMPS = []


def stamp(p, name, hop=False):
    if not Cfg.st:
        return
    if hop and name not in Cfg.hopst:
        return
    if hop:
        i = 24 + sum(1 for n in STAMPS if n.startswith('h:')) * 8
        STAMPS.append('h:' + name)
        p(f's_memtime s[90:91]\ns_add_u32 m0, s{sK}, {i - 1}\ns_waitcnt lgkmcnt(0)\nv_writelane_b32 v{vST}, s90, m0')
    else:
        i = sum(1 for n in STAMPS if not n.startswith('h:'))
        STAMPS.append(name)
        p(f's_memtime s[90:91]\ns_waitcnt lgkmcnt(0)\nv_writelane_b32 v{vST}, s90, {i}')


def emit_desc(p):
    p(f'''
    s_cmp_ge_u32 s{sTASK}, 8
    s_cselect_b32 s{sPA}, s64, s60
    s_cselect_b32 s{sPA + 1}, s65, s61
    s_cselect_b32 s{sPB}, s66, s62
    s_cselect_b32 s{sPB + 1}, s67, s63
    s_mov_b32 s{sPA + 2}, 32768
    s_mov_b32 s{sPA + 3}, 0x20000
    s_mov_b32 s{sPB + 2}, 32768
    s_mov_b32 s{sPB + 3}, 0x20000
    ''')
    srd(p, sPR, 68, 256)


PV, PRA, PBF, PRT, PD, PI, PR = 80, 46, 62, 62, 200, 78, 84


def emit_prep_blocks(p):
    va, t0, t1 = PV, PV + 1, PV + 2
    PB = PSUM + 512
    p.label('L_prepA')
    p.forget()
    emit_desc(p)
    emit_lane_consts_prep(p, 1, va, t0)
    p(f'''
    s_cmp_eq_u32 s{sTASK}, 16
    s_cbranch_scc1 L_prepA_lin
    s_lshr_b32 s72, s{sW}, 1
    s_lshl_b32 s75, s72, 6
    s_lshl_b32 s72, s72, 13
    s_and_b32 s73, s{sW}, 1
    s_lshl_b32 s74, s73, 3
    s_add_u32 s75, s75, s74
    s_lshl_b32 s73, s73, 10
    s_add_u32 s72, s72, s73
    s_bfe_u32 s73, s{sTASK}, 0x20001
    s_lshl_b32 s73, s73, 5
    s_and_b32 s74, s{sTASK}, 1
    s_lshl_b32 s74, s74, 2
    s_add_u32 s73, s73, s74
    s_lshl_b32 s74, s73, 8
    s_add_u32 s74, s74, s75
    s_lshl_b32 s73, s73, 1
    s_add_u32 s73, s73, s72
    s_cmp_ge_u32 s{sTASK}, 8
    s_cselect_b32 s73, s73, s74
    buffer_load_dwordx2 v[{PBF}:{PBF + 1}], v{va}, s[{sPB}:{sPB + 3}], s73 offen
    ''')
    for e4 in range(4):
        p(f'buffer_load_dwordx4 v[{PRA + 4 * e4}:{PRA + 4 * e4 + 3}], v{va}, s[{sPA}:{sPA + 3}], s72 offen offset:{64 * e4}')
    p('s_branch L_prepA_back')
    p.label('L_prepA_lin')
    p(f'v_and_b32 v{t0}, 48, v1')
    for s4 in range(4):
        p(f'buffer_load_dwordx4 v[{PRA + 4 * s4}:{PRA + 4 * s4 + 3}], v{t0}, s[{sPR}:{sPR + 3}], 0 offen offset:{64 * s4}')
    p('s_branch L_prepA_back')
    p.label('L_prepB')
    p.forget()
    p(f's_cmp_eq_u32 s{sTASK}, 16\ns_cbranch_scc1 L_prepB_lin\ns_cmp_lt_u32 s{sTASK}, 8\ns_cbranch_scc1 L_prepB_m')
    emit_i16(p, 1, PI, t0, t1)
    p(mf16(PD, PBF, PI, None))
    p(cvt(PBF, PD))
    p(cvt(PBF + 1, PD + 2))
    p.label('L_prepB_m')
    p(f'''
    s_lshr_b32 s72, s{sW}, 1
    s_lshl_b32 s72, s72, 10
    s_and_b32 s73, s{sW}, 1
    s_lshl_b32 s73, s73, 3
    s_add_u32 s72, s72, s73
    s_add_u32 s72, s72, {PB}
    v_lshl_add_u32 v{va}, v1, 4, s72
    ds_write_b64 v{va}, v[{PBF}:{PBF + 1}]
    s_branch L_prepB_back
    ''')
    p.label('L_prepB2')
    p.forget()
    p(f'v_lshlrev_b32 v{va}, 4, v1\nv_add_u32 v{va}, {PB}, v{va}')
    for e4 in range(4):
        p(f'ds_read_b128 v[{PBF + 4 * e4}:{PBF + 4 * e4 + 3}], v{va} offset:{1024 * e4}')
    for e4 in range(4):
        p(mf32(PR, PRA + 4 * e4, PBF + 4 * e4, None if e4 == 0 else PR))
    p(f'''
    v_lshlrev_b32 v{va}, 5, v1
    s_lshl_b32 s72, s{sW}, 2
    s_add_u32 s72, s72, {PSUM}
    v_add_u32 v{va}, s72, v{va}
    v_add_f32 v{t0}, v{PR}, v{PR + 1}
    v_add_f32 v{t1}, v{PR + 2}, v{PR + 3}
    v_add_f32 v{t0}, v{t0}, v{t1}
    v_mov_b32 v{t1}, v{t0}
    v_permlane16_swap_b32 v{t0}, v{t1}
    v_add_f32 v{t0}, v{t0}, v{t1}
    v_mov_b32 v{t1}, v{t0}
    v_permlane32_swap_b32 v{t0}, v{t1}
    v_add_f32 v{t0}, v{t0}, v{t1}
    s_mov_b64 exec, 0xffff
    ds_write_b32 v{va}, v{t0}
    s_mov_b64 exec, -1
    s_branch L_prepB_back
    ''')
    p.label('L_prepB_lin')
    F, O = PRA, PBF
    p(f'''
    s_cmp_lg_u32 s{sW}, 0
    s_cbranch_scc1 L_prepB_back
    v_and_b32 v{t1}, 3, v1
    v_cmp_eq_u32 s[72:73], 1, v{t1}
    v_cmp_eq_u32 vcc, 0, v{t1}
    v_mov_b32 v{t1}, 0x{ONE2:x}
    ''')
    for i in range(4):
        p(f'v_mov_b32 v{O + i}, 0x{ONE2:x}')
    p(f'v_cndmask_b32 v{t1}, 0, v{t1}, vcc')
    for i in range(16):
        p(f'v_cndmask_b32 v{F + i}, v{t1}, v{F + i}, s[72:73]')
    for s4 in range(4):
        p(mf32(PD, F + 4 * s4, O, None if s4 == 0 else PD))
    p(f'v_lshlrev_b32 v{t0}, 4, v1\ns_mov_b32 s74, {WS_WF + 65536}\ns_waitcnt vmcnt(0)')
    for s4 in range(4):
        p(f'buffer_store_dwordx4 v[{F + 4 * s4}:{F + 4 * s4 + 3}], v{t0}, {WSR}, s74 offen offset:{1024 * s4} sc1')
    p(f'''
    v_lshlrev_b32 v{t0}, 2, v1
    s_mov_b32 s74, {WS_WF + 69632}
    buffer_store_dword v{PD + 1}, v{t0}, {WSR}, s74 offen sc1
    s_branch L_prepS
    ''')
    p.label('L_prepS')
    p(f'''
    s_waitcnt lgkmcnt(0)
    s_branch L_bar2
    ''')
    p.label('L_prepC')
    p.forget()
    p(f'''
    v_and_b32 v{va}, 15, v1
    v_lshlrev_b32 v{va}, 5, v{va}
    v_add_u32 v{va}, {PSUM}, v{va}
    ds_read_b128 v[{PRA}:{PRA + 3}], v{va}
    ds_read_b128 v[{PRA + 4}:{PRA + 7}], v{va} offset:16
    s_lshr_b32 s72, s{sW}, 1
    s_lshl_b32 s72, s72, 10
    s_and_b32 s73, s{sW}, 1
    s_lshl_b32 s73, s73, 3
    s_add_u32 s72, s72, s73
    s_add_u32 s72, s72, {PB}
    v_lshl_add_u32 v{va}, v1, 4, s72
    v_add_f32 v{t0}, v{PRA}, v{PRA + 1}
    v_add_f32 v{t1}, v{PRA + 2}, v{PRA + 3}
    v_add_f32 v{t0}, v{t0}, v{PRA + 4}
    v_add_f32 v{t1}, v{t1}, v{PRA + 5}
    v_add_f32 v{t0}, v{t0}, v{PRA + 6}
    v_add_f32 v{t1}, v{t1}, v{PRA + 7}
    v_add_f32 v{t0}, v{t0}, v{t1}
    v_mul_f32 v{t0}, 0x3c000000, v{t0}
    ''')
    for i in range(4):
        p(f'v_sub_f32 v{PR + i}, v{PR + i}, v{t0}')
    p(cvt(PBF, PR))
    p(cvt(PBF + 1, PR + 2))
    p(f'ds_write_b64 v{va}, v[{PBF}:{PBF + 1}]\ns_branch L_prepB_back')
    p.label('L_prepD')
    p.forget()
    p(f'''
    s_cmp_ge_u32 s{sW}, 4
    s_cbranch_scc1 L_stgr
    s_lshl_b32 s72, s{sW}, 10
    s_add_u32 s73, s72, {PB}
    v_lshl_add_u32 v{va}, v1, 4, s73
    ds_read_b128 v[{PBF}:{PBF + 3}], v{va}
    s_lshl_b32 s73, s{sTASK}, 12
    s_add_u32 s72, s72, s73
    s_add_u32 s72, s72, {WS_WF}
    v_lshlrev_b32 v{va}, 4, v1
    buffer_store_dwordx4 v[{PBF}:{PBF + 3}], v{va}, {WSR}, s72 offen sc1
    s_branch L_stgr
    ''')
    p.forget()


def fill_list():
    o = [f's_mov_b32 m0, s{sLA}']
    o += [f'buffer_load_dwordx4 v{vDA}, {WSR}, s{sGO} offen offset:{1024 * j} sc1 lds' for j in range(4)]
    o += [f's_add_u32 m0, s{sLA}, 4096\ns_add_u32 s92, s{sGO}, 4096']
    o += [f'buffer_load_dwordx4 v{vDA}, {WSR}, s92 offen offset:{1024 * j} sc1 lds' for j in range(4)]
    o += [f's_mul_i32 s92, s{sSL}, 81920\ns_lshl_b32 s93, s{sW}, 11\ns_add_u32 m0, s93, {TBL + 65536}\n'
          f's_add_u32 s92, s92, s93\ns_add_u32 s92, s92, {WS_G + 65536}\nv_lshlrev_b32 v{vT3}, 4, v1']
    o += [f'buffer_load_dwordx4 v{vT3}, {WSR}, s92 offen offset:{1024 * j} sc1 lds' for j in range(2)]
    return o


def emit_prologue(p):
    p('s_cmp_ge_u32 s2, 256\ns_cbranch_scc1 L_end')
    if Cfg.st:
        p(f's_memrealtime s[90:91]\ns_waitcnt lgkmcnt(0)\nv_writelane_b32 v{vST}, s90, 21')
    stamp(p, 'entry')
    p(f"""
    s_load_dwordx8 s[32:39], s[0:1], 0
    s_load_dwordx4 s[92:95], s[0:1], 80
    s_load_dwordx8 s[60:67], s[0:1], 32
    s_load_dwordx4 s[68:71], s[0:1], 64
    v_readfirstlane_b32 s{sW}, v0
    v_and_b32 v1, 63, v0
    s_and_b32 s{sXC}, s2, 7
    s_lshr_b32 s{sR}, s2, 3
    s_lshr_b32 s{sW}, s{sW}, 6
    """)
    p('s_getpc_b64 s[96:97]')
    p.raw('L_pc:')
    p(f"""
    s_lshl_b32 s98, s{sR}, 3
    s_add_u32 s98, s98, s{sW}
    s_lshl_b32 s98, s98, 7
    v_lshl_add_u32 v{vT0}, v1, 1, s98
    v_min_u32 v{vT0}, L_code_end-L_pc-4, v{vT0}
    v_and_b32 v{vT0}, -4, v{vT0}
    global_load_dword v3, v{vT0}, s[96:97]
    v_lshlrev_b32 v{vT3}, 3, v0
    s_mul_i32 s96, s2, 2560
    v_mov_b32 v64, 0x{PAD:x}
    v_mov_b32 v65, v64
    v_mov_b32 v66, v64
    v_mov_b32 v67, v64
    v_lshlrev_b32 v70, 4, v0
    v_lshlrev_b32 v71, 2, v0
    v_lshlrev_b32 v72, 7, v1
    v_add_u32 v72, {BUCK}, v72
    v_lshlrev_b32 v73, 2, v1
    s_waitcnt lgkmcnt(0)
    s_load_dword s78, s[94:95], {WS_TAG}
    """)
    srd(p, sDST, 36, 640000)
    srd(p, sSRC, 34, 640000)
    p(f"""
    buffer_load_dwordx2 v[56:57], v{vT3}, s[{sDST}:{sDST + 3}], s96 offen
    buffer_load_dwordx2 v[58:59], v{vT3}, s[{sSRC}:{sSRC + 3}], s96 offen
    ds_write_b128 v70, v[64:67] offset:{BUCK}
    ds_write_b32 v73, v72 offset:{CNT1}
    """)
    stamp(p, 'srd')
    srd(p, sWS, 94, 0x10000000)
    srd(p, sX_, 32, 2560000)
    srd(p, sDIS, 38, 20000)
    srd(p, sOUT, 70, 2560000)
    p(f"""
    s_and_b32 s{sJ}, s{sR}, 7
    s_lshr_b32 s{sSL}, s{sR}, 3
    s_lshl_b32 s96, s{sXC}, 2
    s_add_u32 s{sSL}, s{sSL}, s96
    s_lshl_b32 s{sU}, s{sW}, 3
    s_add_u32 s{sU}, s{sU}, s{sJ}
    s_mov_b32 s{sSPIN}, 0
    v_lshrrev_b32 v{vT1}, 3, v1
    v_and_b32 v{vT2}, 7, v1
    v_cmp_eq_u32 s[74:75], 7, v{vT2}
    v_lshlrev_b32 v{vT2}, 4, v{vT2}
    v_lshl_add_u32 v75, v{vT1}, 15, v{vT2}
    s_lshl_b32 s72, s{sW}, 18
    s_lshl_b32 s97, s2, 7
    s_add_u32 s72, s72, s97
    s_add_u32 s72, s72, {WS_D}
    """)
    p(f"""
    v_and_b32 v{vT0}, 7, v1
    v_lshrrev_b32 v{vT1}, 3, v1
    v_lshlrev_b32 v{vT2}, 8, v{vT0}
    v_lshl_add_u32 v{vT2}, v{vT1}, 4, v{vT2}
    s_lshl_b32 s96, s2, 13
    s_lshr_b32 s97, s{sW}, 1
    s_lshl_b32 s92, s97, 11
    s_and_b32 s94, s{sW}, 1
    s_lshl_b32 s95, s94, 7
    s_add_u32 s92, s92, s95
    s_add_u32 s92, s92, s96
    s_mov_b32 s80, s92
    s_lshr_b32 s96, s96, 2
    s_add_u32 s96, s96, s95
    s_add_u32 s96, s96, {8192 * 256}
    s_mov_b32 s81, s96
    v_mov_b32 v112, v{vT2}
    v_mul_u32_u24 v{vT1}, 640, v{vT1}
    v_lshl_add_u32 v{vT1}, v{vT0}, 3, v{vT1}
    s_mul_i32 s94, s94, 5120
    v_add_u32 v109, s94, v{vT1}
    s_lshl_b32 s97, s97, 6
    v_add_u32 v108, s97, v109
    v_lshlrev_b32 v{vT0}, 4, v1
    v_and_b32 v{vT0}, 16, v{vT0}
    s_waitcnt lgkmcnt(0)
    s_barrier
    s_add_u32 s78, s78, 0x100
    s_lshr_b32 s79, s78, 4
    s_not_b32 s79, s79
    s_and_b32 s79, s79, 15
    s_and_b32 s78, s78, -16
    s_or_b32 s{sTAG}, s78, s79
    s_not_b32 s{sNEG + 1}, s{sTAG}
    v_mov_b32 v{vNON}, s{sTAG}
    s_mov_b32 s79, 0x3c000
    v_lshrrev_b32 v{vT0}, v{vT0}, v{vNON}
    """)
    for r in range(4):
        p(f'v_lshlrev_b32 v{PS + r}, {14 - 4 * r}, v{vT0}\nv_and_b32 v{PS + r}, s79, v{PS + r}')
    stamp(p, 'init issued')


def emit_g1(p):
    p(f"""
    s_waitcnt vmcnt(0)
    buffer_load_dwordx4 v[100:103], v112, s[{sX_}:{sX_ + 3}], s80 offen
    buffer_load_dwordx4 v[104:107], v112, s[{sX_}:{sX_ + 3}], s81 offen
    s_and_b32 s82, s{sR}, 3
    s_cmp_lg_u32 s82, 1
    s_cbranch_scc1 L_nox2
    s_sub_u32 s80, s80, 65536
    s_sub_u32 s81, s81, 16384
    buffer_load_dwordx4 v[116:119], v112, s[{sX_}:{sX_ + 3}], s80 offen
    buffer_load_dwordx4 v[120:123], v112, s[{sX_}:{sX_ + 3}], s81 offen
    """)
    p.vm.pop()
    p.vm.pop()
    p.raw('L_nox2:')
    p(f"""
    s_cmp_ge_u32 s{sW}, 5
    s_cbranch_scc1 L_g1_skip
    s_cmp_ge_u32 s2, 250
    s_cbranch_scc1 L_g1_skip
    s_movk_i32 s96, 0xfc00
    v_mov_b32 v{vT0}, 4
    """)
    vm = list(p.vm)
    for i in range(2):
        p(f"""
        v_lshrrev_b32 v{vT1}, 5, v{56 + i}
        v_lshl_or_b32 v{58 + i}, v{56 + i}, 18, v{58 + i}
        v_and_b32 v{vT2}, -4, v{vT1}
        v_lshl_add_u32 v{vT1}, v{vT1}, 2, s96
        v_min_u32 v{vT1}, v{vT1}, v{vT2}
        ds_add_rtn_u32 v{60 + i}, v{vT1}, v{vT0} offset:{CNT1}
        """)
    p('ds_write_b32 v60, v58\nds_write_b32 v61, v59\ns_waitcnt lgkmcnt(0)')
    p.vm = vm
    p.label('L_g1_skip')
    stamp(p, 'g1')
    p(f"""
    s_barrier
    ds_read_b32 v74, v73 offset:{CNT1}
    ds_read_b128 v[64:67], v70 offset:{BUCK}
    s_sub_u32 s{sTASK}, s2, 8
    s_lshr_b32 s{sBU}, s{sR}, 2
    s_lshl_b32 s{sBU}, s{sBU}, 3
    s_add_u32 s{sBU}, s{sBU}, s{sXC}
    v_sub_u32 v74, v74, v72
    v_cmp_lt_u32 vcc, 0x7c, v74
    s_cmp_lg_u64 vcc, 0
    s_cselect_b32 s97, 1, 0
    s_sub_u32 s97, 0x{PAD:x}, s97
    v_mov_b32 v74, s97
    v_xor_b32 v64, v64, v{PS}
    v_cndmask_b32 v67, v67, v74, s[74:75]
    v_xor_b32 v65, v65, v{PS + 1}
    v_xor_b32 v66, v66, v{PS + 2}
    v_xor_b32 v67, v67, v{PS + 3}
    buffer_store_dwordx4 v[64:67], v75, {WSR}, s72 offen sc1
    """)
    stamp(p, 'b1 out')
    p(f"""
    s_lshl_b32 s96, s2, 8
    s_lshr_b32 s97, s96, 2
    s_add_u32 s97, s97, {65536 - 256}
    s_mov_b32 s92, 81920
    s_lshl_b32 s94, s{sW}, 6
    """)
    for v, add, dd, ka in ((vK0, 0, 110, sKA), (vK1, 512, 111, 78)):
        p(f"""
        v_add_u32 v{vT0}, s94, v1
        v_add_u32 v{vT0}, {add}, v{vT0}
        v_mul_u32_u24 v{vT1}, 3277, v{vT0}
        v_lshrrev_b32 v{vT1}, 16, v{vT1}
        v_mul_u32_u24 v{vT2}, 20, v{vT1}
        v_sub_u32 v{vT2}, v{vT0}, v{vT2}
        v_mov_b32 v{vT0}, s97
        v_mov_b32 v{vT3}, s96
        v_cmp_gt_u32 vcc, 16, v{vT2}
        v_mul_lo_u32 v{vT1}, v{vT1}, s92
        v_cndmask_b32 v{vT0}, v{vT0}, v{vT3}, vcc
        v_lshl_add_u32 v{vT0}, v{vT2}, 4, v{vT0}
        v_add_u32 v{v}, v{vT1}, v{vT0}
        v_lshrrev_b32 v{vT0}, 2, v{vT0}
        buffer_load_dword v{dd}, v{vT0}, s[{sDIS}:{sDIS + 3}], 0 offen
        v_mov_b32 v{vT1}, 512
        v_mov_b32 v{vT3}, 0x800
        v_cndmask_b32 v{vT1}, v{vT1}, v{vT3}, vcc
        v_sub_u32 v{dd + 16}, v{v}, v{vT1}
        v_lshrrev_b32 v{vT1}, 2, v{vT1}
        v_sub_u32 v{vT0}, v{vT0}, v{vT1}
        buffer_load_dword v{dd + 14}, v{vT0}, s[{sDIS}:{sDIS + 3}], 0 offen
        """)
    p(f"""
    s_bitcmp1_b32 s{sW}, 0
    s_cselect_b32 s72, s62, s60
    s_cselect_b32 s73, s63, s61
    s_cselect_b32 s74, s66, s64
    s_cselect_b32 s75, s67, s65
    s_bitcmp1_b32 s{sW}, 1
    s_cselect_b32 s72, s74, s72
    s_cselect_b32 s73, s75, s73
    s_lshr_b32 s92, s{sW}, 2
    s_lshl_b32 s93, s{sR}, 1
    s_add_u32 s92, s92, s93
    s_lshl_b32 s92, s92, 9
    v_lshl_add_u32 v{vT1}, v1, 3, s92
    global_load_dword v3, v{vT1}, s[72:73]
    """)
    emit_offsets(p)
    emit_sel(p)
    p(f"""
    s_lshl_b32 s96, s{sW}, 5
    v_add_u32 v{vT1}, s96, v1
    s_and_b32 s96, s2, 0xc7
    s_sub_u32 s96, s96, 256
    v_lshl_add_u32 v{vT2}, v1, 3, s96
    v_and_b32 v{vT3}, 24, v{vT1}
    v_cmp_eq_u32 vcc, 0, v{vT3}
    v_or_b32 v{vT3}, 8, v{vT1}
    v_cndmask_b32 v{vT1}, v{vT1}, v{vT3}, vcc
    v_cmp_gt_u32 vcc, 32, v1
    v_cndmask_b32 v{vT1}, v{vT2}, v{vT1}, vcc
    v_lshlrev_b32 v{vG0}, 7, v{vT1}
    s_lshl_b32 s96, s{sXC}, 15
    s_add_u32 s96, s96, {F_G0}
    v_add_u32 v{vG0}, s96, v{vG0}
    s_getreg_b32 s99, hwreg(HW_REG_XCC_ID, 0, 4)
    s_add_u32 s96, s99, 1
    v_mov_b32 v{vFV}, s96
    s_lshl_b32 s96, s2, 7
    s_add_u32 s96, s96, {F_G0}
    v_lshl_add_u32 v{vUB}, v1, 15, s96
    s_and_b32 s96, s{sR}, 3
    s_cbranch_scc0 L_builder
    """)
    Cfg.vm_builder = list(p.vm)
    emit_imgpat(p)
    xw = lambda r, o: f"""
    ds_write_b64 v108, v[{r}:{r + 1}] offset:{o}
    ds_write_b64 v108, v[{r + 2}:{r + 3}] offset:{o + 320}
    ds_write_b64 v109, v[{r + 4}:{r + 5}] offset:{o + 256}
    ds_write_b64 v109, v[{r + 6}:{r + 7}] offset:{o + 576}
    """
    p(xw(100, 0))
    vm_ = list(p.vm)
    p('s_cmp_lg_u32 s82, 1\ns_cbranch_scc1 L_nox3\ns_waitcnt vmcnt(6)')
    p(xw(116, 40960))
    p.vm = vm_
    p.label('L_nox3')
    stamp(p, 'x in')
    p('s_waitcnt lgkmcnt(0)\ns_barrier')

    def rows(o, d0, k0, k1, t):
        p(f"""
        ds_read_b128 v[100:103], v70 offset:{o}
        ds_read_b128 v[104:107], v70 offset:{o + 8192}
        v_and_b32 v113, 0xffff0000, v{d0}
        v_lshlrev_b32 v112, 16, v{d0}
        v_and_b32 v115, 0xffff0000, v{d0 + 1}
        v_lshlrev_b32 v114, 16, v{d0 + 1}
        """)
        for x in scale_g(D0, 112, 100, GA) + scale_g(D1, 113, 102, GA + 2):
            p(x)
        p(f'buffer_store_dwordx4 v[{GA}:{GA + 3}], v{k0}, {WSR}, s{sGO} offen sc1')
        p(f's_cmp_ge_u32 s{sW}, 2\ns_cbranch_scc1 L_g0b{t}')
        for x in scale_g(D0, 114, 104, HA) + scale_g(D1, 115, 106, HA + 2):
            p(x)
        p(f'buffer_store_dwordx4 v[{HA}:{HA + 3}], v{k1}, {WSR}, s{sGO} offen sc1')
        p.label(f'L_g0b{t}')
        p('s_waitcnt lgkmcnt(0)')
    rows(0, 110, vK0, vK1, 'a')
    p('s_cmp_lg_u32 s82, 1\ns_cbranch_scc1 L_nox4')
    rows(40960, 124, 126, 127, 'b')
    p.label('L_nox4')
    emit_g0_flag(p, 0, 'a')
    stamp(p, 'g0 flag')
    p('s_branch L_fill0')


def emit_g0_flag(p, n, t):
    p(f"""
    s_waitcnt vmcnt({n})
    s_barrier
    s_cmp_lg_u32 s{sW}, 0
    s_cbranch_scc1 L_ng0{t}
    s_mov_b64 exec, 0xff
    {flag_store(vUB)} sc1
    s_mov_b64 exec, -1
    """)
    p.vm.pop()
    p.raw(f'L_ng0{t}:')


def emit_offsets(p):
    p(f"""
    v_lshrrev_b32 v{vT1}, 4, v1
    v_and_b32 v{vT2}, 15, v1
    v_lshl_add_u32 v{vT1}, v{vT1}, 3, v{vT2}
    v_mov_b32 v{vT3}, 0x2000000
    v_cmp_gt_u32 vcc, 8, v{vT2}
    v_cndmask_b32 v{vBL}, v{vT3}, v{vT1}, vcc
    s_mul_i32 s96, s{sSL}, 81920
    s_lshl_b32 s97, s{sU}, 10
    s_add_u32 s97, s97, s96
    v_lshl_add_u32 v{vGA}, v1, 4, s97
    s_lshl_b32 s97, s{sU}, 8
    s_add_u32 s97, s97, s96
    s_add_u32 s97, s97, 65536
    v_lshl_add_u32 v{vGB}, v{vBL}, 3, s97
    s_mov_b32 s{sGO}, {WS_G}
    s_mov_b32 s{sTO}, {WS_TOK}
    s_lshl_b32 s97, s{sW}, 13
    s_add_u32 s{sLA}, s97, {TBL}
    s_add_u32 s97, s97, s96
    v_lshl_add_u32 v{vDA}, v1, 4, s97
    s_lshl_b32 s97, s{sW}, 12
    s_add_u32 s{sLB}, s97, {TBL + 65536}
    s_add_u32 s97, s97, s96
    s_add_u32 s97, s97, 65536
    v_lshl_add_u32 v{vDB}, v1, 4, s97
    s_lshl_b32 s96, s{sSL}, 3
    s_add_u32 s96, s96, s{sW}
    s_lshl_b32 s96, s96, 7
    v_lshl_add_u32 v{vFP}, v1, 3, s96
    s_lshl_b32 s97, s{sJ}, 3
    s_add_u32 s96, s96, s97
    v_mov_b32 v{vFO}, s96
    """)


def emit_sel(p):
    p(f"""
    v_and_b32 v80, 15, v1
    v_lshrrev_b32 v81, 4, v1
    v_and_b32 v82, 3, v80
    v_lshrrev_b32 v80, 2, v80
    v_mov_b32 v83, 0x{ONE2:x}
    v_cmp_eq_u32 vcc, v81, v82
    v_cndmask_b32 v83, 0, v83, vcc
    """)
    for b in range(4):
        p(f'v_cmp_eq_u32 vcc, {b}, v80')
        for r in range(4):
            p(f'v_cndmask_b32 v{SEL + 4 * b + r}, 0, v83, vcc')


def emit_misc_loads(p):
    p(f"""
    s_lshl_b32 s96, s{sU}, 8
    v_lshlrev_b32 v{vT1}, 2, v1
    buffer_load_dword v{vD0}, v{vT1}, s[{sDIS}:{sDIS + 3}], s96 offen
    s_lshl_b32 s96, s{sU}, 6
    s_add_u32 s96, s96, 16384
    v_lshlrev_b32 v{vT1}, 1, v{vBL}
    buffer_load_ushort v{vD2}, v{vT1}, s[{sDIS}:{sDIS + 3}], s96 offen
    """)


def emit_imgpat(p):
    a0 = 82
    for r in range(4):
        p(f'v_lshlrev_b32 v{a0}, 14, v{PS + r}\nv_and_b32 v{a0}, 0xc0000000, v{a0}\nv_and_b32 v{PS + r}, 0xc000, v{PS + r}\nv_or_b32 v{PS + r}, v{PS + r}, v{a0}')


def emit_init2(p):
    for i in range(4):
        p(f'v_mov_b32 v{76 + i}, 0x{DUMMY | DUMMY << 16:x}')
    p(f"""
    ds_write_b128 v70, v[76:79] offset:{IMG}
    ds_write_b128 v70, v[76:79] offset:{IMG + 7168}
    ; A counter t<128
    v_and_b32 v76, 1, v0
    v_bfe_u32 v77, v0, 3, 2
    v_lshl_add_u32 v{vBETA}, v76, 2, v77
    v_bfe_u32 v76, v0, 1, 2
    v_bfe_u32 v77, v0, 5, 2
    v_lshl_add_u32 v76, v76, 4, v77
    ; B counter 128<=t<160
    v_bfe_u32 v78, v0, 2, 1
    v_add_u32 v78, 8, v78
    v_and_b32 v79, 3, v0
    v_bfe_u32 v77, v0, 3, 2
    v_lshl_add_u32 v79, v79, 4, v77
    v_cmp_gt_u32 vcc, 0x80, v0
    v_cndmask_b32 v{vBETA}, v78, v{vBETA}, vcc
    v_cndmask_b32 v76, v79, v76, vcc
    v_lshlrev_b32 v76, 4, v76
    v_and_b32 v77, 1, v{vBETA}
    v_lshl_add_u32 v76, v77, 3, v76
    v_lshrrev_b32 v77, 1, v{vBETA}
    v_lshl_add_u32 v76, v77, 10, v76
    v_add_u32 v76, {IMG}, v76
    v_lshlrev_b32 v76, 16, v76
    v_mov_b32 v77, 0x8000
    v_cmp_gt_u32 vcc, 0xa0, v0
    v_cndmask_b32 v76, v77, v76, vcc
    v_cmp_gt_u32 vcc, 0xe0, v0
    v_cndmask_b32 v76, 0, v76, vcc
    v_cmp_gt_u32 vcc, 0xe4, v0
    s_and_saveexec_b64 s[92:93], vcc
    ds_write_b32 v71, v76 offset:{CNT2}
    s_mov_b64 exec, s[92:93]
    """)


def emit_b2(p):
    E, R = 46, 62
    a0, a1 = 82, 83
    p.label('L_builder')
    p.vm = list(Cfg.vm_builder)
    p.lgkm = []
    p(f"""
    v_lshlrev_b32 v84, 4, v1
    s_lshl_b32 s98, s{sBU}, 15
    s_lshl_b32 s97, s{sW}, 12
    s_add_u32 s98, s98, s97
    s_add_u32 s98, s98, {WS_D}
    """)
    ld = [f'buffer_load_dwordx4 v[{E + 4 * i}:{E + 4 * i + 3}], v84, {WSR}, s98 offen offset:{1024 * i} sc1' for i in range(4)]
    p(f"""
    s_cmp_lg_u32 s{sW}, 7
    s_cbranch_scc1 L_ng0b
    s_mov_b64 exec, 0xff
    {flag_store(vUB)} sc1
    s_mov_b64 exec, -1
    """)
    p.vm.pop()
    p.raw('L_ng0b:')
    emit_init2(p)
    p('s_waitcnt lgkmcnt(0)\ns_barrier')
    for x in ld:
        p(x)
    p.label('L_segchk')
    LATE.append(('L_segagain', ld + [f's_add_u32 s{sSPIN}, s{sSPIN}, 1', f's_cmp_gt_u32 s{sSPIN}, {SPIN_MAX}', 's_cbranch_scc1 L_end',
                                     's_waitcnt vmcnt(0)'], 'L_segchk'))
    for i in range(16):
        p(f'v_xor_b32 v{E + i}, v{E + i}, v{PS + (i & 3)}')
    p(f'v_or3_b32 v{a0}, v{E}, v{E + 1}, v{E + 2}')
    for i in range(3, 15, 2):
        p(f'v_or3_b32 v{a0}, v{a0}, v{E + i}, v{E + i + 1}')
    p(f"""
    v_or_b32 v{a0}, v{a0}, v{E + 15}
    v_and_b32 v{a0}, 0x3c000, v{a0}
    v_cmp_ne_u32 vcc, 0, v{a0}
    s_cbranch_vccnz L_segagain
    """)
    stamp(p, 'seg issued')
    p(f"""
    v_lshlrev_b32 v{vT2}, 2, v1
    v_add_u32 v{vT2}, 640, v{vT2}
    v_mov_b32 v{vT3}, 1
    s_lshl_b32 s96, s{sBU}, 9
    s_lshl_b32 s97, s{sBU}, 7
    s_add_u32 s97, s97, 32256
    """)
    for i in range(16):
        p(f"""
        v_lshrrev_b32 v{a0}, 16, v{E + i}
        v_subrev_u32 v{a1}, s96, v{a0}
        v_subrev_u32 v{a0}, s97, v{a0}
        v_min3_u32 v{R + i}, v{a0}, v{a1}, v{vT2}
        ds_add_rtn_u32 v{R + i}, v{R + i}, v{vT3} offset:{CNT2}
        """)
    stamp(p, 'b2 atomics')
    p("""
    ds_write_b64 v108, v[100:101]
    ds_write_b64 v108, v[102:103] offset:320
    ds_write_b64 v109, v[104:105] offset:256
    ds_write_b64 v109, v[106:107] offset:576
    """)
    a, r_ = lbl('ov'), lbl('ovr')
    p(f"""
    v_mov_b32 v{a1}, 0x{PAD - 1:x}
    v_cmp_eq_u32 vcc, v{a1}, v{E + 3}
    v_cmp_eq_u32 s[92:93], v{a1}, v{E + 7}
    v_cmp_eq_u32 s[94:95], v{a1}, v{E + 11}
    v_cmp_eq_u32 s[96:97], v{a1}, v{E + 15}
    s_or_b64 vcc, vcc, s[92:93]
    s_or_b64 s[94:95], s[94:95], s[96:97]
    s_or_b64 vcc, vcc, s[94:95]
    s_cbranch_vccnz {a}
    """)
    p.raw(r_ + ':')
    LATE.append((a, [f'v_mov_b32 v{a0}, 0x100000', f'v_mov_b32 v{a1}, 0', f'ds_or_b32 v{a1}, v{a0} offset:{UF}', 's_waitcnt lgkmcnt(0)'], r_))
    p(f's_movk_i32 s97, 5120\ns_mov_b32 s98, s{sBU}')
    for i in range(16):
        r = R + i
        p(f"""
        v_and_b32 v{a0}, 3, v{r}
        v_lshrrev_b32 v{a1}, 16, v{r}
        v_lshl_add_u32 v{a0}, v{a0}, 6, v{a1}
        v_bfe_u32 v{a1}, v{r}, 4, 12
        v_cmp_gt_u32 vcc, 3, v{a1}
        v_mad_u32_u24 v{a0}, v{a1}, s97, v{a0}
        v_bfe_u32 v{a1}, v{r}, 2, 2
        v_lshl_add_u32 v{r}, v{a1}, 1, v{a0}
        s_mov_b64 exec, vcc
        ds_write_b16 v{r}, v{E + i}
        s_mov_b64 exec, -1
        """)
    emit_imgpat(p)
    p(f"""
    v_lshlrev_b32 v{vT2}, 2, v0
    s_mul_i32 s96, s{sW}, 1920
    v_lshl_add_u32 v{vT3}, v1, 4, s96
    s_lshl_b32 s96, s98, 14
    s_add_u32 s96, s96, {WS_D2}
    s_waitcnt lgkmcnt(0)
    s_barrier
    """)
    stamp(p, 'b2 done')
    p(f"""
    ds_read_b32 v{vT2}, v{vT2} offset:{CNT2}
    ds_read_b128 v[{E}:{E + 3}], v{vT3} offset:{IMG}
    ds_read_b128 v[{E + 4}:{E + 7}], v{vT3} offset:{IMG + 1024}
    v_lshlrev_b32 v{vT1}, v{vBETA}, 1
    v_and_b32 v{vT2}, 0xffff, v{vT2}
    v_cmp_lt_u32 vcc, 24, v{vT2}
    v_cndmask_b32 v{a1}, 0, v{vT1}, vcc
    v_lshlrev_b32 v{vT1}, 10, v{vT1}
    v_cmp_lt_u32 vcc, 32, v{vT2}
    v_cndmask_b32 v{vT1}, 0, v{vT1}, vcc
    v_or_b32 v{a1}, v{a1}, v{vT1}
    v_mov_b32 v{vT1}, 0x100000
    v_cmp_lt_u32 vcc, 40, v{vT2}
    v_cndmask_b32 v{vT1}, 0, v{vT1}, vcc
    v_or_b32 v{a1}, v{a1}, v{vT1}
    v_cmp_gt_u32 vcc, 0xa0, v0
    v_cndmask_b32 v{a1}, 0, v{a1}, vcc
    v_mov_b32 v{vT1}, 0
    v_cmp_ne_u32 vcc, 0, v{a1}
    s_and_saveexec_b64 s[92:93], vcc
    ds_or_b32 v{vT1}, v{a1} offset:{UF}
    s_mov_b64 exec, s[92:93]
    s_waitcnt lgkmcnt(0)
    """)
    for i in range(8):
        p(f'v_xor_b32 v{E + i}, v{E + i}, v{PS + (i & 3)}')
    p(f"""
    buffer_store_dwordx4 v[{E}:{E + 3}], v{vT3}, {WSR}, s96 offen sc1
    s_mov_b32 exec_hi, 0xffffff
    buffer_store_dwordx4 v[{E + 4}:{E + 7}], v{vT3}, {WSR}, s96 offen offset:1024 sc1
    s_mov_b64 exec, -1
    s_barrier
    s_cmp_lg_u32 s{sW}, 0
    s_cbranch_scc1 L_nohdr
    ds_read_b32 v{vFV}, v{vT1} offset:{UF}
    s_lshl_b32 s96, s98, 7
    s_add_u32 s96, s96, {F_B2}
    v_lshl_add_u32 v{vT2}, v1, 13, s96
    v_or_b32 v{vFV}, 0x80000000, v{vFV}
    s_mov_b64 exec, 0xff
    {flag_store(vT2)} sc1
    s_mov_b64 exec, -1
    """)
    p.vm.pop()
    p.label('L_nohdr')
    stamp(p, 'b2 flag')
    p.label('L_fill0')
    p.forget()
    emit_misc_loads(p)
    X = 46
    p(f's_lshl_b32 s96, s{sU}, 7\ns_lshl_b32 s97, s{sXC}, 13\ns_add_u32 s96, s96, s97\ns_add_u32 s96, s96, {F_B2}\nv_mov_b32 v{vT3}, s96')
    p(f"""
    s_bfe_u32 s96, s2, 0x30002
    s_lshl_b32 s96, s96, 12
    s_add_u32 s96, s96, {F_TOK}
    v_lshl_add_u32 v{vTP}, v1, 7, s96
    s_lshl_b32 s96, s{sJ}, 5
    s_add_u32 s96, s96, s{sSL}
    s_lshl_b32 s96, s96, 7
    s_add_u32 s96, s96, {F_TOK}
    v_mov_b32 v{vTF}, s96
    s_mov_b32 s{sK}, 1
    s_lshl_b32 s96, s{sU}, 10
    s_add_u32 s96, s96, {TBL}
    v_lshl_add_u32 v{vOWN}, v1, 4, s96
    """)
    for i in range(7):
        p(f's_add_u32 s95, s{sJ}, {i + 1}\ns_and_b32 s95, s95, 7\ns_lshl_b32 s{sOFF + i}, s95, 10')
    p('s_mov_b32 s92, 0x200000\ns_mov_b32 s93, 0')
    poll(p, vT3, 1, '0x80000000', bound='s[92:93]')
    p(f"""
    v_readfirstlane_b32 s{sQ}, v{vPL}
    v_and_b32 v{vD1}, 0xffff0000, v{vD0}
    v_lshlrev_b32 v{vD0}, 16, v{vD0}
    v_lshlrev_b32 v{vD2}, 16, v{vD2}
    v_lshlrev_b32 v{vT1}, 4, v1
    s_mov_b32 s93, {TBL}
    """)
    if Cfg.force_slow:
        p(f's_and_b32 s96, s{sU}, {Cfg.force_slow - 1}\ns_cselect_b32 s96, 0, 0x100000\ns_or_b32 s{sQ}, s{sQ}, s96')
    p(f's_mov_b32 s{sFC}, 0')
    stamp(p, 'hdr seen')
    p.label('L_imp')
    p(f's_lshl_b32 s96, s{sU}, 14\ns_add_u32 s96, s96, {WS_D2}')
    reg = lambda c: X + 4 * c if c < 10 else 200 + 4 * (c - 10)

    def chunk(c):
        if c and c % 4 == 0:
            p('s_add_u32 s96, s96, 4096')
        p(f'buffer_load_dwordx4 v[{reg(c)}:{reg(c) + 3}], v{vT1}, {WSR}, s96 offen offset:{1024 * (c % 4)} sc1')

    def unpack(c):
        r = reg(c)
        for i in range(4):
            p(f'v_xor_b32 v{r + i}, v{r + i}, v{PS + i}')
        p(f'v_or3_b32 v{vT2}, v{vT2}, v{r}, v{r + 1}\nv_or3_b32 v{vT2}, v{vT2}, v{r + 2}, v{r + 3}')
        for i in range(4):
            b, q = 2 * (c % 5) + (i >> 1), 4 * (c // 5) + 2 * (i & 1)
            if q < 10:
                p(f'v_mad_u32_u16 v{ADDR(b, q)}, v{r + i}, 8, s93')
                p(f'v_mad_u32_u16 v{ADDR(b, q + 1)}, v{r + i}, 8, s93 op_sel:[1,0,0,0]')
    for c in range(10):
        chunk(c)
    a = lbl('f0')
    p(f's_cmp_lg_u32 s{sFC}, 0\ns_cbranch_scc1 L_impwait\ns_mov_b32 s{sFC}, 1')
    LATE.append(('L_impwait', ['s_waitcnt vmcnt(0)'], a))
    poll(p, vG0, 40, 1)
    p(f"""
    v_subrev_u32 v{vT1}, 1, v{vPL}
    v_cmp_ne_u32 vcc, s99, v{vT1}
    s_and_b32 s{sSLOW}, vcc_hi, 0xff
    """)
    stamp(p, 'g0 seen')
    for x in fill_list():
        p(x)
    p(f's_lshl_b32 s96, s{sU}, 14\ns_add_u32 s96, s96, {WS_D2 + 8192}\ns_mov_b32 s93, {TBL}\nv_lshlrev_b32 v{vT1}, 4, v1')
    p.label(a)
    p.forget()
    p(f'v_mov_b32 v{vT2}, 0')
    a = lbl('np4')
    p(f's_and_b32 s97, s{sQ}, 0xffc00\ns_cbranch_scc0 {a}')
    vm = list(p.vm)
    for c in range(10, 15):
        chunk(c)
    for c in range(10, 15):
        unpack(c)
    p.vm = vm
    p.label(a)
    for c in range(10):
        unpack(c)
    p(f"""
    v_and_b32 v{vT2}, 0xc000c000, v{vT2}
    v_cmp_ne_u32 vcc, 0, v{vT2}
    s_cbranch_vccnz L_impagain
    """)
    LATE.append(('L_impagain', ['s_waitcnt vmcnt(0)', f's_add_u32 s{sSPIN}, s{sSPIN}, 1', f's_cmp_gt_u32 s{sSPIN}, {SPIN_MAX}', 's_cbranch_scc1 L_end'], 'L_imp'))
    p(f"""
    v_lshrrev_b32 v{vT0}, 3, v1
    v_lshlrev_b32 v{vT0}, 7, v{vT0}
    v_and_b32 v{vT1}, 7, v1
    v_lshl_add_u32 v{vT0}, v{vT1}, 3, v{vT0}
    s_lshl_b32 s96, s{sSL}, 10
    s_lshl_b32 s97, s{sW}, 8
    s_add_u32 s96, s96, s97
    v_add_u32 v{vG0}, s96, v{vT0}
    s_cmp_eq_u32 s{sW}, 7
    s_cselect_b64 vcc, -1, 0
    v_cndmask_b32 v{vG0}, v{vG0}, v{vTP}, vcc
    v_min_u32 v{vT1}, 16, v1
    v_and_b32 v{vT0}, 7, v{vT1}
    v_lshlrev_b32 v{vT0}, 9, v{vT0}
    v_lshrrev_b32 v{vT1}, 3, v{vT1}
    v_lshl_add_u32 v{vT0}, v{vT1}, 12, v{vT0}
    v_add_u32 v{vT0}, {F_TOK + 4096}, v{vT0}
    s_cmp_eq_u32 s{sW}, 6
    s_cselect_b64 vcc, -1, 0
    v_cndmask_b32 v{vG0}, v{vG0}, v{vT0}, vcc
    s_mov_b32 s87, 0
    s_waitcnt vmcnt(0)
    s_barrier
    s_or_b32 s96, s2, s{sW}
    s_cbranch_scc1 L_keeptag
    v_mov_b32 v{vT0}, {WS_TAG}
    s_mov_b64 exec, 1
    buffer_store_dword v{vNON}, v{vT0}, {WSR}, 0 offen sc1
    s_mov_b64 exec, -1
    """)
    p.label('L_keeptag')
    p(f's_cmp_lt_u32 s{sTASK}, 17\ns_cbranch_scc1 L_prepA')
    p.label('L_prepA_back')
    if Cfg.dump_tbl:
        p(f'v_lshlrev_b32 v60, 4, v0\nv_add_u32 v61, {TBL}, v60\ns_mul_i32 s96, s2, 81920\ns_add_u32 s96, s96, 0x4000000')
        for i in range(10):
            p(f'ds_read_b128 v[64:67], v61 offset:{8192 * i if i < 8 else 0}' if i < 8 else f'v_add_u32 v62, {8192 * i}, v61\nds_read_b128 v[64:67], v62')
            p(f'buffer_store_dwordx4 v[64:67], v60, {WSR}, s96 offen\ns_add_u32 s96, s96, 8192\ns_waitcnt vmcnt(0)')
    stamp(p, 'ready')


def emit_reads(p, b):
    rd = lambda q: f'ds_read_b64_tr_b16 v[{DATA(b, q)}:{DATA(b, q) + 1}], v{ADDR(b, q)}'
    for q in range(6):
        p(rd(q))
    a, r = lbl('r'), lbl('rr')
    p(f's_bitcmp1_b32 s{sQ}, {b}\ns_cbranch_scc1 {a}')
    p.raw(r + ':')
    LATE.append((a, [rd(6), rd(7), f's_bitcmp1_b32 s{sQ}, {10 + b}', f's_cbranch_scc0 {r}', rd(8), rd(9)], r))


def emit_mfmas(p, b):
    D = (D0, D1, D2)[b >> 2]
    sel = SEL + 4 * (b & 3)
    for i in range(3):
        p(mf32(D, DATA(b, 2 * i), sel, None if (b & 3) == 0 and i == 0 else D))
    a, r = lbl('m'), lbl('mr')
    p(f's_bitcmp1_b32 s{sQ}, {b}\ns_cbranch_scc1 {a}')
    p.raw(r + ':')
    g = Ins(mf32(D, DATA(b, 6), sel, D))
    g.ghost = True
    p.hist.append(g)
    LATE.append((a, [mf32(D, DATA(b, 6), sel, D), f's_bitcmp1_b32 s{sQ}, {10 + b}', f's_cbranch_scc0 {r}', mf32(D, DATA(b, 8), sel, D)], r))


def stage_plane(p, spl):
    a = lbl('sp')
    p(f'''
    s_mul_i32 s92, s{spl}, {TOK_PL}
    s_add_u32 s92, s92, {WS_TOK}
    s_mul_i32 s93, s{spl}, {L_PL}
    s_lshl_b32 s94, s{sW}, 10
    s_add_u32 s93, s93, s94
    s_mov_b32 m0, s93
    s_cmp_ge_u32 s{sW}, 2
    buffer_load_dwordx4 v{vK0}, {WSR}, s92 offen sc1 lds
    s_cbranch_scc1 {a}
    s_add_u32 m0, s93, 8192
    s_nop 0
    buffer_load_dwordx4 v{vK1}, {WSR}, s92 offen sc1 lds
    ''')
    p.vm.pop()
    p.raw(a + ':')


YA, YB, LA, LB, Y = 46, 47, 48, 49, 68


E0, E1 = 50, 51


def x_addr(p):
    p(f"""
    s_mov_b32 s92, 163840
    s_lshl_b32 s93, s{sW}, 2
    v_bfe_u32 v{vT2}, v1, 3, 2
    v_add_u32 v{vT2}, s93, v{vT2}
    v_mul_lo_u32 v{YB}, v{vT2}, s92
    v_mul_u32_u24 v{LB}, 320, v{vT2}
    v_and_b32 v{vT2}, 7, v1
    v_lshl_add_u32 v{YB}, v{vT2}, 4, v{YB}
    v_lshl_add_u32 v{LB}, v{vT2}, 3, v{LB}
    v_add_u32 v{LB}, {7 * L_PL + 256}, v{LB}
    s_lshl_b32 s82, s2, 7
    s_add_u32 s82, s82, {WS_X7 + 131072}
    v_lshlrev_b32 v{vGB}, 1, v{vGB}
    v_mov_b32 v{Z2 + 2}, v{vNON}
    v_mov_b32 v{Z2 + 3}, v{vNON}
    s_lshl_b32 s96, s2, 8
    s_lshr_b32 s97, s96, 2
    s_add_u32 s97, s97, {65536 - 256}
    s_mov_b32 s92, 81920
    v_mul_u32_u24 v{vT1}, 3277, v1
    v_lshrrev_b32 v{vT1}, 16, v{vT1}
    v_mul_u32_u24 v{vT2}, 20, v{vT1}
    v_sub_u32 v{vT2}, v1, v{vT2}
    v_add_u32 v{vT1}, s93, v{vT1}
    v_mul_lo_u32 v{vT1}, v{vT1}, s92
    v_mov_b32 v{vT0}, s97
    v_mov_b32 v{vT3}, s96
    v_cmp_gt_u32 vcc, 16, v{vT2}
    v_cndmask_b32 v{E0}, v{vT0}, v{vT3}, vcc
    s_mov_b64 s[80:81], vcc
    v_lshl_add_u32 v{E0}, v{vT2}, 4, v{E0}
    v_add_u32 v{E0}, v{E0}, v{vT1}
    v_cmp_gt_u32 vcc, 12, v1
    v_cndmask_b32 v{E1}, v{vT0}, v{vT3}, vcc
    v_lshl_add_u32 v{E1}, v1, 4, v{E1}
    s_add_u32 s93, s93, 3
    s_mul_i32 s93, s93, 81920
    s_add_u32 s93, s93, 64
    v_add_u32 v{E1}, s93, v{E1}
    """)


def emit_slow_unit(p):
    n0, n1, n2, ed, es, m0_, m1_ = 200, 201, 202, 203, 204, 205, 206
    X = 208
    p.label('L_slow')
    p.forget()
    for i in range(12):
        p(f'v_mov_b32 v{D0 + i}, 0')
    p(f'''
    s_lshl_b32 s96, s{sU}, 7
    v_lshl_add_u32 v{n0}, v1, 1, s96
    v_add_u32 v{n1}, 1, v{n0}
    s_lshl_b32 s96, s{sU}, 5
    s_add_u32 s96, s96, 8192
    v_add_u32 v{n2}, s96, v{vBL}
    v_lshlrev_b32 v{X + 8}, 2, v1
    s_mov_b32 s92, 0
    s_add_u32 s94, s{sU}, 256
    ''')
    p.label('L_slow_e')
    p(f'''
    buffer_load_dword v{ed}, v{X + 8}, s[{sDST}:{sDST + 3}], s92 offen
    buffer_load_dword v{es}, v{X + 8}, s[{sSRC}:{sSRC + 3}], s92 offen
    s_waitcnt vmcnt(0)
    v_lshrrev_b32 v{m0_}, 7, v{ed}
    v_lshrrev_b32 v{m1_}, 5, v{ed}
    v_cmp_eq_u32 s[96:97], s{sU}, v{m0_}
    v_cmp_eq_u32 vcc, s94, v{m1_}
    s_or_b64 s[96:97], s[96:97], vcc
    ''')
    p.label('L_slow_b')
    p(f'''
    s_cmp_eq_u64 s[96:97], 0
    s_cbranch_scc1 L_slow_n
    s_ff1_i32_b64 s95, s[96:97]
    s_bitset0_b64 s[96:97], s95
    v_readlane_b32 s98, v{ed}, s95
    v_readlane_b32 s99, v{es}, s95
    s_lshl_b32 s99, s99, 3
    s_add_u32 s99, s99, {TBL}
    v_mov_b32 v{X + 6}, s99
    ds_read_b64 v[{X + 4}:{X + 5}], v{X + 6}
    s_waitcnt lgkmcnt(0)
    v_lshlrev_b32 v{X}, 16, v{X + 4}
    v_and_b32 v{X + 1}, 0xffff0000, v{X + 4}
    v_lshlrev_b32 v{X + 2}, 16, v{X + 5}
    v_and_b32 v{X + 3}, 0xffff0000, v{X + 5}
    ''')
    for D, n in ((D0, n0), (D1, n1), (D2, n2)):
        p(f'v_cmp_eq_u32 vcc, s98, v{n}\ns_mov_b64 exec, vcc')
        for i in range(4):
            p(f'v_add_f32 v{D + i}, v{D + i}, v{X + i}')
        p('s_mov_b64 exec, -1')
    p('s_branch L_slow_b')
    p.label('L_slow_n')
    p('s_add_u32 s92, s92, 256\ns_cmp_lt_u32 s92, 640000\ns_cbranch_scc1 L_slow_e')
    p(f's_cmp_eq_u32 s{sK}, 7\ns_cbranch_scc1 L_slow7')
    for x in finish(D0, vD0, HA, GA) + finish(D1, vD1, HA + 2, GA + 2):
        p(x)
    poll(p, vFP, 0xff, f's{sFC}')
    xstore(p, [f'buffer_store_dwordx4 v[{GA}:{GA + 3}], v{vGA}, {WSR}, s{sGO} offen'])
    emit_flag_a(p)
    emit_tok_check(p)
    p('s_branch L_gath_done')
    p.label('L_slow7')
    p.auto = False
    for x in finish(D0, vD0, HA, GA)[:6] + finish(D1, vD1, HA + 2, GA)[:6]:
        p(x)
    x_addr(p)
    p(a7_store())
    p.auto = True
    p('s_branch L_gath7_done')


def emit_flag_a(p):
    p(f'v_mov_b32 v{vFV}, s{sFA}\ns_waitcnt vmcnt(0)')
    xstore(p, ['s_mov_b64 exec, 1', flag_store(vFO), 's_mov_b64 exec, -1'])


def x7_store(z, vaddr, so):
    return f'buffer_store_dwordx4 v[{z}:{z + 3}], v{vaddr}, {WSR}, s{so} offen sc1'


def emit_tok_check(p):
    a, r = lbl('tc'), lbl('tcr')
    p(f's_cmp_lg_u32 s87, 0\ns_cbranch_scc1 {a}')
    p.raw(r + ':')
    q = Prog()
    poll(q, vG0, 32, 's87', first_issued=True, res=vP2, so='s40', nap=Cfg.nap)
    LATE.append((a, [l.strip() for l in q.L], r))


def a7_store():
    return f'buffer_store_dwordx4 v[{HA}:{HA + 3}], v{vGA}, {WSR}, s{sTO} offen sc1'


def alt7(p, normal, alt):
    a, r = lbl('a7'), lbl('a7r')
    p(f's_cmp_eq_u32 s{sK}, 7\ns_cbranch_scc1 {a}')
    p.opt_begin()
    normal()
    p.opt_end(r)
    q = Prog()
    q.auto = False
    q('s_nop 7')
    alt(q)
    LATE.append((a, [l.strip() for l in q.L], r))


def emit_gather(p):
    if Cfg.prio_until:
        a = lbl('np')
        p(f's_cmp_lt_u32 s{sW}, 4\ns_cbranch_scc1 {a}\ns_setprio 1')
        p.raw(a + ':')
    emit_reads(p, 0)
    for b in range(10):
        if b < 9:
            emit_reads(p, b + 1)
        p(f's_waitcnt lgkmcnt({6 if b < 9 else 0})')
        emit_mfmas(p, b)
        if b == Cfg.tpoll_at:
            a, r = lbl('tp'), lbl('tpr')
            p(f's_cmp_lg_u32 s87, 0\ns_cbranch_scc1 {a}')
            p.raw(r + ':')
            LATE.append((a, [f's_cmp_eq_u32 s{sK}, 7', f's_cbranch_scc1 {r}', 's_mov_b32 exec_hi, 0', poll_load(vG0, vP2, 's40'), 's_mov_b64 exec, -1'], r))
        if b == 4:
            def n4():
                for x in finish(D0, vD0, HA, GA):
                    p(x)
                p(f's_mov_b64 exec, 0xff\n{poll_load(vFP, vPL)}\ns_mov_b64 exec, -1')

            def a4(q):
                for x in finish(D0, vD0, HA, GA)[:6]:
                    q(x)
                x_addr(q)
            alt7(p, n4, a4)
        if Cfg.prio_until and b == Cfg.prio_until:
            p('s_setprio 0')
        if b == 7:
            def n7():
                for x in finish(D1, vD1, HA + 2, GA + 2):
                    p(x)
                p('s_waitcnt vmcnt(0)')
                p._inopt = False
                poll(p, vFP, 0xff, f's{sFC}', first_issued=True)
                m = p._optmark
                xstore(p, [f'buffer_store_dwordx4 v[{GA}:{GA + 3}], v{vGA}, {WSR}, s{sGO} offen'])
                p._optmark = m

            def a7(q):
                for x in finish(D1, vD1, HA + 2, GA)[:6]:
                    q(x)
                q('s_cmp_lg_u32 s87, 0\ns_cselect_b32 exec_lo, -1, 0\ns_mov_b32 exec_hi, 0')
                q(poll_load(vG0, vP2, 's40'))
                q('s_mov_b64 exec, -1')
                q(a7_store())
            alt7(p, n7, a7)
        if b == 8:
            def n8():
                m = p._optmark
                emit_flag_a(p)
                p._optmark = m
            def n8b():
                n8()
                m = p._optmark
                emit_tok_check(p)
                p._optmark = m
            alt7(p, n8b, lambda q: None)


def emit_hops(p):
    p(f's_branch L_hop1')
    p.label('L_hop')
    p(f"""
    s_sub_u32 s93, s{sK}, 2
    buffer_store_dwordx4 v[{HA}:{HA + 3}], v{vGA}, {WSR}, s{sTO} offen sc1
    buffer_store_dwordx2 v[{HB}:{HB + 1}], v{vGB}, {WSR}, s{sTO} offen sc1
    """)
    p(f"""
    v_mov_b32 v{vFV}, s93
    s_cmp_lg_u32 s{sW}, 0
    s_cbranch_scc1 L_notf
    s_lshl_b32 s93, s93, 15
    s_mov_b64 exec, 1
    {flag_store(vTF, 's93')} sc1
    s_mov_b64 exec, -1
    """)
    p.raw('L_notf:')
    p(f"""
    s_cmp_lt_u32 s{sK}, {Cfg.lag + 1}
    s_cbranch_scc1 L_hop1
    s_sub_u32 s87, s{sK}, {Cfg.lag}
    s_cmp_eq_u32 s{sK}, 7
    s_cselect_b32 s87, 5, s87
    s_cmp_eq_u32 s{sW}, 7
    s_cselect_b32 s87, s87, 0
    s_lshl_b32 s92, s{sW}, 3
    s_add_u32 s92, s92, s{sK}
    s_cmp_eq_u32 s92, 54
    s_cselect_b32 s87, 3, s87
    s_lshl_b32 s40, s87, 15
    s_sub_u32 s95, s{sK}, {Cfg.lag + 1}
    s_branch L_stg
    """)
    p.raw('L_stgr:')
    q = Prog()
    q.auto = False
    q(f's_cmp_eq_u32 s95, 0\ns_cbranch_scc1 L_stg1')
    stage_plane(q, 95)
    q(f"""
    L_stg1:
    s_lshl_b32 s92, s{sK}, 8
    s_add_u32 s92, s92, s{sTASK}
    s_sub_u32 s92, s92, 0x400
    s_cmp_lt_u32 s92, 16
    s_cbranch_scc1 L_prepD
    s_cmp_lg_u32 s{sK}, 6
    s_cbranch_scc1 L_stgr
    s_lshl_b32 s92, s{sR}, 3
    s_add_u32 s92, s92, s{sW}
    s_mul_i32 s92, s92, 288
    s_add_u32 s92, s92, {WS_WF}
    v_lshlrev_b32 v{vT0}, 5, v1
    s_mov_b64 exec, 0x1ff
    buffer_load_dword v2, v{vT0}, {WSR}, s92 offen
    s_mov_b64 exec, -1
    """)
    LATE.append(('L_stg', [l.strip() for l in q.L], 'L_stgr'))
    p.label('L_hop1')
    p.auto = False
    p(f'''
    s_add_u32 s{sTO}, s{sTO}, {TOK_PL}
    s_mul_i32 s{sFC}, s{sK}, 3
    s_add_u32 s{sFA}, s{sFC}, 1
    s_add_u32 s{sFB}, s{sFC}, 2
    v_mov_b32 v{vFV}, s{sFC}
    ''')
    xstore(p, ['s_mov_b64 exec, 1', flag_store(vFO), 's_mov_b64 exec, -1'])
    p(f'''
    s_bitcmp1_b32 s{sQ}, 20
    s_cbranch_scc1 L_slow
    ''')
    emit_gather(p)
    p.label('L_gath_done', keep=True)
    p.forget()
    p(f'''
    s_cmp_eq_u32 s{sK}, 7
    s_cbranch_scc1 L_gath7_done
    s_mov_b64 exec, 0xff
    {poll_load(vFP, vPL)}
    s_mov_b64 exec, -1
    ''')
    for x in finish(D2, vD2, HB, GB):
        p(x)
    xstore(p, [f'buffer_store_dwordx2 v[{GB}:{GB + 1}], v{vGB}, {WSR}, s{sGO} offen'])
    stamp(p, 'gath', True)
    p('s_barrier')
    stamp(p, 'bar1', True)
    p(f'v_mov_b32 v{vFV}, s{sFB}\ns_waitcnt vmcnt(0)')
    xstore(p, ['s_mov_b64 exec, 1', flag_store(vFO), 's_mov_b64 exec, -1'])
    poll(p, vFP, 0xff, f's{sFA}', first_issued=True)
    stamp(p, 'pollA', True)

    def dA(i):
        p(f's_add_u32 m0, s{sLA}, s{sOFF + i}\ns_add_u32 s97, s{sGO}, s{sOFF + i}')
        p(f'buffer_load_dwordx4 v{vDA}, {WSR}, s97 offen sc1 lds')
    for i in range(Cfg.pollb_at):
        dA(i)
    p(f"""
    s_cmp_lt_u32 s{sW}, 4
    s_cselect_b32 exec_lo, 0xffff, 0
    s_mov_b32 exec_hi, 0
    {poll_load(vG0, vPL)}
    s_mov_b64 exec, -1
    """)
    for i in range(Cfg.pollb_at, 7):
        dA(i)
    p(f'ds_write_b128 v{vOWN}, v[{GA}:{GA + 3}]')
    p(f's_cmp_ge_u32 s{sW}, 4\ns_cbranch_scc1 L_nob\ns_waitcnt vmcnt({7 - Cfg.pollb_at})')
    poll(p, vG0, 0xffff, f's{sFB}', first_issued=True)
    stamp(p, 'pollB', True)
    p(f's_mov_b32 m0, s{sLB}')
    for j in range(4):
        p(f'buffer_load_dwordx4 v{vDB}, {WSR}, s{sGO} offen offset:{1024 * j} sc1 lds')
    p.raw('L_nob:')
    stamp(p, 'pp0', True)
    p(f's_cmp_lt_u32 s{sTASK}, 17\ns_cbranch_scc1 L_prepW')
    p.raw('L_prepB_back:')
    stamp(p, 'pp1', True)
    LATE.append(('L_prepW', [f's_cmp_eq_u32 s{sK}, 1', 's_cbranch_scc1 L_prepB', f's_cmp_eq_u32 s{sTASK}, 16', 's_cbranch_scc1 L_prepB_back',
                             f's_cmp_eq_u32 s{sK}, 2', 's_cbranch_scc1 L_prepB2',
                             f's_cmp_eq_u32 s{sK}, 3', 's_cbranch_scc1 L_prepC'], 'L_prepB_back'))
    p(f'''
    s_waitcnt vmcnt(0) lgkmcnt(0)
    L_bar2:
    s_barrier
    ''')
    stamp(p, 'bar2', True)
    p(f's_add_u32 s{sK}, s{sK}, 1\ns_branch L_hop')
    p.auto = True
    emit_slow_unit(p)
    emit_prep_blocks(p)
    emit_late(p)


def emit_handoff(p):
    p.label('L_gath7_done')
    p.forget()
    p.auto = False
    p(f's_mov_b32 s94, {WS_X7}\ns_nop 4')
    for x in finish(D2, vD2, Z2, GB)[:6]:
        p(x)
    p('s_waitcnt vmcnt(0)')
    p(x7_store(Z2, vGB, 94))
    stamp(p, 'gath7')
    emit_tok_check(p)
    p('s_barrier')
    for pl in range(7 - Cfg.lag, 6):
        p(f's_mov_b32 s95, {pl}')
        stage_plane(p, 95)
    p(f"""
    v_lshlrev_b32 v{vT2}, 4, v1
    s_lshl_b32 s92, s{sW}, 13
    s_add_u32 s93, s92, {WS_WF}
    s_add_u32 s92, s92, {L_W}
    s_mov_b32 m0, s92
    s_add_u32 s94, s93, 4096
    """)
    ldb = f'buffer_load_dwordx4 v[{Y + 8}:{Y + 11}], v{YB}, {WSR}, s82 offen sc1'
    for i in range(8):
        if i == 4:
            p('s_add_u32 m0, s92, 4096')
        if i == Cfg.x7_at:
            p(f's_mov_b32 exec_hi, 0\n{ldb}\ns_mov_b64 exec, -1')
        p(f'buffer_load_dwordx4 v{vT2}, {WSR}, s{93 + i // 4} offen offset:{1024 * (i % 4)} sc1 lds')
    p(f"""
    s_and_b32 s92, s{sW}, 3
    s_lshl_b32 s92, s92, 10
    s_add_u32 s93, s92, {WS_WF + 65536}
    s_add_u32 m0, s92, {L_LIN}
    v_mov_b32 v{vT3}, {WS_WF + 69632}
    buffer_load_dwordx4 v{vT2}, {WSR}, s93 offen sc1 lds
    buffer_load_dword v{vSWR}, v{vT3}, {WSR}, 0 offen sc1
    s_lshr_b32 s78, s2, 2
    s_and_b32 s79, s2, 3
    """)
    p.auto = True
    p.forget()
    emit_tf_setup(p, sW, 78, 79, 92)
    p('s_mov_b32 exec_hi, 0')
    if Cfg.x7_at > 7:
        p(ldb)
    p(f's_waitcnt vmcnt({max(0, 10 - Cfg.x7_at)})')
    chk = [f'v_xor_b32 v{vT0}, v{Y + 10}, v{vNON}', f'v_xor_b32 v{vT1}, v{Y + 11}, v{vNON}', f'v_or_b32 v{vT0}, v{vT0}, v{vT1}',
           f'v_cmp_ne_u32 vcc, 0, v{vT0}', 's_cbranch_vccnz L_x7again']
    for x in chk:
        p(x)
    LATE.append(('L_x7again', [f's_sleep {Cfg.nap}', ldb, f's_add_u32 s{sSPIN}, s{sSPIN}, 1', f's_cmp_gt_u32 s{sSPIN}, {SPIN_MAX}',
                               's_cbranch_scc1 L_end', 's_waitcnt vmcnt(0)'] + chk, 'L_x7ok'))
    p.label('L_x7ok')
    p(f'ds_write_b64 v{LB}, v[{Y + 8}:{Y + 9}]\ns_mov_b64 exec, -1')
    stamp(p, 'hint7')
    p(f"""
    s_mul_i32 s93, s{sW}, 1280
    s_mov_b32 s92, {WS_TOK + 6 * TOK_PL}
    s_mov_b32 s94, {WS_TOK + 7 * TOK_PL}
    s_add_u32 m0, s93, {6 * L_PL}
    s_nop 0
    buffer_load_dwordx4 v{E0}, {WSR}, s92 offen sc1 lds
    s_add_u32 m0, s93, {7 * L_PL}
    s_mov_b64 exec, s[80:81]
    buffer_load_dwordx4 v{E0}, {WSR}, s94 offen sc1 lds
    s_add_u32 m0, s93, {6 * L_PL + 1024}
    s_mov_b64 exec, 0xffff
    buffer_load_dwordx4 v{E1}, {WSR}, s92 offen sc1 lds
    s_add_u32 m0, s93, {7 * L_PL + 1024}
    s_mov_b64 exec, 0xfff
    buffer_load_dwordx4 v{E1}, {WSR}, s94 offen sc1 lds
    s_mov_b64 exec, -1
    """)
    if Cfg.st:
        p(f'''
        v_writelane_b32 v{vST}, s{sQ}, 22
        v_writelane_b32 v{vST}, s{sSLOW}, 23
        s_lshl_b32 s80, s2, 3
        s_add_u32 s80, s80, s{sW}
        s_lshl_b32 s80, s80, 8
        s_add_u32 s80, s80, {WS_OVF}
        v_lshl_add_u32 v{vT0}, v1, 2, s80
        buffer_store_dword v{vST}, v{vT0}, {WSR}, 0 offen
        ''')
    p('s_waitcnt vmcnt(0) lgkmcnt(0)\ns_barrier')
    if Cfg.st:
        p('s_memtime s[82:83]\ns_waitcnt lgkmcnt(0)')
    p(f's_cmp_ge_u32 s{sW}, 4\ns_cbranch_scc1 L_tf_two')
    emit_tf(p, 3, sOUT)
    p('s_branch L_tf_fin')
    emit_late(p)
    p.label('L_tf_two')
    p.forget()
    emit_tf(p, 2, sOUT)
    p.label('L_tf_fin')
    if Cfg.st:
        p(f'''
        s_memtime s[84:85]
        s_memrealtime s[86:87]
        s_waitcnt lgkmcnt(0)
        v_mov_b32 v2, s80
        v_mov_b32 v4, s82
        v_mov_b32 v5, s84
        v_mov_b32 v6, s86
        s_mov_b64 exec, 1
        buffer_store_dwordx2 v[4:5], v2, {WSR}, 0 offen offset:248
        buffer_store_dword v6, v2, {WSR}, 0 offen offset:80
        ''')


def gen(st=False, **kw):
    Cfg.st = st
    for k, v in kw.items():
        setattr(Cfg, k, v)
    STAMPS.clear()
    p = Prog()
    p.raw('; @launch grid=(256,1,1) block=(512,1,1) lds=163840')
    p.raw('.amdgcn_target "amdgcn-amd-amdhsa--gfx950"\n.text')
    p.kstart(KN)
    p.junk = {('v', 2), ('v', 3)}
    emit_prologue(p)
    emit_g1(p)
    emit_b2(p)
    emit_hops(p)
    p.junk = set()
    emit_handoff(p)
    p.label('L_end')
    p('s_endpgm')
    p.raw('L_code_end:')
    p.raw('.section .rodata,"a"\n.p2align 6')
    p.kdesc(KN, vgpr=256)
    if st:
        json.dump(STAMPS, open(kw.get('names', 'stamps.json'), 'w'))
    print('nops', p.nnop, 'lines', len(p.L))
    return p.text()


if __name__ == '__main__':
    import copy
    base = {k: v for k, v in vars(Cfg).items() if not k.startswith('__')}

    def out(name, st, **kw):
        for k, v in base.items():
            setattr(Cfg, k, v)
        open(name, 'w').write(gen(st, names=name + '.json', **kw))
    if len(sys.argv) > 1:
        for spec in sys.argv[1:]:
            name, _, rest = spec.partition(':')
            kw = dict((x.split('=')[0], eval(x.split('=')[1])) for x in rest.split(',') if x)
            out(name, True, hopst=('bar2',), **kw)
    else:
        out('i_st.s', True)
        out('i_st1.s', True, hopst=('bar2',))
        out('i_slow8.s', False, force_slow=8)
        out('i.s', False)
```

```python
from prog import *

WS_FLAGS = 0x0
WS_WF = 0x40000
WS_G = 0x100000
G_PAR = 0x400000
WS_D = 0x400000
WS_TOK = 0x800000
TOK_PL = 32 * 81920
WS_OVF = 0x3000000

L_W = 82176
L_LIN = L_W + 65536
L_SCR = L_LIN + 4096
L_TB = 0
L_PL = 10256

ONE2 = 0x3f803f80


def emit_lane_consts_prep(p, vl, va, tmp):
    p(f'''
    v_and_b32 v{tmp}, 12, v{vl}
    v_lshlrev_b32 v{tmp}, 9, v{tmp}
    v_and_b32 v{va}, 3, v{vl}
    v_lshl_add_u32 v{va}, v{va}, 8, v{tmp}
    v_lshrrev_b32 v{tmp}, 4, v{vl}
    v_lshl_add_u32 v{va}, v{tmp}, 4, v{va}
    ''')


def emit_i16(p, vl, dst, t0, t1):
    p(f'''
    v_and_b32 v{t0}, 15, v{vl}
    v_lshrrev_b32 v{t1}, 4, v{vl}
    v_lshlrev_b32 v{t1}, 2, v{t1}
    v_sub_u32 v{t0}, v{t0}, v{t1}          ; j = n - 4g
    v_mov_b32 v{t1}, 0x3f80
    v_cmp_eq_u32 vcc, 0, v{t0}
    v_cndmask_b32 v{dst}, 0, v{t1}, vcc
    v_cmp_eq_u32 vcc, 2, v{t0}
    v_cndmask_b32 v{dst + 1}, 0, v{t1}, vcc
    v_mov_b32 v{t1}, 0x3f800000
    v_cmp_eq_u32 vcc, 1, v{t0}
    v_cndmask_b32 v{dst}, v{dst}, v{t1}, vcc
    v_cmp_eq_u32 vcc, 3, v{t0}
    v_cndmask_b32 v{dst + 1}, v{dst + 1}, v{t1}, vcc
    ''')


def phi_base(b):
    return 32 * (b >> 1) + 4 * (b & 1)


def emit_prep(p, stask, vl, V, sA, sB, sWS, sT, tag, st_flags=''):
    va = V
    t0, t1 = V + 1, V + 2
    I16 = V + 4
    BF = V + 8
    D = V + 24
    RA = V + 56
    emit_lane_consts_prep(p, vl, va, t0)
    p(f'''
    s_and_b32 s{sT}, s{stask}, 7
    s_lshr_b32 s{sT + 1}, s{sT}, 1
    s_lshl_b32 s{sT + 1}, s{sT + 1}, 5
    s_and_b32 s{sT + 2}, s{sT}, 1
    s_lshl_b32 s{sT + 2}, s{sT + 2}, 2
    s_add_u32 s{sT + 1}, s{sT + 1}, s{sT + 2}
    s_cmp_ge_u32 s{stask}, 8
    s_cbranch_scc1 L_prepW{tag}
    s_lshl_b32 s{sT + 1}, s{sT + 1}, 8
    ''')
    for e4 in range(4):
        p(f'buffer_load_dwordx4 v[{BF + 4 * e4}:{BF + 4 * e4 + 3}], v{va}, s[{sB}:{sB + 3}], s{sT + 1} offen offset:{64 * e4}')
    p('s_waitcnt vmcnt(0)')
    p(f's_branch L_prepC{tag}')
    p.label(f'L_prepW{tag}')
    p(f's_lshl_b32 s{sT + 1}, s{sT + 1}, 1')
    for et in range(8):
        p(f's_add_u32 s{sT + 2}, s{sT + 1}, {phi_base(et) * 256}')
        p(f'buffer_load_dwordx2 v[{RA + 2 * et}:{RA + 2 * et + 1}], v{va}, s[{sB}:{sB + 3}], s{sT + 2} offen')
    emit_i16(p, vl, I16, t0, t1)
    for et in range(8):
        p(f'v_mfma_f32_16x16x16_bf16 v[{D + 4 * et}:{D + 4 * et + 3}], v[{RA + 2 * et}:{RA + 2 * et + 1}], v[{I16}:{I16 + 1}], 0')
    for et in range(8):
        p(f'v_cvt_pk_bf16_f32 v{BF + 2 * et}, v{D + 4 * et}, v{D + 4 * et + 1}')
        p(f'v_cvt_pk_bf16_f32 v{BF + 2 * et + 1}, v{D + 4 * et + 2}, v{D + 4 * et + 3}')
    p('s_waitcnt vmcnt(0)')
    p.label(f'L_prepC{tag}')

    def loadA(b):
        p(f's_mov_b32 s{sT + 2}, {phi_base(b) * 256}')
        for e4 in range(4):
            r = RA + 16 * (b & 1) + 4 * e4
            p(f'buffer_load_dwordx4 v[{r}:{r + 3}], v{va}, s[{sA}:{sA + 3}], s{sT + 2} offen offset:{64 * e4}')
    loadA(0)
    for b in range(8):
        if b + 1 < 8:
            loadA(b + 1)
        for e4 in range(4):
            r = RA + 16 * (b & 1) + 4 * e4
            c = '0' if e4 == 0 else f'v[{D + 4 * b}:{D + 4 * b + 3}]'
            p(f'v_mfma_f32_16x16x32_bf16 v[{D + 4 * b}:{D + 4 * b + 3}], v[{r}:{r + 3}], v[{BF + 4 * e4}:{BF + 4 * e4 + 3}], {c}')
    p(f'v_add_f32 v{t0}, v{D}, v{D + 1}')
    p(f'v_add_f32 v{t1}, v{D + 2}, v{D + 3}')
    for i in range(4, 32, 2):
        p(f'v_add_f32 v{t0}, v{t0}, v{D + i}')
        p(f'v_add_f32 v{t1}, v{t1}, v{D + i + 1}')
    p(f'''
    v_add_f32 v{t0}, v{t0}, v{t1}
    v_mov_b32 v{t1}, v{t0}
    v_permlane16_swap_b32 v{t0}, v{t1}
    v_add_f32 v{t0}, v{t0}, v{t1}
    v_mov_b32 v{t1}, v{t0}
    v_permlane32_swap_b32 v{t0}, v{t1}
    v_add_f32 v{t0}, v{t0}, v{t1}
    v_mul_f32 v{t0}, 0x3c000000, v{t0}
    ''')
    for i in range(32):
        p(f'v_sub_f32 v{D + i}, v{D + i}, v{t0}')
    for i in range(16):
        p(f'v_cvt_pk_bf16_f32 v{BF + i}, v{D + 2 * i}, v{D + 2 * i + 1}')
    p(f'''
    v_lshlrev_b32 v{t0}, 4, v{vl}
    s_lshl_b32 s{sT + 2}, s{stask}, 12
    s_add_u32 s{sT + 2}, s{sT + 2}, {WS_WF}
    ''')
    for s4 in range(4):
        p(f'buffer_store_dwordx4 v[{BF + 4 * s4}:{BF + 4 * s4 + 3}], v{t0}, s[{sWS}:{sWS + 3}], s{sT + 2} offen offset:{1024 * s4} {st_flags}')


def emit_prep_lin(p, vl, V, sWR, sWS, sT, st_flags=''):
    t0, t1 = V, V + 1
    F = V + 4
    O = V + 20
    D = V + 24
    p(f'''
    v_lshrrev_b32 v{t0}, 4, v{vl}
    v_lshlrev_b32 v{t0}, 4, v{t0}
    ''')
    for s4 in range(4):
        p(f'buffer_load_dwordx4 v[{F + 4 * s4}:{F + 4 * s4 + 3}], v{t0}, s[{sWR}:{sWR + 3}], 0 offen offset:{64 * s4} {OPT.get("outf", "")}')
    p(f'''
    v_and_b32 v{t1}, 3, v{vl}
    v_cmp_eq_u32 s[{sT}:{sT + 1}], 1, v{t1}
    v_cmp_eq_u32 vcc, 0, v{t1}
    v_mov_b32 v{t1}, 0x{ONE2:x}
    ''')
    for i in range(4):
        p(f'v_mov_b32 v{O + i}, 0x{ONE2:x}')
    p(f'v_cndmask_b32 v{t1}, 0, v{t1}, vcc')
    for i in range(16):
        p(f'v_cndmask_b32 v{F + i}, v{t1}, v{F + i}, s[{sT}:{sT + 1}]')
    for s4 in range(4):
        c = '0' if s4 == 0 else f'v[{D}:{D + 3}]'
        p(f'v_mfma_f32_16x16x32_bf16 v[{D}:{D + 3}], v[{F + 4 * s4}:{F + 4 * s4 + 3}], v[{O}:{O + 3}], {c}')
    p(f'''
    v_lshlrev_b32 v{t0}, 4, v{vl}
    s_mov_b32 s{sT + 2}, {WS_WF + 65536}
    ''')
    for s4 in range(4):
        p(f'buffer_store_dwordx4 v[{F + 4 * s4}:{F + 4 * s4 + 3}], v{t0}, s[{sWS}:{sWS + 3}], s{sT + 2} offen offset:{1024 * s4} {st_flags}')
    p(f'''
    v_lshlrev_b32 v{t0}, 2, v{vl}
    s_mov_b32 s{sT + 2}, {WS_WF + 69632}
    buffer_store_dword v{D + 1}, v{t0}, s[{sWS}:{sWS + 3}], s{sT + 2} offen {st_flags}
    ''')


vTID, vLANE, vN, vT, vW, vSW, vSQ, vSG, vSO, vOUT, vSWR = 0, 1, 2, 3, 4, 5, 6, 7, 8, 9, 10
vX0, vX1, vX2, vX3 = 11, 12, 13, 14
vONES = 16
TOKN = lambda j: 20 + 16 * j
AF = lambda j: 68 + 32 * j
SM = lambda j: 164 + 16 * j
RING = 212
UACC = 244
sM1, sM2, sM3, sVALID, sCOL = 60, 62, 64, 66, 68
sC128, sEPS, sSCL, sL2E = 74, 75, 76, 77


def emit_tf_setup(p, swave, su, sqd, sT):
    n, g = vX0, vX1
    p(f'''
    v_and_b32 v{n}, 15, v{vLANE}
    v_lshrrev_b32 v{g}, 4, v{vLANE}
    v_and_b32 v{vX2}, 7, v{n}
    v_mul_u32_u24 v{vX2}, {L_PL}, v{vX2}
    v_mul_u32_u24 v{vX3}, 640, v{g}
    v_add_u32 v{vN}, v{vX2}, v{vX3}
    v_lshrrev_b32 v{vX2}, 3, v{n}
    v_lshl_add_u32 v{vN}, v{vX2}, 3, v{vN}
    s_lshl_b32 s{sT}, s{swave}, 4
    s_add_u32 s{sT}, s{sT}, {L_TB}
    v_add_u32 v{vN}, s{sT}, v{vN}
    v_bfe_u32 v{vX2}, v{vLANE}, 2, 3
    v_mul_u32_u24 v{vX2}, {L_PL}, v{vX2}
    v_and_b32 v{vX3}, 3, v{vLANE}
    v_mul_u32_u24 v{vX3}, 640, v{vX3}
    v_add_u32 v{vT}, v{vX2}, v{vX3}
    v_lshrrev_b32 v{vX2}, 5, v{vLANE}
    v_lshl_add_u32 v{vT}, v{vX2}, 3, v{vT}
    v_add_u32 v{vT}, s{sT}, v{vT}
    v_lshlrev_b32 v{vW}, 4, v{vLANE}
    v_add_u32 v{vW}, {L_W}, v{vW}
    ; scratch
    s_mul_i32 s{sT}, s{swave}, 768
    s_add_u32 s{sT}, s{sT}, {L_SCR}
    v_lshl_add_u32 v{vSQ}, v{n}, 2, s{sT}
    v_lshl_add_u32 v{vSG}, v{g}, 4, s{sT}
    v_xor_b32 v{vX2}, 1, v{g}
    v_lshl_add_u32 v{vSO}, v{vX2}, 4, s{sT}
    v_lshrrev_b32 v{vX2}, 2, v{n}
    v_cmp_eq_u32 vcc, v{vX2}, v{g}
    v_add_u32 v{vX3}, 128, v{vSQ}
    v_cndmask_b32 v{vSW}, v{vX3}, v{vSQ}, vcc
    ; masks
    v_and_b32 v{vX2}, 3, v{n}
    v_cmp_eq_u32 s[{sM1}:{sM1 + 1}], 1, v{vX2}
    v_cmp_eq_u32 s[{sM2}:{sM2 + 1}], 2, v{vX2}
    v_cmp_eq_u32 s[{sM3}:{sM3 + 1}], 3, v{vX2}
    v_lshrrev_b32 v{vX2}, 3, v{n}
    v_lshrrev_b32 v{vX3}, 1, v{g}
    v_cmp_eq_u32 s[{sVALID}:{sVALID + 1}], v{vX2}, v{vX3}
    v_sub_u32 v{vX2}, v{n}, v{vX3}
    v_cmp_eq_u32 s[{sCOL}:{sCOL + 1}], 0, v{vX2}
    v_cmp_eq_u32 s[{sCOL + 2}:{sCOL + 3}], 2, v{vX2}
    v_cmp_eq_u32 s[{sCOL + 4}:{sCOL + 5}], 4, v{vX2}
    ; output address: column n -> local node nu = 2*(w + 8*(n>>1)) + (n&1)
    v_lshrrev_b32 v{vX2}, 1, v{n}
    v_lshlrev_b32 v{vX2}, 4, v{vX2}
    v_and_b32 v{vX3}, 1, v{n}
    v_add_u32 v{vX2}, v{vX2}, v{vX3}
    s_lshl_b32 s{sT}, s{swave}, 1
    v_add_u32 v{vX2}, s{sT}, v{vX2}
    s_lshl_b32 s{sT}, s{su}, 7
    s_lshl_b32 s{sT + 1}, s{sqd}, 5
    s_add_u32 s{sT}, s{sT}, s{sT + 1}
    s_lshr_b32 s{sT + 1}, s{sT}, 2
    s_add_u32 s{sT + 1}, s{sT + 1}, {8192 - 32}
    v_mov_b32 v{vX3}, s{sT + 1}
    v_mov_b32 v{vOUT}, s{sT}
    v_cmp_gt_u32 vcc, 32, v{vX2}
    v_cndmask_b32 v{vX3}, v{vX3}, v{vOUT}, vcc
    v_add_u32 v{vX3}, v{vX3}, v{vX2}
    v_lshlrev_b32 v{vX3}, 8, v{vX3}
    v_lshl_add_u32 v{vX3}, v{g}, 4, v{vX3}
    v_mov_b32 v{vOUT}, 0x40000000
    v_cmp_gt_u32 vcc, 40, v{vX2}
    v_cndmask_b32 v{vOUT}, v{vOUT}, v{vX3}, vcc
    s_mov_b32 s{sC128}, 0x3c000000
    s_mov_b32 s{sEPS}, 0x3727c5ac
    s_mov_b32 s{sSCL}, 0x3e0293ee
    s_mov_b32 s{sL2E}, 0x3fb8aa3b
    ''')
    for i in range(4):
        p(f'v_mov_b32 v{vONES + i}, 0x{ONE2:x}')
    emit_i16(p, vLANE, SM(0) + 12, vX2, vX3)
    for j in (1, 2):
        p(f'v_mov_b32 v{SM(j) + 12}, v{SM(0) + 12}\nv_mov_b32 v{SM(j) + 13}, v{SM(0) + 13}')


def mf32(d, a, b, c):
    cc = '0' if c is None else f'v[{c}:{c + 3}]'
    return f'v_mfma_f32_16x16x32_bf16 v[{d}:{d + 3}], v[{a}:{a + 3}], v[{b}:{b + 3}], {cc}'


def mf16(d, a, b, c):
    cc = '0' if c is None else f'v[{c}:{c + 3}]'
    return f'v_mfma_f32_16x16x16_bf16 v[{d}:{d + 3}], v[{a}:{a + 1}], v[{b}:{b + 1}], {cc}'


def cvt(d, a):
    return f'v_cvt_pk_bf16_f32 v{d}, v{a}, v{a + 1}'


TFST = [None]


OPT = {'pk3': 0, 'pk5': 0, 'bw': 1}


def unpk(x):
    import re
    if not isinstance(x, str) or not x.startswith('v_pk_'):
        return [x]
    op = x.split()[0][5:-4]
    regs = [int(m) for m in re.findall(r'v\[(\d+):', x)]
    n = len(regs) - 1
    get = lambda k, d: [int(c) for c in re.search(k + r':\[([\d,]+)\]', x).group(1).split(',')] if re.search(r'(^| )' + k + r':', x) else [d] * n
    lo, hi, ng = get('op_sel', 0), get('op_sel_hi', 1), get('neg_lo', 0)
    out = []
    for h, sel in ((0, lo), (1, hi)):
        src = [('-' if ng[i] else '') + f'v{regs[1 + i] + sel[i]}' for i in range(n)]
        o = op
        if op == 'add' and src[1].startswith('-'):
            o, src = 'sub', [src[0], src[1][1:]]
        out.append(f'v_{o}_f32 v{regs[0] + h}, ' + ', '.join(src))
    return out


def early(blk, nxt):
    out = []
    for i, x in enumerate(blk):
        out.append(x)
        if i < len(nxt):
            out.append(nxt[i])
    return out


def put(p, x):
    if isinstance(x, tuple):
        p._waits(Ins(f'v_mov_b32 v{x[1]}, v{x[1]}'))
    else:
        p(x)


PRIO = {}


def tfs(p, i, nt=None):
    if nt and (nt, i) in PRIO:
        p(f's_setprio {PRIO[nt, i]}')
    if TFST[0]:
        p.auto = False
        p.raw(f'    s_memtime s[{TFST[0] + 2 * i}:{TFST[0] + 2 * i + 1}]')
        p.hist.append(1)
        p.auto = True


def emit_tf(p, nt, sOUT):
    T = range(nt)
    S = lambda j: SM(j)
    RK = lambda j: SM(j) + 4
    MK = lambda j: SM(j) + 8
    BS = lambda j: SM(j) + 12
    if (nt, -1) in PRIO:
        p(f's_setprio {PRIO[nt, -1]}')
    for j in T:
        for s4 in range(4):
            for h in range(2):
                r = TOKN(j) + 4 * s4 + 2 * h
                p(f'ds_read_b64 v[{r}:{r + 1}], v{vN} offset:{128 * j + 2560 * s4 + 320 * h}')

    def wread(fr):
        r = RING + 4 * (fr % 8)
        return f'ds_read_b128 v[{r}:{r + 3}], v{vW} offset:{1024 * fr}'
    for fr in range(4):
        p(wread(fr))
    G1 = lambda j: AF(j) + 8
    S1 = lambda j: AF(j) + 12
    for j in T:
        for s4 in range(4):
            p(mf32(G1(j), TOKN(j) + 4 * s4, TOKN(j) + 4 * s4, None if s4 == 0 else G1(j)))
        for s4 in range(4):
            p(mf32(S1(j), vONES, TOKN(j) + 4 * s4, None if s4 == 0 else S1(j)))
    tfs(p, 0, nt)
    RQ = lambda j: AF(j) + 24
    st1 = []
    for j in T:
        g, s = G1(j), S1(j)
        st1 += [
            f'v_cndmask_b32 v{g}, v{g}, v{g + 1}, s[{sM1}:{sM1 + 1}]',
            f'v_mul_f32 v{s}, s{sC128}, v{s}',
            f'v_cndmask_b32 v{g}, v{g}, v{g + 2}, s[{sM2}:{sM2 + 1}]',
            f'v_mul_f32 v{s + 1}, v{s}, v{s}',
            f'v_cndmask_b32 v{g}, v{g}, v{g + 3}, s[{sM3}:{sM3 + 1}]',
            f'v_fma_f32 v{g}, v{g}, s{sC128}, -v{s + 1}',
            f'v_max_f32 v{g}, 0, v{g}',
            f'v_add_f32 v{g}, s{sEPS}, v{g}',
            f'v_rsq_f32 v{g}, v{g}',
            f'v_mul_f32 v{s}, v{s}, v{g}',
            f'ds_write2_b32 v{vSW}, v{g}, v{s} offset0:{64 * j} offset1:{64 * j + 16}',
            f'ds_read_b32 v{RQ(j)}, v{vSQ} offset:{256 * j}',
            f'ds_read_b128 v[{RK(j)}:{RK(j) + 3}], v{vSG} offset:{256 * j}',
            f'ds_read_b128 v[{MK(j)}:{MK(j) + 3}], v{vSG} offset:{256 * j + 64}',
        ]
    PA = lambda j, s, h: AF(j) + 8 * (s & 1) + 4 * h
    PF = lambda j, s: AF(j) + 16 + 4 * (s & 1)
    RHO = lambda j: AF(j) + 28
    blocks = []
    for s in range(4):
        for h in range(2):
            a = 2 * s + h
            blk = []
            nxt = [wread(4 * (a + 1) + e) for e in range(4)]
            for j in T:
                for e in range(4):
                    blk.append(mf32(PA(j, s, h), RING + 4 * ((4 * a + e) % 8), TOKN(j) + 4 * e, None if e == 0 else PA(j, s, h)))
            blocks.append([('need', RING + 4 * ((4 * a + 3) % 8))] + early(blk, nxt) if OPT['bw'] else merge(blk, nxt))

    def post_pair(s):
        o = []
        for j in T:
            o += [cvt(PF(j, s), PA(j, s, 0)), cvt(PF(j, s) + 1, PA(j, s, 0) + 2), cvt(PF(j, s) + 2, PA(j, s, 1)), cvt(PF(j, s) + 3, PA(j, s, 1) + 2)]
        m = []
        for j in T:
            m += [mf32(S(j), TOKN(j) + 4 * s, PF(j, s), None if s == 0 else S(j)),
                  mf32(RHO(j), vONES, PF(j, s), None if s == 0 else RHO(j))]
        return o, m
    seq = merge(blocks[0] + blocks[1], st1)
    for s in range(1, 4):
        o, m = post_pair(s - 1)
        seq += merge(blocks[2 * s], [None] * 2 + o) + m + blocks[2 * s + 1]
    for n_, x in enumerate(seq):
        if n_ == len(seq) // 2 and (nt, 0.5) in PRIO:
            p(f's_setprio {PRIO[nt, 0.5]}')
        if x:
            put(p, x)
    tfs(p, 1, nt)
    o3, m3 = post_pair(3)
    sm = []
    for j in T:
        x0, x1 = AF(j), AF(j) + 1
        y0, y1 = AF(j) + 4, AF(j) + 5
        s_, rk, mk = S(j), RK(j), MK(j)
        pr = lambda r: f'v[{r}:{r + 1}]'
        q = [f'v_pk_mul_f32 {pr(s_)}, {pr(s_)}, {pr(rk)}', f'v_pk_mul_f32 {pr(s_ + 2)}, {pr(s_ + 2)}, {pr(rk + 2)}']
        for r in (0, 2):
            q.append(f'v_pk_fma_f32 {pr(s_ + r)}, {pr(RHO(j))}, {pr(mk + r)}, {pr(s_ + r)} op_sel_hi:[0,1,1] neg_lo:[1,0,0] neg_hi:[1,0,0]')
        q += [
            f'v_mul_f32 v{y0}, s{sSCL}, v{RQ(j)}',
            f'v_max3_f32 v{x0}, v{s_}, v{s_ + 1}, v{s_ + 2}',
            f'v_max_f32 v{x0}, v{x0}, v{s_ + 3}',
            f'v_mov_b32 v{x1}, v{x0}',
            f'v_permlane16_swap_b32 v{x0}, v{x1}',
            f'v_max_f32 v{x0}, v{x0}, v{x1}',
            f'v_mul_f32 v{y1}, v{x0}, v{y0}',
        ]
        for r in (0, 2):
            q.append(f'v_pk_fma_f32 {pr(s_ + r)}, {pr(s_ + r)}, {pr(y0)}, {pr(y0)} op_sel:[0,0,1] op_sel_hi:[1,0,1] neg_lo:[0,0,1] neg_hi:[0,0,1]')
        for r in range(4):
            q.append(f'v_exp_f32 v{s_ + r}, v{s_ + r}')
        q += [
            f'v_pk_add_f32 {pr(x0)}, {pr(s_)}, {pr(s_ + 2)}',
            f'v_pk_mul_f32 {pr(s_)}, {pr(s_)}, {pr(rk)}',
            f'v_add_f32 v{x0}, v{x0}, v{x1}',
            f'v_pk_mul_f32 {pr(s_ + 2)}, {pr(s_ + 2)}, {pr(rk + 2)}',
            f'v_mov_b32 v{x1}, v{x0}',
            f'v_permlane16_swap_b32 v{x0}, v{x1}',
            f'v_add_f32 v{x0}, v{x0}, v{x1}',
            f'v_rcp_f32 v{x0}, v{x0}',
        ]
        for r in (0, 2):
            q.append(f'v_pk_mul_f32 {pr(s_ + r)}, {pr(s_ + r)}, {pr(x0)} op_sel_hi:[1,0]')
        q += [cvt(x0, s_), cvt(x1, s_ + 2),
              f'v_cndmask_b32 v{BS(j) + 2}, 0, v{x0}, s[{sVALID}:{sVALID + 1}]',
              f'v_cndmask_b32 v{BS(j) + 3}, 0, v{x1}, s[{sVALID}:{sVALID + 1}]']
        sm.append(q if OPT['pk3'] else sum((unpk(x) for x in q), []))
    smx = []
    for i in range(len(sm[0])):
        for j in T:
            smx.append(sm[j][i])

    def tread(j, t):
        r = AF(j) + 4 * t
        return f'ds_read_b64_tr_b16 v[{r}:{r + 1}], v{vT} offset:{128 * j + 2560 * (t >> 1) + 320 * (t & 1)}'
    ublk = []
    pend = []
    kk = 0
    for t in range(8):
        if t < 7:
            nxt = [wread(32 + 4 * (t + 1) + e) for e in range(4)]
        else:
            nxt = [f'v_add_u32 v{vW}, 65536, v{vW}'] + \
                  [f'ds_read_b128 v[{RING + 4 * e}:{RING + 4 * e + 3}], v{vW} offset:{1024 * e}' for e in range(4)]
        blk = []
        for j in T:
            ua = UACC + 4 * (kk % 3)
            kk += 1
            blk += [mf32(ua, TOKN(j) + 4 * e, RING + 4 * ((32 + 4 * t + e) % 8), None if e == 0 else ua) for e in range(4)]
            pend.append([cvt(AF(j) + 4 * t + 2, ua), cvt(AF(j) + 4 * t + 3, ua + 2)])
            if len(pend) > 2:
                blk += pend.pop(0)
        ublk.append([('need', RING + 4 * ((32 + 4 * t + 3) % 8))] + early(blk, nxt) if OPT['bw'] else merge(blk, nxt))
    tail = sum(pend, [])
    seq = merge(ublk[0], [None] * 2 + o3) + m3
    rest = sum(ublk[1:6], [])
    seq += merge(rest, [None] * 6 + smx)
    trs = [tread(j, t) for t in range(8) for j in T]
    seq += merge(ublk[6] + ublk[7], trs)
    seq += tail
    for n_, x in enumerate(seq):
        if n_ == len(seq) // 2 and (nt, 1.5) in PRIO:
            p(f's_setprio {PRIO[nt, 1.5]}')
        if x:
            put(p, x)
    tfs(p, 2, nt)
    for j in T:
        p(mf16(RK(j), BS(j) + 2, BS(j), None))
    OA = [UACC, UACC + 4, UACC + 8, RING + 16, RING + 20, RING + 24, RING + 28]
    k = 0
    pend = []
    seq = []
    for t in range(8):
        for j in T:
            d = OA[k % 7]
            k += 1
            seq.append(mf32(d, AF(j) + 4 * t, BS(j), None))
            pend.append([cvt(TOKN(j) + 2 * t, d), cvt(TOKN(j) + 2 * t + 1, d + 2)])
            if len(pend) > 4:
                seq += pend.pop(0)
    seq += sum(pend, [])
    for j in T:
        seq += [cvt(RK(j), RK(j)), cvt(RK(j) + 1, RK(j) + 2)]
    for x in seq:
        p(x)
    for j in T:
        for s4 in range(4):
            p(mf32(S(j), TOKN(j) + 4 * s4, TOKN(j) + 4 * s4, None if s4 == 0 else S(j)))
        for s4 in range(4):
            p(mf32(MK(j), RING + 4 * s4, TOKN(j) + 4 * s4, None if s4 == 0 else MK(j)))
    tfs(p, 3, nt)
    ch = []
    for j in T:
        g, l = S(j), MK(j)
        x0, x1 = RK(j) + 2, RK(j) + 3
        ch.append([
            f'v_cndmask_b32 v{g}, v{g}, v{g + 1}, s[{sM1}:{sM1 + 1}]',
            f'v_mul_f32 v{l}, s{sC128}, v{l}',
            f'v_cndmask_b32 v{g}, v{g}, v{g + 2}, s[{sM2}:{sM2 + 1}]',
            f'v_mul_f32 v{l + 2}, v{l}, v{l}',
            f'v_cndmask_b32 v{g}, v{g}, v{g + 3}, s[{sM3}:{sM3 + 1}]',
            f'v_fma_f32 v{g}, v{g}, s{sC128}, -v{l + 2}',
            f'v_fma_f32 v{l + 1}, -v{l}, v{vSWR}, v{l + 1}',
            f'v_max_f32 v{g}, 0, v{g}',
            f'v_add_f32 v{g}, s{sEPS}, v{g}',
            f'v_rsq_f32 v{g}, v{g}',
            f'v_mul_f32 v{l + 1}, s{sL2E}, v{l + 1}',
            f'v_mul_f32 v{g}, v{g}, v{l + 1}',
            f'ds_write_b32 v{vSW}, v{g} offset:{256 * j}',
            f'ds_read_b128 v[{g}:{g + 3}], v{vSG} offset:{256 * j}',
            f'ds_read_b128 v[{l}:{l + 3}], v{vSO} offset:{256 * j}',
            f'v_max3_f32 v{x0}, v{g}, v{g + 1}, v{g + 2}',
            f'v_max3_f32 v{x1}, v{l}, v{l + 1}, v{l + 2}',
            f'v_max3_f32 v{x0}, v{x0}, v{g + 3}, v{l + 3}',
            f'v_max_f32 v{x0}, v{x0}, v{x1}',
            f'v_pk_add_f32 v[{g}:{g + 1}], v[{g}:{g + 1}], v[{x0}:{x1}] op_sel_hi:[1,0] neg_lo:[0,1] neg_hi:[0,1]',
            f'v_pk_add_f32 v[{g + 2}:{g + 3}], v[{g + 2}:{g + 3}], v[{x0}:{x1}] op_sel_hi:[1,0] neg_lo:[0,1] neg_hi:[0,1]',
            f'v_exp_f32 v{g}, v{g}',
            f'v_exp_f32 v{g + 1}, v{g + 1}',
            f'v_exp_f32 v{g + 2}, v{g + 2}',
            f'v_exp_f32 v{g + 3}, v{g + 3}',
            f'v_pk_add_f32 v[{x0}:{x1}], v[{g}:{g + 1}], v[{g + 2}:{g + 3}]',
            f'v_add_f32 v{x0}, v{x0}, v{x1}',
            f'v_mov_b32 v{x1}, v{x0}',
            f'v_permlane16_swap_b32 v{x0}, v{x1}',
            f'v_add_f32 v{x0}, v{x0}, v{x1}',
            f'v_rcp_f32 v{x0}, v{x0}',
            f'v_pk_mul_f32 v[{g}:{g + 1}], v[{g}:{g + 1}], v[{x0}:{x1}] op_sel_hi:[1,0]',
            f'v_pk_mul_f32 v[{g + 2}:{g + 3}], v[{g + 2}:{g + 3}], v[{x0}:{x1}] op_sel_hi:[1,0]',
            cvt(x0, g), cvt(x1, g + 2),
            f'v_cndmask_b32 v{l}, 0, v{x0}, s[{sCOL + 2 * j}:{sCOL + 2 * j + 1}]',
            f'v_cndmask_b32 v{l + 1}, 0, v{x1}, s[{sCOL + 2 * j}:{sCOL + 2 * j + 1}]',
            mf16(g, RK(j), l, None),
        ])
    if not OPT['pk5']:
        ch = [sum((unpk(x) for x in c), []) for c in ch]
    for i in range(len(ch[0])):
        for j in T:
            p(ch[j][i])
    tfs(p, 4, nt)
    for j in T:
        p(cvt(MK(j) + 2, S(j)))
        p(cvt(MK(j) + 3, S(j) + 2))
    for j in T:
        for t in range(8):
            p(mf32(RING + 4 * t, AF(j) + 4 * t, MK(j), None if j == 0 else RING + 4 * t))
    for s4 in range(4):
        for i in range(4):
            p(cvt(TOKN(0) + 4 * s4 + i, RING + 8 * s4 + 2 * i))
        p(f'buffer_store_dwordx4 v[{TOKN(0) + 4 * s4}:{TOKN(0) + 4 * s4 + 3}], v{vOUT}, s[{sOUT}:{sOUT + 3}], 0 offen offset:{64 * s4} {OPT.get("outf", "")}')
```

```python
import sys, json
from prog import *
from parts_tf import *

F_HOP = 0x0000
F_TOK = 0xC0000
F_G0 = 0x80000
F_B2 = 0x20000
WS_D2 = WS_D + 0x200000
WS_X7 = WS_TOK + 8 * TOK_PL
WS_TAG = 0x3ff80
PAD = 0xFFFC3FFF

TBL = 81920
CNT1, BUCK, IMG, PSUM = 10496, 12288, 20480, 72192
TT, NN, OO, UF, CC, LIST, SEG = 35840, 37632, 38528, 39296, 39424, 43008, 50176
DUMMY = 10239
Z0, Z1, Z2 = 56, 60, 64

sWS, sSRC, sDST, sX_, sDIS, sDBG, sOUT = 4, 8, 12, 16, 20, 24, 28
sPA, sPB, sPR = 32, 36, 24
sW, sXC, sR, sJ, sSL, sU, sSLOW, sQ, sK, sGO, sTO, sFA, sFB, sSPIN = 44, 45, 46, 47, 48, 49, 50, 51, 52, 53, 54, 55, 56, 57
sTAG = 43
sKA = 88
sFC = 42
sBU = 76
sTASK = 41
sNEG = 58
sMK = 60
sLA, sLB = 100, 101

D0, D1, D2 = 4, 8, 12
GA, GB, HA, HB = 16, 20, 24, 28
vD0, vD1, vD2 = 30, 31, 32
vGA, vGB, vDA, vDB, vFP, vFO, vG0, vT0, vT1, vT2, vT3 = 33, 34, 35, 36, 37, 38, 39, 40, 41, 42, 43
vFV, vNON = 22, 23
vPL = 94
vBETA, vUB = 44, 45
vTP, vTF = 44, 45
XA, XB, XD = 100, 104, 108
sOFF = 80
vBL, vK0, vK1 = 96, 97, 98
vOWN = 3
vP2 = 92
vST = 99
PS = 88
ADDR = lambda b, q: 100 + 10 * b + q
DATA = lambda b, q: 200 + 20 * (b & 1) + 2 * q
SEL = 240
SPIN_MAX = 1 << 22
WSR = f's[{sWS}:{sWS + 3}]'


class Cfg:
    st = False
    prio_until = 5
    force_slow = 0
    dump_tbl = 0
    pollb_at = 3
    pollc_at = 4
    coop = 1
    fill_first = 0
    hnap = 0
    pa_pre = 0
    pa_early = 0
    probe = 0
    pnap = 4
    predelay = 0
    wsoff = 0
    tlb = 0
    nostage = 0
    notok = 0
    junk_at = 7
    dbg = 0
    x7_at = 10
    lag = 3
    nap = 4
    tpoll_at = 3
    gflag = ''
    early_a = 0
    hopst = ('gath', 'bar1', 'pollA', 'pollB', 'bar2')


def srd(p, d, lo, size):
    p(f's_mov_b32 s{d}, s{lo}\ns_mov_b32 s{d + 1}, s{lo + 1}\ns_mov_b32 s{d + 2}, {size}\ns_mov_b32 s{d + 3}, 0x20000')


class Uniq:
    n = 0


def lbl(x):
    Uniq.n += 1
    return f'L_{x}_{Uniq.n}'


LATE = []


def xstore(p, ins):
    a, b = lbl('xs'), lbl('xe')
    p(f's_cmp_lg_u32 s{sSLOW}, 0\ns_cbranch_scc1 {a}')
    p.opt_begin()
    for i in ins:
        p(i + (' ' + Cfg.gflag if i.startswith('buffer_store') else ''))
    p.opt_end(b)
    LATE.append((a, ['s_nop 4'] + [i + (' sc1' if i.startswith('buffer_store') else '') for i in ins] + ['s_nop 1'], b))


def emit_late(p):
    for a, ins, b in LATE:
        p.raw(a + ':')
        for i in ins:
            p.raw(i)
        p.raw(f'    s_branch {b}')
    LATE.clear()


def poll_load(vaddr, res, so='0'):
    return f'buffer_load_dwordx2 v[{res}:{res + 1}], v{vaddr}, {WSR}, {so} offen sc1'


def poll(p, vaddr, ex, need, first_issued=False, res=None, bound='64', nap=0, so='0'):
    res = vPL if res is None else res
    a, b = lbl('pl'), lbl('pd')
    setex = {32: 's_mov_b32 exec_hi, 0', 40: 's_mov_b32 exec_hi, 0xff'}.get(ex, f's_mov_b64 exec, {ex}')
    cond = [f'v_lshl_add_u64 v[{vT0}:{vT1}], v[{res}:{res + 1}], 0, s[{sNEG}:{sNEG + 1}]',
            f'v_cmp_le_u64 vcc, {bound}, v[{vT0}:{vT1}]']
    body = [poll_load(vaddr, res, so),
            f's_add_u32 s{sSPIN}, s{sSPIN}, 1',
            f's_cmp_gt_u32 s{sSPIN}, {SPIN_MAX}',
            's_cbranch_scc1 L_end',
            's_waitcnt vmcnt(0)'] + cond + [f's_cbranch_vccnz {a}']
    if nap:
        c_ = lbl('pn')
        body = body[:-1] + [f's_cbranch_vccz {c_}', f's_sleep {nap}', f's_branch {a}', c_ + ':']
    p(f's_sub_u32 s{sNEG}, 0, {need}')
    p(setex)
    if first_issued:
        for c in cond:
            p(c)
        p(f's_cbranch_vccnz {a}')
        p.raw(b + ':')
        LATE.append((a, body, b))
    else:
        p.label(a)
        for c in body:
            p(c)
    p('s_mov_b64 exec, -1')


def flag_store(vaddr, so='0'):
    return f'buffer_store_dwordx2 v[{vFV}:{vNON}], v{vaddr}, {WSR}, {so} offen'


def finish(D, dis, H, G):
    o = [f'v_mul_f32 v{D + i}, v{D + i}, v{dis}' for i in range(4)]
    o += [cvt(H, D), cvt(H + 1, D + 2)]
    return o + scale_g(D, dis, H, G)


def scale_g(D, dis, H, G):
    o = [f'v_lshlrev_b32 v{D}, 16, v{H}', f'v_and_b32 v{D + 1}, 0xffff0000, v{H}',
         f'v_lshlrev_b32 v{D + 2}, 16, v{H + 1}', f'v_and_b32 v{D + 3}, 0xffff0000, v{H + 1}']
    o += [f'v_mul_f32 v{D + i}, v{D + i}, v{dis}' for i in range(4)]
    o += [cvt(G, D), cvt(G + 1, D + 2)]
    return o


STAMPS = []


def stamp(p, name, hop=False):
    if not Cfg.st:
        return
    if hop and name not in Cfg.hopst:
        return
    if hop:
        i = 24 + sum(1 for n in STAMPS if n.startswith('h:')) * 8
        STAMPS.append('h:' + name)
        p(f's_memtime s[90:91]\ns_add_u32 m0, s{sK}, {i - 1}\ns_waitcnt lgkmcnt(0)\nv_writelane_b32 v{vST}, s90, m0')
    else:
        i = sum(1 for n in STAMPS if not n.startswith('h:'))
        STAMPS.append(name)
        p(f's_memtime s[90:91]\ns_waitcnt lgkmcnt(0)\nv_writelane_b32 v{vST}, s90, {i}')


def emit_desc(p):
    p(f'''
    s_cmp_ge_u32 s{sTASK}, 8
    s_cselect_b32 s{sPA}, s64, s60
    s_cselect_b32 s{sPA + 1}, s65, s61
    s_cselect_b32 s{sPB}, s66, s62
    s_cselect_b32 s{sPB + 1}, s67, s63
    s_mov_b32 s{sPA + 2}, 32768
    s_mov_b32 s{sPA + 3}, 0x20000
    s_mov_b32 s{sPB + 2}, 32768
    s_mov_b32 s{sPB + 3}, 0x20000
    ''')
    srd(p, sPR, 68, 256)


PV, PRA, PBF, PRT, PD, PI, PR = 80, 46, 62, 62, 200, 78, 84


def emit_prep_blocks(p):
    va, t0, t1 = PV, PV + 1, PV + 2
    PB = PSUM + 512
    p.label('L_prepA')
    p.forget()
    emit_desc(p)
    emit_lane_consts_prep(p, 1, va, t0)
    p(f'''
    s_cmp_eq_u32 s{sTASK}, 16
    s_cbranch_scc1 L_prepA_lin
    s_lshr_b32 s72, s{sW}, 1
    s_lshl_b32 s75, s72, 6
    s_lshl_b32 s72, s72, 13
    s_and_b32 s73, s{sW}, 1
    s_lshl_b32 s74, s73, 3
    s_add_u32 s75, s75, s74
    s_lshl_b32 s73, s73, 10
    s_add_u32 s72, s72, s73
    s_bfe_u32 s73, s{sTASK}, 0x20001
    s_lshl_b32 s73, s73, 5
    s_and_b32 s74, s{sTASK}, 1
    s_lshl_b32 s74, s74, 2
    s_add_u32 s73, s73, s74
    s_lshl_b32 s74, s73, 8
    s_add_u32 s74, s74, s75
    s_lshl_b32 s73, s73, 1
    s_add_u32 s73, s73, s72
    s_cmp_ge_u32 s{sTASK}, 8
    s_cselect_b32 s73, s73, s74
    buffer_load_dwordx2 v[{PBF}:{PBF + 1}], v{va}, s[{sPB}:{sPB + 3}], s73 offen
    ''')
    for e4 in range(4):
        p(f'buffer_load_dwordx4 v[{PRA + 4 * e4}:{PRA + 4 * e4 + 3}], v{va}, s[{sPA}:{sPA + 3}], s72 offen offset:{64 * e4}')
    p('s_branch L_prepA_back')
    p.label('L_prepA_lin')
    p(f'v_and_b32 v{t0}, 48, v1')
    for s4 in range(4):
        p(f'buffer_load_dwordx4 v[{PRA + 4 * s4}:{PRA + 4 * s4 + 3}], v{t0}, s[{sPR}:{sPR + 3}], 0 offen offset:{64 * s4}')
    p('s_branch L_prepA_back')
    p.label('L_prepB')
    p.forget()
    p(f's_cmp_eq_u32 s{sTASK}, 16\ns_cbranch_scc1 L_prepB_lin\ns_cmp_lt_u32 s{sTASK}, 8\ns_cbranch_scc1 L_prepB_m')
    emit_i16(p, 1, PI, t0, t1)
    p(mf16(PD, PBF, PI, None))
    p(cvt(PBF, PD))
    p(cvt(PBF + 1, PD + 2))
    p.label('L_prepB_m')
    p(f'''
    s_lshr_b32 s72, s{sW}, 1
    s_lshl_b32 s72, s72, 10
    s_and_b32 s73, s{sW}, 1
    s_lshl_b32 s73, s73, 3
    s_add_u32 s72, s72, s73
    s_add_u32 s72, s72, {PB}
    v_lshl_add_u32 v{va}, v1, 4, s72
    ds_write_b64 v{va}, v[{PBF}:{PBF + 1}]
    s_branch L_prepB_back
    ''')
    p.label('L_prepB2')
    p.forget()
    p(f'v_lshlrev_b32 v{va}, 4, v1\nv_add_u32 v{va}, {PB}, v{va}')
    for e4 in range(4):
        p(f'ds_read_b128 v[{PBF + 4 * e4}:{PBF + 4 * e4 + 3}], v{va} offset:{1024 * e4}')
    for e4 in range(4):
        p(mf32(PR, PRA + 4 * e4, PBF + 4 * e4, None if e4 == 0 else PR))
    p(f'''
    v_lshlrev_b32 v{va}, 5, v1
    s_lshl_b32 s72, s{sW}, 2
    s_add_u32 s72, s72, {PSUM}
    v_add_u32 v{va}, s72, v{va}
    v_add_f32 v{t0}, v{PR}, v{PR + 1}
    v_add_f32 v{t1}, v{PR + 2}, v{PR + 3}
    v_add_f32 v{t0}, v{t0}, v{t1}
    v_mov_b32 v{t1}, v{t0}
    v_permlane16_swap_b32 v{t0}, v{t1}
    v_add_f32 v{t0}, v{t0}, v{t1}
    v_mov_b32 v{t1}, v{t0}
    v_permlane32_swap_b32 v{t0}, v{t1}
    v_add_f32 v{t0}, v{t0}, v{t1}
    s_mov_b64 exec, 0xffff
    ds_write_b32 v{va}, v{t0}
    s_mov_b64 exec, -1
    s_branch L_prepB_back
    ''')
    p.label('L_prepB_lin')
    F, O = PRA, PBF
    p(f'''
    s_cmp_lg_u32 s{sW}, 0
    s_cbranch_scc1 L_prepB_back
    v_and_b32 v{t1}, 3, v1
    v_cmp_eq_u32 s[72:73], 1, v{t1}
    v_cmp_eq_u32 vcc, 0, v{t1}
    v_mov_b32 v{t1}, 0x{ONE2:x}
    ''')
    for i in range(4):
        p(f'v_mov_b32 v{O + i}, 0x{ONE2:x}')
    p(f'v_cndmask_b32 v{t1}, 0, v{t1}, vcc')
    for i in range(16):
        p(f'v_cndmask_b32 v{F + i}, v{t1}, v{F + i}, s[72:73]')
    for s4 in range(4):
        p(mf32(PD, F + 4 * s4, O, None if s4 == 0 else PD))
    p(f'v_lshlrev_b32 v{t0}, 4, v1\ns_mov_b32 s74, {WS_WF + 65536}\ns_waitcnt vmcnt(0)')
    for s4 in range(4):
        p(f'buffer_store_dwordx4 v[{F + 4 * s4}:{F + 4 * s4 + 3}], v{t0}, {WSR}, s74 offen offset:{1024 * s4} sc1')
    p(f'''
    v_lshlrev_b32 v{t0}, 2, v1
    s_mov_b32 s74, {WS_WF + 69632}
    buffer_store_dword v{PD + 1}, v{t0}, {WSR}, s74 offen sc1
    s_branch L_prepS
    ''')
    p.label('L_prepS')
    p(f'''
    s_waitcnt lgkmcnt(0)
    s_branch L_bar2
    ''')
    p.label('L_prepC')
    p.forget()
    p(f'''
    v_and_b32 v{va}, 15, v1
    v_lshlrev_b32 v{va}, 5, v{va}
    v_add_u32 v{va}, {PSUM}, v{va}
    ds_read_b128 v[{PRA}:{PRA + 3}], v{va}
    ds_read_b128 v[{PRA + 4}:{PRA + 7}], v{va} offset:16
    s_lshr_b32 s72, s{sW}, 1
    s_lshl_b32 s72, s72, 10
    s_and_b32 s73, s{sW}, 1
    s_lshl_b32 s73, s73, 3
    s_add_u32 s72, s72, s73
    s_add_u32 s72, s72, {PB}
    v_lshl_add_u32 v{va}, v1, 4, s72
    v_add_f32 v{t0}, v{PRA}, v{PRA + 1}
    v_add_f32 v{t1}, v{PRA + 2}, v{PRA + 3}
    v_add_f32 v{t0}, v{t0}, v{PRA + 4}
    v_add_f32 v{t1}, v{t1}, v{PRA + 5}
    v_add_f32 v{t0}, v{t0}, v{PRA + 6}
    v_add_f32 v{t1}, v{t1}, v{PRA + 7}
    v_add_f32 v{t0}, v{t0}, v{t1}
    v_mul_f32 v{t0}, 0x3c000000, v{t0}
    ''')
    for i in range(4):
        p(f'v_sub_f32 v{PR + i}, v{PR + i}, v{t0}')
    p(cvt(PBF, PR))
    p(cvt(PBF + 1, PR + 2))
    p(f'ds_write_b64 v{va}, v[{PBF}:{PBF + 1}]\ns_branch L_prepB_back')
    p.label('L_prepD')
    p.forget()
    p(f'''
    s_cmp_ge_u32 s{sW}, 4
    s_cbranch_scc1 L_stgr
    s_lshl_b32 s72, s{sW}, 10
    s_add_u32 s73, s72, {PB}
    v_lshl_add_u32 v{va}, v1, 4, s73
    ds_read_b128 v[{PBF}:{PBF + 3}], v{va}
    s_lshl_b32 s73, s{sTASK}, 12
    s_add_u32 s72, s72, s73
    s_add_u32 s72, s72, {WS_WF}
    v_lshlrev_b32 v{va}, 4, v1
    buffer_store_dwordx4 v[{PBF}:{PBF + 3}], v{va}, {WSR}, s72 offen sc1
    s_branch L_stgr
    ''')
    p.forget()


def fill_list():
    o = [f's_mov_b32 m0, s{sLA}']
    o += [f'buffer_load_dwordx4 v{vDA}, {WSR}, s{sGO} offen offset:{1024 * j} sc1 lds' for j in range(4)]
    o += [f's_add_u32 m0, s{sLA}, 4096\ns_add_u32 s92, s{sGO}, 4096']
    o += [f'buffer_load_dwordx4 v{vDA}, {WSR}, s92 offen offset:{1024 * j} sc1 lds' for j in range(4)]
    o += [f's_mul_i32 s92, s{sSL}, 81920\ns_lshl_b32 s93, s{sW}, 11\ns_add_u32 m0, s93, {TBL + 65536}\n'
          f's_add_u32 s92, s92, s93\ns_add_u32 s92, s92, {WS_G + 65536}\nv_lshlrev_b32 v{vT3}, 4, v1']
    o += [f'buffer_load_dwordx4 v{vT3}, {WSR}, s92 offen offset:{1024 * j} sc1 lds' for j in range(2)]
    return o


def emit_prologue(p):
    p('s_cmp_ge_u32 s2, 256\ns_cbranch_scc1 L_end')
    if Cfg.st:
        p(f's_memrealtime s[90:91]\ns_waitcnt lgkmcnt(0)\nv_writelane_b32 v{vST}, s90, 21')
    stamp(p, 'entry')
    p(f"""
    s_load_dwordx8 s[32:39], s[0:1], 0
    s_load_dwordx4 s[92:95], s[0:1], 80
    s_load_dwordx8 s[60:67], s[0:1], 32
    s_load_dwordx4 s[68:71], s[0:1], 64
    v_readfirstlane_b32 s{sW}, v0
    v_and_b32 v1, 63, v0
    s_and_b32 s{sXC}, s2, 7
    s_lshr_b32 s{sR}, s2, 3
    s_lshr_b32 s{sW}, s{sW}, 6
    """)
    p('s_getpc_b64 s[96:97]')
    p.raw('L_pc:')
    p(f"""
    s_lshl_b32 s98, s{sR}, 3
    s_add_u32 s98, s98, s{sW}
    s_lshl_b32 s98, s98, 7
    v_lshl_add_u32 v{vT0}, v1, 1, s98
    v_min_u32 v{vT0}, L_code_end-L_pc-4, v{vT0}
    v_and_b32 v{vT0}, -4, v{vT0}
    global_load_dword v3, v{vT0}, s[96:97]
    v_lshlrev_b32 v{vT3}, 3, v0
    s_mul_i32 s96, s2, 2560
    v_mov_b32 v64, 0x{PAD:x}
    v_mov_b32 v65, v64
    v_mov_b32 v66, v64
    v_mov_b32 v67, v64
    v_lshlrev_b32 v70, 4, v0
    v_lshlrev_b32 v71, 2, v0
    v_lshlrev_b32 v72, 7, v1
    v_add_u32 v72, {BUCK}, v72
    v_lshlrev_b32 v73, 2, v1
    s_waitcnt lgkmcnt(0)
    {f"s_add_u32 s94, s94, {Cfg.wsoff}" if Cfg.wsoff else ""}
    {"s_addc_u32 s95, s95, 0" if Cfg.wsoff else ""}
    s_load_dword s78, s[94:95], {WS_TAG}
    """)
    srd(p, sDST, 36, 640000)
    srd(p, sSRC, 34, 640000)
    p(f"""
    buffer_load_dwordx2 v[56:57], v{vT3}, s[{sDST}:{sDST + 3}], s96 offen
    buffer_load_dwordx2 v[58:59], v{vT3}, s[{sSRC}:{sSRC + 3}], s96 offen
    ds_write_b128 v70, v[64:67] offset:{BUCK}
    ds_write_b32 v73, v72 offset:{CNT1}
    """)
    stamp(p, 'srd')
    srd(p, sWS, 94, 0x10000000 - Cfg.wsoff)
    srd(p, sX_, 32, 2560000)
    srd(p, sDIS, 38, 20000)
    srd(p, sOUT, 70, 2560000)
    p(f"""
    s_and_b32 s{sJ}, s{sR}, 7
    s_lshr_b32 s{sSL}, s{sR}, 3
    s_lshl_b32 s96, s{sXC}, 2
    s_add_u32 s{sSL}, s{sSL}, s96
    s_lshl_b32 s{sU}, s{sW}, 3
    s_add_u32 s{sU}, s{sU}, s{sJ}
    s_mov_b32 s{sSPIN}, 0
    v_lshrrev_b32 v{vT1}, 3, v1
    v_and_b32 v{vT2}, 7, v1
    v_cmp_eq_u32 s[74:75], 7, v{vT2}
    v_lshlrev_b32 v{vT2}, 4, v{vT2}
    v_lshl_add_u32 v75, v{vT1}, 15, v{vT2}
    s_lshl_b32 s72, s{sW}, 18
    s_lshl_b32 s97, s2, 7
    s_add_u32 s72, s72, s97
    s_add_u32 s72, s72, {WS_D}
    """)
    p(f"""
    v_and_b32 v{vT0}, 7, v1
    v_lshrrev_b32 v{vT1}, 3, v1
    v_lshlrev_b32 v{vT2}, 8, v{vT0}
    v_lshl_add_u32 v{vT2}, v{vT1}, 4, v{vT2}
    s_lshl_b32 s96, s2, 13
    s_lshr_b32 s97, s{sW}, 1
    s_lshl_b32 s92, s97, 11
    s_and_b32 s94, s{sW}, 1
    s_lshl_b32 s95, s94, 7
    s_add_u32 s92, s92, s95
    s_add_u32 s92, s92, s96
    s_mov_b32 s80, s92
    s_lshr_b32 s96, s96, 2
    s_add_u32 s96, s96, s95
    s_add_u32 s96, s96, {8192 * 256}
    s_mov_b32 s81, s96
    v_mov_b32 v112, v{vT2}
    v_mov_b32 v230, v{vT2}
    v_mul_u32_u24 v{vT1}, 640, v{vT1}
    v_lshl_add_u32 v{vT1}, v{vT0}, 3, v{vT1}
    s_mul_i32 s94, s94, 5120
    v_add_u32 v109, s94, v{vT1}
    s_lshl_b32 s97, s97, 6
    v_add_u32 v108, s97, v109
    v_lshlrev_b32 v{vT0}, 4, v1
    v_and_b32 v{vT0}, 16, v{vT0}
    s_waitcnt lgkmcnt(0)
    s_barrier
    s_add_u32 s78, s78, 0x100
    s_lshr_b32 s79, s78, 4
    s_not_b32 s79, s79
    s_and_b32 s79, s79, 15
    s_and_b32 s78, s78, -16
    s_or_b32 s{sTAG}, s78, s79
    s_not_b32 s{sNEG + 1}, s{sTAG}
    v_mov_b32 v{vNON}, s{sTAG}
    s_mov_b32 s79, 0x3c000
    v_lshrrev_b32 v{vT0}, v{vT0}, v{vNON}
    """)
    for r in range(4):
        p(f'v_lshlrev_b32 v{PS + r}, {14 - 4 * r}, v{vT0}\nv_and_b32 v{PS + r}, s79, v{PS + r}')
    stamp(p, 'init issued')


def emit_g1(p):
    p(f"""
    s_waitcnt vmcnt(0)
    s_and_b32 s82, s{sR}, 3
    s_cbranch_scc0 L_nox2
    buffer_load_dwordx4 v[100:103], v112, s[{sX_}:{sX_ + 3}], s80 offen
    buffer_load_dwordx4 v[104:107], v112, s[{sX_}:{sX_ + 3}], s81 offen
    s_cmp_lg_u32 s82, 1
    s_cbranch_scc1 L_nox2
    s_sub_u32 s80, s80, 65536
    s_sub_u32 s81, s81, 16384
    buffer_load_dwordx4 v[116:119], v112, s[{sX_}:{sX_ + 3}], s80 offen
    buffer_load_dwordx4 v[120:123], v112, s[{sX_}:{sX_ + 3}], s81 offen
    """)
    p.vm.pop()
    p.vm.pop()
    p.raw('L_nox2:')
    p(f"""
    s_cmp_ge_u32 s{sW}, 5
    s_cbranch_scc1 L_g1_skip
    s_cmp_ge_u32 s2, 250
    s_cbranch_scc1 L_g1_skip
    s_movk_i32 s96, 0xfc00
    v_mov_b32 v{vT0}, 4
    """)
    vm = list(p.vm)
    for i in range(2):
        p(f"""
        v_lshrrev_b32 v{vT1}, 5, v{56 + i}
        v_lshl_or_b32 v{58 + i}, v{56 + i}, 18, v{58 + i}
        v_and_b32 v{vT2}, -4, v{vT1}
        v_lshl_add_u32 v{vT1}, v{vT1}, 2, s96
        v_min_u32 v{vT1}, v{vT1}, v{vT2}
        ds_add_rtn_u32 v{60 + i}, v{vT1}, v{vT0} offset:{CNT1}
        """)
    p('ds_write_b32 v60, v58\nds_write_b32 v61, v59\ns_waitcnt lgkmcnt(0)')
    p.vm = vm
    p.label('L_g1_skip')
    stamp(p, 'g1')
    p(f"""
    s_barrier
    ds_read_b32 v74, v73 offset:{CNT1}
    ds_read_b128 v[64:67], v70 offset:{BUCK}
    s_sub_u32 s{sTASK}, s2, 8
    s_cmp_eq_u32 s{sTASK}, 17
    s_cselect_b32 s{sTASK}, 99, s{sTASK}
    s_lshr_b32 s{sBU}, s{sR}, 2
    s_lshl_b32 s{sBU}, s{sBU}, 3
    s_add_u32 s{sBU}, s{sBU}, s{sXC}
    v_sub_u32 v74, v74, v72
    v_cmp_lt_u32 vcc, 0x7c, v74
    s_cmp_lg_u64 vcc, 0
    s_cselect_b32 s97, 1, 0
    s_sub_u32 s97, 0x{PAD:x}, s97
    v_mov_b32 v74, s97
    v_xor_b32 v64, v64, v{PS}
    v_cndmask_b32 v67, v67, v74, s[74:75]
    v_xor_b32 v65, v65, v{PS + 1}
    v_xor_b32 v66, v66, v{PS + 2}
    v_xor_b32 v67, v67, v{PS + 3}
    buffer_store_dwordx4 v[64:67], v75, {WSR}, s72 offen sc1
    """)
    stamp(p, 'b1 out')
    p(f"""
    s_getreg_b32 s99, hwreg(HW_REG_XCC_ID, 0, 4)
    s_add_u32 s96, s99, 1
    v_mov_b32 v{vFV}, s96
    s_lshl_b32 s96, s2, 7
    s_add_u32 s96, s96, {F_G0}
    v_lshl_add_u32 v{vUB}, v1, 15, s96
    s_cmp_eq_u32 s82, 0
    s_cbranch_scc1 L_builder
    """)
    emit_common(p)
    Cfg.vm_builder = list(p.vm)
    emit_imgpat(p)
    xw = lambda r, o: f"""
    ds_write_b64 v108, v[{r}:{r + 1}] offset:{o}
    ds_write_b64 v108, v[{r + 2}:{r + 3}] offset:{o + 320}
    ds_write_b64 v109, v[{r + 4}:{r + 5}] offset:{o + 256}
    ds_write_b64 v109, v[{r + 6}:{r + 7}] offset:{o + 576}
    """
    p(xw(100, 0))
    vm_ = list(p.vm)
    p('s_cmp_lg_u32 s82, 1\ns_cbranch_scc1 L_nox3\ns_waitcnt vmcnt(6)')
    p(xw(116, 40960))
    p.vm = vm_
    p.label('L_nox3')
    stamp(p, 'x in')
    p('s_waitcnt lgkmcnt(0)\ns_barrier')

    def rows(o, d0, k0, k1, t):
        p(f"""
        ds_read_b128 v[100:103], v70 offset:{o}
        ds_read_b128 v[104:107], v70 offset:{o + 8192}
        v_and_b32 v113, 0xffff0000, v{d0}
        v_lshlrev_b32 v112, 16, v{d0}
        v_and_b32 v115, 0xffff0000, v{d0 + 1}
        v_lshlrev_b32 v114, 16, v{d0 + 1}
        """)
        for x in scale_g(D0, 112, 100, GA) + scale_g(D1, 113, 102, GA + 2):
            p(x)
        p(f'buffer_store_dwordx4 v[{GA}:{GA + 3}], v{k0}, {WSR}, s{sGO} offen sc1')
        p(f's_cmp_ge_u32 s{sW}, 2\ns_cbranch_scc1 L_g0b{t}')
        for x in scale_g(D0, 114, 104, HA) + scale_g(D1, 115, 106, HA + 2):
            p(x)
        p(f'buffer_store_dwordx4 v[{HA}:{HA + 3}], v{k1}, {WSR}, s{sGO} offen sc1')
        p.label(f'L_g0b{t}')
        p('s_waitcnt lgkmcnt(0)')
    rows(0, 110, vK0, vK1, 'a')
    p('s_cmp_lg_u32 s82, 1\ns_cbranch_scc1 L_nox4')
    rows(40960, 124, 126, 127, 'b')
    p.label('L_nox4')
    emit_g0_flag(p, 0, 'a')
    stamp(p, 'g0 flag')
    p('s_branch L_fill0')


def emit_common(p, builder=False):
    p(f"""
    s_lshl_b32 s96, s2, 8
    s_lshr_b32 s97, s96, 2
    s_add_u32 s97, s97, {65536 - 256}
    s_mov_b32 s92, 81920
    s_lshl_b32 s94, s{sW}, 6
    """)
    for v, add, dd, ka in ((vK0, 0, 110, sKA), (vK1, 512, 111, 78)):
        p(f"""
        v_add_u32 v{vT0}, s94, v1
        v_add_u32 v{vT0}, {add}, v{vT0}
        v_mul_u32_u24 v{vT1}, 3277, v{vT0}
        v_lshrrev_b32 v{vT1}, 16, v{vT1}
        v_mul_u32_u24 v{vT2}, 20, v{vT1}
        v_sub_u32 v{vT2}, v{vT0}, v{vT2}
        v_mov_b32 v{vT0}, s97
        v_mov_b32 v{vT3}, s96
        v_cmp_gt_u32 vcc, 16, v{vT2}
        v_mul_lo_u32 v{vT1}, v{vT1}, s92
        v_cndmask_b32 v{vT0}, v{vT0}, v{vT3}, vcc
        v_lshl_add_u32 v{vT0}, v{vT2}, 4, v{vT0}
        v_add_u32 v{v}, v{vT1}, v{vT0}
        """)
        if not builder:
            p(f"""
            v_lshrrev_b32 v{vT0}, 2, v{vT0}
            buffer_load_dword v{dd}, v{vT0}, s[{sDIS}:{sDIS + 3}], 0 offen
            v_mov_b32 v{vT1}, 512
            v_mov_b32 v{vT3}, 0x800
            v_cndmask_b32 v{vT1}, v{vT1}, v{vT3}, vcc
            v_sub_u32 v{dd + 16}, v{v}, v{vT1}
            v_lshrrev_b32 v{vT1}, 2, v{vT1}
            v_sub_u32 v{vT0}, v{vT0}, v{vT1}
            buffer_load_dword v{dd + 14}, v{vT0}, s[{sDIS}:{sDIS + 3}], 0 offen
            """)
    if not builder:
        p(f"""
        s_bitcmp1_b32 s{sW}, 0
        s_cselect_b32 s72, s62, s60
        s_cselect_b32 s73, s63, s61
        s_cselect_b32 s74, s66, s64
        s_cselect_b32 s75, s67, s65
        s_bitcmp1_b32 s{sW}, 1
        s_cselect_b32 s72, s74, s72
        s_cselect_b32 s73, s75, s73
        s_lshr_b32 s92, s{sR}, 2
        s_sub_u32 s92, s{sR}, s92
        s_sub_u32 s92, s92, 1
        s_lshl_b32 s92, s92, 1
        s_lshr_b32 s93, s{sW}, 2
        s_add_u32 s92, s92, s93
        s_lshl_b32 s92, s92, 10
        v_lshl_add_u32 v{vT1}, v1, 4, s92
        v_min_u32 v{vT1}, 32764, v{vT1}
        global_load_dword v3, v{vT1}, s[72:73]
        """)
    emit_offsets(p)
    emit_sel(p)
    p(f"""
    s_lshl_b32 s96, s{sW}, 5
    v_add_u32 v{vT1}, s96, v1
    s_and_b32 s96, s2, 0xc7
    s_sub_u32 s96, s96, 256
    v_lshl_add_u32 v{vT2}, v1, 3, s96
    v_and_b32 v{vT3}, 24, v{vT1}
    v_cmp_eq_u32 vcc, 0, v{vT3}
    v_or_b32 v{vT3}, 8, v{vT1}
    v_cndmask_b32 v{vT1}, v{vT1}, v{vT3}, vcc
    v_cmp_gt_u32 vcc, 32, v1
    v_cndmask_b32 v{vT1}, v{vT2}, v{vT1}, vcc
    v_lshlrev_b32 v{vG0}, 7, v{vT1}
    s_lshl_b32 s96, s{sXC}, 15
    s_add_u32 s96, s96, {F_G0}
    v_add_u32 v{vG0}, s96, v{vG0}
    """)


def emit_g0_flag(p, n, t):
    p(f"""
    s_waitcnt vmcnt({n})
    s_barrier
    s_cmp_lg_u32 s{sW}, 0
    s_cbranch_scc1 L_ng0{t}
    s_mov_b64 exec, 0xff
    {flag_store(vUB)} sc1
    s_mov_b64 exec, -1
    """)
    p.vm.pop()
    p.raw(f'L_ng0{t}:')


def emit_offsets(p):
    p(f"""
    v_lshrrev_b32 v{vT1}, 4, v1
    v_and_b32 v{vT2}, 15, v1
    v_lshl_add_u32 v{vT1}, v{vT1}, 3, v{vT2}
    v_mov_b32 v{vT3}, 0x2000000
    v_cmp_gt_u32 vcc, 8, v{vT2}
    v_cndmask_b32 v{vBL}, v{vT3}, v{vT1}, vcc
    s_mul_i32 s96, s{sSL}, 81920
    s_lshl_b32 s97, s{sU}, 10
    s_add_u32 s97, s97, s96
    v_lshl_add_u32 v{vGA}, v1, 4, s97
    s_lshl_b32 s97, s{sU}, 8
    s_add_u32 s97, s97, s96
    s_add_u32 s97, s97, 65536
    v_lshl_add_u32 v{vGB}, v{vBL}, 3, s97
    s_mov_b32 s{sGO}, {WS_G}
    s_mov_b32 s{sTO}, {WS_TOK}
    s_lshl_b32 s97, s{sW}, 13
    s_add_u32 s{sLA}, s97, {TBL}
    s_add_u32 s97, s97, s96
    v_lshl_add_u32 v{vDA}, v1, 4, s97
    s_lshl_b32 s97, s{sW}, 12
    s_add_u32 s{sLB}, s97, {TBL + 65536}
    s_add_u32 s97, s97, s96
    s_add_u32 s97, s97, 65536
    v_lshl_add_u32 v{vDB}, v1, 4, s97
    s_lshl_b32 s96, s{sSL}, 3
    s_add_u32 s96, s96, s{sW}
    s_lshl_b32 s96, s96, 7
    v_lshl_add_u32 v{vFP}, v1, 3, s96
    s_lshl_b32 s97, s{sJ}, 3
    s_add_u32 s96, s96, s97
    v_mov_b32 v{vFO}, s96
    """)


def emit_sel(p):
    p(f"""
    v_and_b32 v80, 15, v1
    v_lshrrev_b32 v81, 4, v1
    v_and_b32 v82, 3, v80
    v_lshrrev_b32 v80, 2, v80
    v_mov_b32 v83, 0x{ONE2:x}
    v_cmp_eq_u32 vcc, v81, v82
    v_cndmask_b32 v83, 0, v83, vcc
    """)
    for b in range(4):
        p(f'v_cmp_eq_u32 vcc, {b}, v80')
        for r in range(4):
            p(f'v_cndmask_b32 v{SEL + 4 * b + r}, 0, v83, vcc')


def emit_misc_loads(p):
    p(f"""
    s_lshl_b32 s96, s{sU}, 8
    v_lshlrev_b32 v{vT1}, 2, v1
    buffer_load_dword v{vD0}, v{vT1}, s[{sDIS}:{sDIS + 3}], s96 offen
    s_lshl_b32 s96, s{sU}, 6
    s_add_u32 s96, s96, 16384
    v_lshlrev_b32 v{vT1}, 1, v{vBL}
    buffer_load_ushort v{vD2}, v{vT1}, s[{sDIS}:{sDIS + 3}], s96 offen
    """)


def emit_imgpat(p):
    a0 = 82
    for r in range(4):
        p(f'v_lshlrev_b32 v{a0}, 14, v{PS + r}\nv_and_b32 v{a0}, 0xc0000000, v{a0}\nv_and_b32 v{PS + r}, 0xc000, v{PS + r}\nv_or_b32 v{PS + r}, v{PS + r}, v{a0}')


def emit_init2(p):
    for i in range(4):
        p(f'v_mov_b32 v{76 + i}, 0x{DUMMY | DUMMY << 16:x}')
    p(f"""
    ds_write_b128 v70, v[76:79] offset:{IMG}
    ds_write_b128 v70, v[76:79] offset:{IMG + 7168}
    v_and_b32 v76, 31, v0
    v_mul_u32_u24 v77, 43, v76
    v_lshrrev_b32 v77, 8, v77
    v_mul_u32_u24 v77, 6, v77
    v_sub_u32 v76, v76, v77
    ds_write_b32 v71, v76 offset:{CC}
    ds_write_b32 v71, v76 offset:{CC + 768}
    v_and_b32 v76, 1, v0
    v_bfe_u32 v77, v0, 3, 2
    v_lshl_add_u32 v80, v76, 2, v77
    v_bfe_u32 v76, v0, 1, 2
    v_bfe_u32 v77, v0, 5, 2
    ; B node 128<=t<160
    v_bfe_u32 v78, v0, 2, 1
    v_add_u32 v78, 8, v78
    v_and_b32 v79, 3, v0
    v_bfe_u32 v81, v0, 3, 2
    v_cmp_gt_u32 vcc, 0x80, v0
    v_cndmask_b32 v80, v78, v80, vcc
    v_cndmask_b32 v76, v79, v76, vcc
    v_cndmask_b32 v77, v81, v77, vcc
    v_lshrrev_b32 v79, 1, v76
    v_lshl_add_u32 v79, v80, 1, v79
    v_lshlrev_b32 v79, 7, v79
    v_add_u32 v79, {CC}, v79
    v_lshl_add_u32 v76, v76, 4, v77
    v_lshlrev_b32 v76, 4, v76
    v_and_b32 v77, 1, v80
    v_lshl_add_u32 v76, v77, 3, v76
    v_lshrrev_b32 v77, 1, v80
    v_lshl_add_u32 v76, v77, 10, v76
    v_add_u32 v78, {IMG}, v76
    v_add_u32 v77, {CC + 2560 - 640 - 124}, v71
    v_cmp_gt_u32 vcc, 0xa0, v0
    v_cndmask_b32 v79, v77, v79, vcc
    v_mov_b32 v76, 0
    v_mov_b32 v77, {LIST}
    v_lshlrev_b32 v80, 3, v0
    v_cmp_gt_u32 vcc, 0xe0, v0
    s_and_saveexec_b64 s[92:93], vcc
    ds_write_b64 v80, v[78:79] offset:{TT}
    ds_write_b32 v71, v76 offset:{NN}
    ds_write_b32 v71, v76 offset:{OO - 256}
    ds_write_b64 v76, v[76:77] offset:{UF}
    s_mov_b64 exec, s[92:93]
    """)


def emit_b2(p):
    E, CN, TV, PF, OD, SH = 46, 62, 140, 112, 120, 128
    vDUM, vFOUR, vZ = 70, 71, 72
    a0, a1, a2, vONE, vFIVE, vMX = 82, 83, 85, 86, 87, 78
    MK = 60
    sRUN = 76
    SD = 'dst_sel:DWORD dst_unused:UNUSED_PAD'
    p.label('L_builder')
    p.vm = []
    p.lgkm = []
    p(f"""
    v_bfe_u32 v85, v1, 4, 2
    v_lshlrev_b32 v85, 5, v85
    v_lshlrev_b32 v84, 4, v1
    v_xor_b32 v84, v84, v85
    v_lshrrev_b32 v136, 1, v1
    v_lshlrev_b32 v136, 7, v136
    v_and_b32 v85, 1, v1
    v_lshl_add_u32 v136, v85, 4, v136
    v_bfe_u32 v85, v1, 2, 2
    v_lshl_add_u32 v136, v85, 5, v136
    s_lshl_b32 s79, s{sW}, 12
    s_add_u32 s79, s79, {SEG}
    v_add_u32 v136, s79, v136
    v_xor_b32 v137, 32, v136
    v_xor_b32 v138, 64, v136
    v_xor_b32 v139, 0x60, v136
    s_mov_b32 s77, s{sBU}
    s_lshl_b32 s98, s{sBU}, 15
    s_lshl_b32 s97, s{sW}, 12
    s_add_u32 s98, s98, s97
    s_add_u32 s98, s98, {WS_D}
    """)
    ld = ['s_mov_b32 m0, s79', 's_nop 0'] + [f'buffer_load_dwordx4 v84, {WSR}, s98 offen offset:{1024 * i} sc1 lds' for i in range(4)]
    p(f"""
    s_cmp_lg_u32 s{sW}, 7
    s_cbranch_scc1 L_ng0b
    s_mov_b64 exec, 0xff
    {flag_store(vUB)} sc1
    s_mov_b64 exec, -1
    """)
    p.vm.pop()
    p.raw('L_ng0b:')
    emit_init2(p)
    emit_common(p, True)
    p(f"""
    v_mov_b32 v{vONE}, 1
    v_mov_b32 v{vFIVE}, 5
    v_mov_b32 v{vMX}, 0
    s_lshl_b32 s96, s77, 9
    s_lshl_b32 s97, s77, 7
    s_add_u32 s97, s97, 32256
    s_movk_i32 s92, 640
    s_movk_i32 s93, 5112
    v_lshlrev_b32 v{vDUM}, 2, v1
    v_add_u32 v{vDUM}, 640, v{vDUM}
    v_mov_b32 v{vFOUR}, 4
    v_mov_b32 v{vZ}, 0
    s_waitcnt lgkmcnt(0)
    s_barrier
    """)
    if Cfg.predelay:
        p(f's_sleep {Cfg.predelay}')
    if Cfg.probe:
        p('s_mov_b32 exec_lo, 0x01010101\ns_mov_b32 exec_hi, 0x01010101')
        p.label('L_probe')
        p(f'buffer_load_dwordx4 v[{E}:{E + 3}], v84, {WSR}, s98 offen offset:3072 sc1')
        p(f's_add_u32 s{sSPIN}, s{sSPIN}, 1\ns_cmp_gt_u32 s{sSPIN}, {SPIN_MAX}\ns_cbranch_scc1 L_end')
        for i in range(4):
            p(f'v_xor_b32 v{CN + i}, v{E + i}, v{PS + i}')
        p(f"""
        v_or3_b32 v{a0}, v{CN}, v{CN + 1}, v{CN + 2}
        v_or_b32 v{a0}, v{a0}, v{CN + 3}
        v_and_b32 v{a0}, 0x3c000, v{a0}
        v_cmp_ne_u32 vcc, 0, v{a0}
        s_cbranch_vccz L_probed
        s_sleep {Cfg.pnap}
        s_branch L_probe
        """)
        p.label('L_probed')
        p('s_mov_b64 exec, -1')
    p.label('L_segagain')
    for x in ld:
        p(x)
    p(f's_add_u32 s{sSPIN}, s{sSPIN}, 1\ns_cmp_gt_u32 s{sSPIN}, {SPIN_MAX}\ns_cbranch_scc1 L_end\ns_waitcnt vmcnt(0)')
    for i in range(4):
        p(f'ds_read_b128 v[{E + 4 * i}:{E + 4 * i + 3}], v{136 + i}')
    for i in range(16):
        p(f'v_xor_b32 v{E + i}, v{E + i}, v{PS + (i & 3)}')
    p(f'v_or3_b32 v{a0}, v{E}, v{E + 1}, v{E + 2}')
    for i in range(3, 15, 2):
        p(f'v_or3_b32 v{a0}, v{a0}, v{E + i}, v{E + i + 1}')
    p(f"""
    v_or_b32 v{a0}, v{a0}, v{E + 15}
    v_and_b32 v{a0}, 0x3c000, v{a0}
    v_cmp_ne_u32 vcc, 0, v{a0}
    s_cbranch_vccnz L_segagain
    """)
    stamp(p, 'seg issued')
    m = lambda i: f's[{MK + 2 * i}:{MK + 2 * i + 1}]'
    for i in range(8):
        p(f"""
        v_lshrrev_b32 v{a0}, 16, v{E + i}
        v_subrev_u32 v{a1}, s96, v{a0}
        v_subrev_u32 v{a0}, s97, v{a0}
        v_min3_u32 v{CN + i}, v{a0}, v{a1}, v{vDUM}
        v_lshlrev_b32 v{a0}, 1, v{CN + i}
        ds_read_b64 v[{TV + 2 * i}:{TV + 2 * i + 1}], v{a0} offset:{TT}
        v_and_b32 v{SH + i}, 31, v{E + i}
        """)
    for i in range(8):
        p(f"""
        v_lshl_add_u32 v{PF + i}, v{SH + i}, 2, v{TV + 2 * i + 1}
        ds_inc_rtn_u32 v{PF + i}, v{PF + i}, v{vFIVE}
        """)
    p('s_mov_b32 s94, 0xfffc0000')
    p(f'v_min3_u32 v{a0}, v{E + 8}, v{E + 9}, v{E + 10}\nv_min3_u32 v{a1}, v{E + 11}, v{E + 12}, v{E + 13}')
    p(f'v_min3_u32 v{a0}, v{a0}, v{E + 14}, v{E + 15}\nv_min_u32 v{a0}, v{a0}, v{a1}\nv_cmp_gt_u32 vcc, s94, v{a0}\ns_cbranch_vccnz L_rare')
    p.raw('L_rared:')
    q = Prog()
    q.auto = False
    for i in range(8, 16):
        l = lbl('rs')
        q(f"""
        v_cmp_gt_u32 vcc, s94, v{E + i}
        s_cbranch_vccz {l}
        s_mov_b64 exec, vcc
        ds_add_rtn_u32 v{a2}, v{vZ}, v{vFOUR} offset:{UF + 4}
        s_waitcnt lgkmcnt(0)
        ds_write_b32 v{a2}, v{E + i}
        s_mov_b64 exec, -1
        """)
        q.raw(l + ':')
    q('s_waitcnt lgkmcnt(0)')
    LATE.append(('L_rare', [l.strip() for l in q.L], 'L_rared'))
    for i in range(8):
        p(f"""
        v_mul_u32_u24 v{SH + i}, 5, v{PF + i}
        v_lshlrev_b32 v{OD + i}, v{SH + i}, v{vONE}
        ds_add_rtn_u32 v{OD + i}, v{CN + i}, v{OD + i} offset:{NN}
        v_lshrrev_b32 v{a0}, 2, v{PF + i}
        v_mad_u32_u24 v{TV + 2 * i}, v{a0}, s93, v{TV + 2 * i}
        v_lshl_add_u32 v{TV + 2 * i}, v{PF + i}, 1, v{TV + 2 * i}
        v_cmp_gt_u32 {m(i)}, s92, v{CN + i}
        """)
    stamp(p, 'b2 atomics')
    for i in range(8):
        p(f"""
        v_bfe_u32 v{a1}, v{OD + i}, v{SH + i}, 5
        s_mov_b64 exec, {m(i)}
        v_cmp_gt_u32 vcc, 4, v{a1}
        v_lshl_add_u32 v{a0}, v{a1}, 6, v{TV + 2 * i}
        v_max_u32 v{vMX}, v{vMX}, v{a1}
        s_andn2_b64 {m(i)}, {m(i)}, vcc
        s_mov_b64 exec, vcc
        ds_write_b16 v{a0}, v{E + i}
        s_mov_b64 exec, {m(i)}
        ds_add_rtn_u32 v{PF + i}, v{vZ}, v{vFOUR} offset:{UF + 4}
        s_mov_b64 exec, -1
        """)
    for i in range(8):
        p(f's_mov_b64 exec, {m(i)}\nds_write_b32 v{PF + i}, v{E + i}')
    a, r_ = lbl('ov'), lbl('ovr')
    p(f"""
    s_mov_b64 exec, -1
    v_mov_b32 v{a1}, 0x{PAD - 1:x}
    v_cmp_eq_u32 vcc, v{a1}, v{E + 15}
    v_cmp_eq_u32 s[60:61], 31, v{vMX}
    s_or_b64 vcc, vcc, s[60:61]
    s_cbranch_vccnz {a}
    """)
    p.raw(r_ + ':')
    LATE.append((a, [f'v_mov_b32 v{a0}, 0x100000', f'ds_or_b32 v{vZ}, v{a0} offset:{UF}', 's_waitcnt lgkmcnt(0)'], r_))
    e, c, o, F, T, Q, S = 62, 63, 64, 65, 66, 68, 69
    emit_imgpat(p)
    p(f"""
    s_mul_i32 s94, s{sW}, 1920
    v_lshl_add_u32 v{vT3}, v1, 4, s94
    v_mov_b32 v{vT1}, 0
    v_lshlrev_b32 v{c}, 2, v0
    v_add_u32 v{c}, {LIST}, v{c}
    s_waitcnt lgkmcnt(0)
    s_barrier
    """)
    stamp(p, 'b2 pass1')
    a, r_ = lbl('ov'), lbl('ovr')
    p(f"""
    ds_read_b32 v{o}, v{vZ} offset:{UF + 4}
    ds_read_b32 v{e}, v{c}
    v_cmp_lt_u32 s[60:61], v{c}, v{o}
    v_cmp_lt_u32 vcc, {LIST + 2048}, v{o}
    s_cbranch_vccnz {a}
    """)
    p.raw(r_ + ':')
    LATE.append((a, [f'v_mov_b32 v{a0}, 0x100000', f'ds_or_b32 v{vZ}, v{a0} offset:{UF}', 's_waitcnt lgkmcnt(0)'], r_))
    p(f"""
    v_lshrrev_b32 v{a0}, 16, v{e}
    v_subrev_u32 v{a1}, s96, v{a0}
    v_subrev_u32 v{a0}, s97, v{a0}
    v_min_u32 v{c}, v{a0}, v{a1}
    v_cmp_gt_u32 vcc, s92, v{c}
    v_lshlrev_b32 v{a0}, 1, v{c}
    s_and_b64 s[60:61], s[60:61], vcc
    s_cbranch_scc0 L_p2done
    s_mov_b64 exec, s[60:61]
    ds_add_rtn_u32 v{o}, v{c}, v{vONE} offset:{OO}
    ds_read_b32 v{F}, v{c} offset:{NN}
    ds_read_b64 v[{T}:{T + 1}], v{a0} offset:{TT}
    v_mov_b32 v{Q}, 0
    v_mov_b32 v{S}, 0
    """)
    for qq in range(6):
        p(f"""
        v_bfe_u32 v{a0}, v{F}, {5 * qq}, 5
        v_sub_u32 v{a1}, 4, v{a0} clamp
        v_cmp_lt_u32 vcc, v{o}, v{a1}
        v_add_u32 v{a0}, v{a0}, v{o}
        v_sub_u32 v{o}, v{o}, v{a1}
        v_cndmask_b32 v{S}, v{S}, v{a0}, vcc
        """)
        if qq:
            p(f'v_cndmask_b32 v{Q}, v{Q}, {qq}, vcc')
    p(f"""
    v_lshrrev_b32 v{a0}, 2, v{o}
    v_add_u32 v{a0}, 6, v{a0}
    v_and_b32 v{a1}, 3, v{o}
    v_cmp_le_i32 vcc, 0, v{o}
    v_cndmask_b32 v{Q}, v{Q}, v{a0}, vcc
    v_cndmask_b32 v{S}, v{S}, v{a1}, vcc
    v_lshrrev_b32 v{a0}, 2, v{Q}
    v_mad_u32_u24 v{a0}, v{a0}, s93, v{T}
    v_lshl_add_u32 v{a0}, v{Q}, 1, v{a0}
    v_lshl_add_u32 v{a0}, v{S}, 6, v{a0}
    v_subrev_u32 v{T}, {CC}, v{T + 1}
    v_lshrrev_b32 v{T}, 8, v{T}
    v_lshlrev_b32 v{T}, v{T}, v{vONE}
    v_lshlrev_b32 v{F}, 10, v{T}
    v_cmp_lt_u32 vcc, 7, v{Q}
    v_cndmask_b32 v{F}, 0, v{F}, vcc
    v_or_b32 v{T}, v{T}, v{F}
    v_mov_b32 v{F}, 0x100000
    v_cmp_lt_u32 vcc, 9, v{Q}
    v_cndmask_b32 v{F}, 0, v{F}, vcc
    v_or_b32 v{T}, v{T}, v{F}
    v_cmp_gt_u32 vcc, 12, v{Q}
    s_and_b64 exec, s[60:61], vcc
    ds_write_b16 v{a0}, v{e}
    s_mov_b64 exec, s[60:61]
    v_cmp_lt_u32 vcc, 5, v{Q}
    s_and_b64 exec, exec, vcc
    ds_or_b32 v{vT1}, v{T} offset:{UF}
    s_mov_b64 exec, -1
    """)
    p.label('L_p2done')
    p(f"""
    s_lshl_b32 s96, s77, 14
    s_add_u32 s96, s96, {WS_D2}
    s_waitcnt lgkmcnt(0)
    s_barrier
    """)
    stamp(p, 'b2 done')
    if Cfg.fill_first:
        p(f's_mov_b32 exec_hi, 0xff\n{poll_load(vG0, vPL)}\ns_mov_b64 exec, -1')
    p(f"""
    ds_read_b128 v[{E}:{E + 3}], v{vT3} offset:{IMG}
    ds_read_b128 v[{E + 4}:{E + 7}], v{vT3} offset:{IMG + 1024}
    ds_read_b32 v{vFV}, v{vT1} offset:{UF}
    s_lshl_b32 s97, s77, 7
    s_add_u32 s97, s97, {F_B2}
    v_lshl_add_u32 v{vT2}, v1, 13, s97
    """)
    for i in range(8):
        p(f'v_xor_b32 v{E + i}, v{E + i}, v{PS + (i & 3)}')
    p(f"""
    buffer_store_dwordx4 v[{E}:{E + 3}], v{vT3}, {WSR}, s96 offen sc1
    s_mov_b32 exec_hi, 0xffffff
    buffer_store_dwordx4 v[{E + 4}:{E + 7}], v{vT3}, {WSR}, s96 offen offset:1024 sc1
    s_mov_b64 exec, -1
    v_or_b32 v{vFV}, 0x80000000, v{vFV}
    s_cmp_lg_u32 s{sW}, 7
    s_cbranch_scc1 L_nohdr
    s_mov_b64 exec, 0xff
    {flag_store(vT2)} sc1
    s_mov_b64 exec, -1
    """)
    p.vm.pop()
    p.label('L_nohdr')
    stamp(p, 'b2 flag')
    p(f"""
    v_mov_b32 v228, v108
    v_mov_b32 v229, v109
    s_mov_b32 s88, s80
    s_mov_b32 s89, s81
    """)
    if Cfg.fill_first:
        p('s_waitcnt vmcnt(2)')
        poll(p, vG0, 40, 1, first_issued=True, nap=Cfg.nap)
        p('s_branch L_g0ok')
    p.label('L_fill0')
    p.forget()
    if Cfg.tlb:
        p(f'v_lshlrev_b32 v{vT1}, {Cfg.tlb}, v1\ns_mov_b32 s96, {WS_TOK + TOK_PL - 128}\nbuffer_load_dword v2, v{vT1}, {WSR}, s96 offen')
    if Cfg.fill_first:
        poll(p, vG0, 40, 1, nap=Cfg.nap)
        p.label('L_g0ok')
        p.forget()
        p(f"""
        v_subrev_u32 v{vT1}, 1, v{vPL}
        v_cmp_ne_u32 vcc, s99, v{vT1}
        s_and_b32 s{sSLOW}, vcc_hi, 0xff
        """)
        stamp(p, 'g0 seen')
        for x in fill_list():
            p(x)
    emit_misc_loads(p)
    X = 46
    p(f's_lshl_b32 s96, s{sU}, 7\ns_lshl_b32 s97, s{sXC}, 13\ns_add_u32 s96, s96, s97\ns_add_u32 s96, s96, {F_B2}\nv_mov_b32 v{vT3}, s96')
    p(f"""
    s_bfe_u32 s96, s2, 0x30002
    s_lshl_b32 s96, s96, 12
    s_add_u32 s96, s96, {F_TOK}
    v_lshl_add_u32 v{vTP}, v1, 7, s96
    s_lshl_b32 s96, s{sJ}, 5
    s_add_u32 s96, s96, s{sSL}
    s_lshl_b32 s96, s96, 7
    s_add_u32 s96, s96, {F_TOK}
    v_mov_b32 v{vTF}, s96
    s_mov_b32 s{sK}, 1
    s_lshl_b32 s96, s{sU}, 10
    s_add_u32 s96, s96, {TBL}
    v_lshl_add_u32 v{vOWN}, v1, 4, s96
    """)
    for i in range(7):
        p(f's_add_u32 s95, s{sJ}, {i + 1}\ns_and_b32 s95, s95, 7\ns_lshl_b32 s{sOFF + i}, s95, 10')
    p('s_mov_b32 s92, 0x200000\ns_mov_b32 s93, 0')
    poll(p, vT3, 1, '0x80000000', bound='s[92:93]', nap=Cfg.hnap)
    p(f"""
    v_readfirstlane_b32 s{sQ}, v{vPL}
    v_and_b32 v{vD1}, 0xffff0000, v{vD0}
    v_lshlrev_b32 v{vD0}, 16, v{vD0}
    v_lshlrev_b32 v{vD2}, 16, v{vD2}
    v_lshlrev_b32 v{vT1}, 4, v1
    s_mov_b32 s93, {TBL}
    """)
    if Cfg.force_slow:
        p(f's_and_b32 s96, s{sU}, {Cfg.force_slow - 1}\ns_cselect_b32 s96, 0, 0x100000\ns_or_b32 s{sQ}, s{sQ}, s96')
    p(f's_mov_b32 s{sFC}, 0')
    stamp(p, 'hdr seen')
    p.label('L_imp')
    p(f's_lshl_b32 s96, s{sU}, 14\ns_add_u32 s96, s96, {WS_D2}')
    reg = lambda c: X + 4 * c if c < 10 else 200 + 4 * (c - 10)

    def chunk(c):
        if c and c % 4 == 0:
            p('s_add_u32 s96, s96, 4096')
        p(f'buffer_load_dwordx4 v[{reg(c)}:{reg(c) + 3}], v{vT1}, {WSR}, s96 offen offset:{1024 * (c % 4)} sc1')

    def unpack(c):
        r = reg(c)
        for i in range(4):
            p(f'v_xor_b32 v{r + i}, v{r + i}, v{PS + i}')
        p(f'v_or3_b32 v{vT2}, v{vT2}, v{r}, v{r + 1}\nv_or3_b32 v{vT2}, v{vT2}, v{r + 2}, v{r + 3}')
        for i in range(4):
            b, q = 2 * (c % 5) + (i >> 1), 4 * (c // 5) + 2 * (i & 1)
            if q < 10:
                p(f'v_mad_u32_u16 v{ADDR(b, q)}, v{r + i}, 8, s93')
                p(f'v_mad_u32_u16 v{ADDR(b, q + 1)}, v{r + i}, 8, s93 op_sel:[1,0,0,0]')
    if Cfg.coop:
        a = lbl('f0')
        p(f's_cmp_lg_u32 s{sFC}, 0\ns_cbranch_scc1 L_impre\ns_mov_b32 s{sFC}, 1')
        q = Prog()
        q.auto = False
        pp, p_ = p, q

        def chunk2(pr, c):
            if c and c % 4 == 0:
                pr('s_add_u32 s96, s96, 4096')
            pr(f'buffer_load_dwordx4 v[{reg(c)}:{reg(c) + 3}], v{vT1}, {WSR}, s96 offen offset:{1024 * (c % 4)} sc1')
        for c in range(10):
            chunk2(q, c)
        q('s_waitcnt vmcnt(0)')
        LATE.append(('L_impre', [l.strip() for l in q.L], a))
        p(f"""
        s_lshr_b32 s97, s{sR}, 3
        s_mul_i32 s97, s97, 2560
        s_add_u32 s97, s97, s96
        v_lshlrev_b32 v{vT0}, 7, v1
        s_mov_b64 exec, 0xfffff
        buffer_load_dword v2, v{vT0}, {WSR}, s97 offen sc1
        s_mov_b64 exec, -1
        s_mov_b32 exec_hi, 0xff
        {poll_load(vG0, vPL)}
        s_mov_b64 exec, -1
        """)
        for c in range(10):
            chunk(c)
        vm = list(p.vm)
        poll(p, vG0, 40, 1, first_issued=True)
        p(f"""
        v_subrev_u32 v{vT1}, 1, v{vPL}
        v_cmp_ne_u32 vcc, s99, v{vT1}
        s_and_b32 s{sSLOW}, vcc_hi, 0xff
        s_lshl_b32 s97, s{sJ}, 10
        s_add_u32 m0, s{sLA}, s97
        s_add_u32 s97, s97, s{sGO}
        buffer_load_dwordx4 v{vDA}, {WSR}, s97 offen sc1 lds
        buffer_load_dword v2, v{vGB}, {WSR}, s{sGO} offen sc1
        """)
        stamp(p, 'g0 seen')
        for i in range(7):
            p(f's_add_u32 m0, s{sLA}, s{sOFF + i}\ns_add_u32 s97, s{sGO}, s{sOFF + i}')
            p(f'buffer_load_dwordx4 v{vDA}, {WSR}, s97 offen sc1 lds')
        for x in fill_list()[-3:]:
            p(x)
        p(f's_mov_b32 s93, {TBL}\nv_lshlrev_b32 v{vT1}, 4, v1')
        p.label(a)
    else:
        for c in range(10):
            chunk(c)
    if not Cfg.fill_first and not Cfg.coop:
        a = lbl('f0')
        p(f's_cmp_lg_u32 s{sFC}, 0\ns_cbranch_scc1 L_impwait\ns_mov_b32 s{sFC}, 1')
        LATE.append(('L_impwait', ['s_waitcnt vmcnt(0)'], a))
        poll(p, vG0, 40, 1)
        p(f"""
    v_subrev_u32 v{vT1}, 1, v{vPL}
        v_cmp_ne_u32 vcc, s99, v{vT1}
        s_and_b32 s{sSLOW}, vcc_hi, 0xff
        """)
        stamp(p, 'g0 seen')
        for x in fill_list():
            p(x)
        p(f's_lshl_b32 s96, s{sU}, 14\ns_add_u32 s96, s96, {WS_D2 + 8192}\ns_mov_b32 s93, {TBL}\nv_lshlrev_b32 v{vT1}, 4, v1')
        p.label(a)
        p.forget()
    p(f'v_mov_b32 v{vT2}, 0')
    a = lbl('np4')
    p(f's_and_b32 s97, s{sQ}, 0xffc00\ns_cbranch_scc0 {a}')
    vm = list(p.vm)
    for c in range(10, 15):
        chunk(c)
    for c in range(10, 15):
        unpack(c)
    p.vm = vm
    p.label(a)
    for c in range(10):
        unpack(c)
    p(f"""
    v_and_b32 v{vT2}, 0xc000c000, v{vT2}
    v_cmp_ne_u32 vcc, 0, v{vT2}
    s_cbranch_vccnz L_impagain
    """)
    LATE.append(('L_impagain', ['s_waitcnt vmcnt(0)', f's_add_u32 s{sSPIN}, s{sSPIN}, 1', f's_cmp_gt_u32 s{sSPIN}, {SPIN_MAX}', 's_cbranch_scc1 L_end'], 'L_imp'))
    p(f"""
    v_lshrrev_b32 v{vT0}, 3, v1
    v_lshlrev_b32 v{vT0}, 7, v{vT0}
    v_and_b32 v{vT1}, 7, v1
    v_lshl_add_u32 v{vT0}, v{vT1}, 3, v{vT0}
    s_lshl_b32 s96, s{sSL}, 10
    s_lshl_b32 s97, s{sW}, 8
    s_add_u32 s96, s96, s97
    v_add_u32 v{vG0}, s96, v{vT0}
    s_cmp_eq_u32 s{sW}, 7
    s_cselect_b64 vcc, -1, 0
    v_cndmask_b32 v{vG0}, v{vG0}, v{vTP}, vcc
    v_min_u32 v{vT1}, 16, v1
    v_and_b32 v{vT0}, 7, v{vT1}
    v_lshlrev_b32 v{vT0}, 9, v{vT0}
    v_lshrrev_b32 v{vT1}, 3, v{vT1}
    v_lshl_add_u32 v{vT0}, v{vT1}, 12, v{vT0}
    v_add_u32 v{vT0}, {F_TOK + 4096}, v{vT0}
    s_cmp_eq_u32 s{sW}, 6
    s_cselect_b64 vcc, -1, 0
    v_cndmask_b32 v{vG0}, v{vG0}, v{vT0}, vcc
    s_mov_b32 s87, 0
    s_waitcnt vmcnt(0)
    s_barrier
    s_and_b32 s96, s{sR}, 3
    s_cbranch_scc0 L_bx
    L_bxr:
    s_or_b32 s96, s2, s{sW}
    s_cbranch_scc1 L_keeptag
    v_mov_b32 v{vT0}, {WS_TAG}
    s_mov_b64 exec, 1
    buffer_store_dword v{vNON}, v{vT0}, {WSR}, 0 offen sc1
    s_mov_b64 exec, -1
    """)
    LATE.append(('L_bx', [f'buffer_load_dwordx4 v[46:49], v230, s[{sX_}:{sX_ + 3}], s88 offen',
                          f'buffer_load_dwordx4 v[50:53], v230, s[{sX_}:{sX_ + 3}], s89 offen',
                          'v_mov_b32 v54, v228', 'v_mov_b32 v55, v229', f's_mov_b32 s{sTASK}, 17'], 'L_bxr'))
    p.label('L_keeptag')
    p(f's_cmp_lt_u32 s{sTASK}, 17\ns_cbranch_scc1 L_prepA')
    p.label('L_prepA_back')
    if Cfg.dump_tbl:
        p(f'v_lshlrev_b32 v60, 4, v0\nv_add_u32 v61, {TBL}, v60\ns_mul_i32 s96, s2, 81920\ns_add_u32 s96, s96, 0x4000000')
        for i in range(10):
            p(f'ds_read_b128 v[64:67], v61 offset:{8192 * i if i < 8 else 0}' if i < 8 else f'v_add_u32 v62, {8192 * i}, v61\nds_read_b128 v[64:67], v62')
            p(f'buffer_store_dwordx4 v[64:67], v60, {WSR}, s96 offen\ns_add_u32 s96, s96, 8192\ns_waitcnt vmcnt(0)')
    stamp(p, 'ready')


def emit_reads(p, b):
    rd = lambda q: f'ds_read_b64_tr_b16 v[{DATA(b, q)}:{DATA(b, q) + 1}], v{ADDR(b, q)}'
    for q in range(6):
        p(rd(q))
    a, r = lbl('r'), lbl('rr')
    p(f's_bitcmp1_b32 s{sQ}, {b}\ns_cbranch_scc1 {a}')
    p.raw(r + ':')
    LATE.append((a, [rd(6), rd(7), f's_bitcmp1_b32 s{sQ}, {10 + b}', f's_cbranch_scc0 {r}', rd(8), rd(9)], r))


def emit_mfmas(p, b):
    D = (D0, D1, D2)[b >> 2]
    sel = SEL + 4 * (b & 3)
    for i in range(3):
        p(mf32(D, DATA(b, 2 * i), sel, None if (b & 3) == 0 and i == 0 else D))
    a, r = lbl('m'), lbl('mr')
    p(f's_bitcmp1_b32 s{sQ}, {b}\ns_cbranch_scc1 {a}')
    p.raw(r + ':')
    g = Ins(mf32(D, DATA(b, 6), sel, D))
    g.ghost = True
    p.hist.append(g)
    LATE.append((a, [mf32(D, DATA(b, 6), sel, D), f's_bitcmp1_b32 s{sQ}, {10 + b}', f's_cbranch_scc0 {r}', mf32(D, DATA(b, 8), sel, D)], r))


def stage_plane(p, spl):
    a = lbl('sp')
    p(f'''
    s_mul_i32 s92, s{spl}, {TOK_PL}
    s_add_u32 s92, s92, {WS_TOK}
    s_mul_i32 s93, s{spl}, {L_PL}
    s_lshl_b32 s94, s{sW}, 10
    s_add_u32 s93, s93, s94
    s_mov_b32 m0, s93
    s_cmp_ge_u32 s{sW}, 2
    buffer_load_dwordx4 v{vK0}, {WSR}, s92 offen sc1 lds
    s_cbranch_scc1 {a}
    s_add_u32 m0, s93, 8192
    s_cmp_lg_u32 0, 0
    buffer_load_dwordx4 v{vK1}, {WSR}, s92 offen sc1 lds
    ''')
    p.vm.pop()
    p.raw(a + ':')


YA, YB, LA, LB, Y = 46, 47, 48, 49, 68


E0, E1 = 50, 51


def x_addr(p):
    p(f"""
    s_lshl_b32 s93, s{sW}, 2
    v_bfe_u32 v{vT2}, v1, 3, 2
    v_add_u32 v{vT2}, s93, v{vT2}
    v_lshlrev_b32 v{YB}, 15, v{vT2}
    v_mul_u32_u24 v{LB}, 320, v{vT2}
    v_and_b32 v{vT2}, 7, v1
    v_lshl_add_u32 v{YB}, v{vT2}, 4, v{YB}
    v_lshl_add_u32 v{LB}, v{vT2}, 3, v{LB}
    v_add_u32 v{LB}, {7 * L_PL + 256}, v{LB}
    s_lshl_b32 s82, s2, 7
    s_add_u32 s82, s82, {WS_X7}
    s_lshl_b32 s92, s{sSL}, 15
    s_lshl_b32 s96, s{sU}, 9
    s_add_u32 s92, s92, s96
    v_lshl_add_u32 v{vGB}, v{vBL}, 4, s92
    v_mov_b32 v{Z2 + 2}, v{vNON}
    v_mov_b32 v{Z2 + 3}, v{vNON}
    s_lshl_b32 s96, s2, 8
    s_lshr_b32 s97, s96, 2
    s_add_u32 s97, s97, {65536 - 256}
    s_mov_b32 s92, 81920
    v_mul_u32_u24 v{vT1}, 3277, v1
    v_lshrrev_b32 v{vT1}, 16, v{vT1}
    v_mul_u32_u24 v{vT2}, 20, v{vT1}
    v_sub_u32 v{vT2}, v1, v{vT2}
    v_add_u32 v{vT1}, s93, v{vT1}
    v_mul_lo_u32 v{vT1}, v{vT1}, s92
    v_mov_b32 v{vT0}, s97
    v_mov_b32 v{vT3}, s96
    v_cmp_gt_u32 vcc, 16, v{vT2}
    v_cndmask_b32 v{E0}, v{vT0}, v{vT3}, vcc
    s_mov_b64 s[80:81], vcc
    v_lshl_add_u32 v{E0}, v{vT2}, 4, v{E0}
    v_add_u32 v{E0}, v{E0}, v{vT1}
    v_cmp_gt_u32 vcc, 12, v1
    v_cndmask_b32 v{E1}, v{vT0}, v{vT3}, vcc
    v_lshl_add_u32 v{E1}, v1, 4, v{E1}
    s_add_u32 s93, s93, 3
    s_mul_i32 s93, s93, 81920
    s_add_u32 s93, s93, 64
    v_add_u32 v{E1}, s93, v{E1}
    """)


def emit_slow_unit(p):
    n0, n1, n2, ed, es, m0_, m1_ = 200, 201, 202, 203, 204, 205, 206
    X = 208
    p.label('L_slow')
    p.forget()
    for i in range(12):
        p(f'v_mov_b32 v{D0 + i}, 0')
    p(f'''
    s_lshl_b32 s96, s{sU}, 7
    v_lshl_add_u32 v{n0}, v1, 1, s96
    v_add_u32 v{n1}, 1, v{n0}
    s_lshl_b32 s96, s{sU}, 5
    s_add_u32 s96, s96, 8192
    v_add_u32 v{n2}, s96, v{vBL}
    v_lshlrev_b32 v{X + 8}, 2, v1
    s_mov_b32 s92, 0
    s_add_u32 s94, s{sU}, 256
    ''')
    p.label('L_slow_e')
    p(f'''
    buffer_load_dword v{ed}, v{X + 8}, s[{sDST}:{sDST + 3}], s92 offen
    buffer_load_dword v{es}, v{X + 8}, s[{sSRC}:{sSRC + 3}], s92 offen
    s_waitcnt vmcnt(0)
    v_lshrrev_b32 v{m0_}, 7, v{ed}
    v_lshrrev_b32 v{m1_}, 5, v{ed}
    v_cmp_eq_u32 s[96:97], s{sU}, v{m0_}
    v_cmp_eq_u32 vcc, s94, v{m1_}
    s_or_b64 s[96:97], s[96:97], vcc
    ''')
    p.label('L_slow_b')
    p(f'''
    s_cmp_eq_u64 s[96:97], 0
    s_cbranch_scc1 L_slow_n
    s_ff1_i32_b64 s95, s[96:97]
    s_bitset0_b64 s[96:97], s95
    v_readlane_b32 s98, v{ed}, s95
    v_readlane_b32 s99, v{es}, s95
    s_lshl_b32 s99, s99, 3
    s_add_u32 s99, s99, {TBL}
    v_mov_b32 v{X + 6}, s99
    ds_read_b64 v[{X + 4}:{X + 5}], v{X + 6}
    s_waitcnt lgkmcnt(0)
    v_lshlrev_b32 v{X}, 16, v{X + 4}
    v_and_b32 v{X + 1}, 0xffff0000, v{X + 4}
    v_lshlrev_b32 v{X + 2}, 16, v{X + 5}
    v_and_b32 v{X + 3}, 0xffff0000, v{X + 5}
    ''')
    for D, n in ((D0, n0), (D1, n1), (D2, n2)):
        p(f'v_cmp_eq_u32 vcc, s98, v{n}\ns_mov_b64 exec, vcc')
        for i in range(4):
            p(f'v_add_f32 v{D + i}, v{D + i}, v{X + i}')
        p('s_mov_b64 exec, -1')
    p('s_branch L_slow_b')
    p.label('L_slow_n')
    p('s_add_u32 s92, s92, 256\ns_cmp_lt_u32 s92, 640000\ns_cbranch_scc1 L_slow_e')
    p(f's_cmp_eq_u32 s{sK}, 7\ns_cbranch_scc1 L_slow7')
    for x in finish(D0, vD0, HA, GA) + finish(D1, vD1, HA + 2, GA + 2):
        p(x)
    poll(p, vFP, 0xff, f's{sFC}')
    xstore(p, [f'buffer_store_dwordx4 v[{GA}:{GA + 3}], v{vGA}, {WSR}, s{sGO} offen'])
    emit_flag_a(p)
    emit_tok_check(p)
    p('s_branch L_gath_done')
    p.label('L_slow7')
    p.auto = False
    for x in finish(D0, vD0, HA, GA)[:6] + finish(D1, vD1, HA + 2, GA)[:6]:
        p(x)
    x_addr(p)
    p(a7_store())
    p.auto = True
    p('s_branch L_gath7_done')


def emit_flag_a(p):
    p(f'v_mov_b32 v{vFV}, s{sFA}\ns_waitcnt vmcnt(0)')
    xstore(p, ['s_mov_b64 exec, 1', flag_store(vFO), 's_mov_b64 exec, -1'])
    if Cfg.pa_early:
        p(f's_mov_b64 exec, 0xff\n{poll_load(vFP, vPL)}\ns_mov_b64 exec, -1')


def x7_store(z, vaddr, so):
    return f'buffer_store_dwordx4 v[{z}:{z + 3}], v{vaddr}, {WSR}, s{so} offen sc1'


def emit_tok_check(p):
    a, r = lbl('tc'), lbl('tcr')
    p(f's_cmp_lg_u32 s87, 0\ns_cbranch_scc1 {a}')
    p.raw(r + ':')
    q = Prog()
    poll(q, vG0, 32, 's87', first_issued=True, res=vP2, so='s40', nap=Cfg.nap)
    LATE.append((a, [l.strip() for l in q.L], r))


def a7_store():
    return f'buffer_store_dwordx4 v[{HA}:{HA + 3}], v{vGA}, {WSR}, s{sTO} offen sc1'


def alt7(p, normal, alt):
    a, r = lbl('a7'), lbl('a7r')
    p(f's_cmp_eq_u32 s{sK}, 7\ns_cbranch_scc1 {a}')
    p.opt_begin()
    normal()
    p.opt_end(r)
    q = Prog()
    q.auto = False
    q('s_nop 7')
    alt(q)
    LATE.append((a, [l.strip() for l in q.L], r))


def emit_gather(p):
    if Cfg.prio_until:
        a = lbl('np')
        p(f's_cmp_lt_u32 s{sW}, 4\ns_cbranch_scc1 {a}\ns_setprio 1')
        p.raw(a + ':')
    emit_reads(p, 0)
    for b in range(10):
        if b < 9:
            emit_reads(p, b + 1)
        p(f's_waitcnt lgkmcnt({6 if b < 9 else 0})')
        emit_mfmas(p, b)
        if b == 4:
            def n4():
                for x in finish(D0, vD0, HA, GA):
                    p(x)
                p(f's_mov_b64 exec, 0xff\n{poll_load(vFP, vPL)}\ns_mov_b64 exec, -1')

            def a4(q):
                for x in finish(D0, vD0, HA, GA)[:6]:
                    q(x)
                x_addr(q)
            alt7(p, n4, a4)
        if Cfg.prio_until and b == Cfg.prio_until:
            p('s_setprio 0')
        if b == 7:
            def n7():
                for x in finish(D1, vD1, HA + 2, GA + 2):
                    p(x)
                stamp(p, 'w0', True)
                p('s_waitcnt vmcnt(0)')
                stamp(p, 'w1', True)
                p._inopt = False
                poll(p, vFP, 0xff, f's{sFC}', first_issued=True)
                m = p._optmark
                xstore(p, [f'buffer_store_dwordx4 v[{GA}:{GA + 3}], v{vGA}, {WSR}, s{sGO} offen'])
                p._optmark = m

            def a7(q):
                for x in finish(D1, vD1, HA + 2, GA)[:6]:
                    q(x)
                q('s_cmp_lg_u32 s87, 0\ns_cselect_b32 exec_lo, -1, 0\ns_mov_b32 exec_hi, 0')
                q(poll_load(vG0, vP2, 's40'))
                q('s_mov_b64 exec, -1')
                q(a7_store())
            alt7(p, n7, a7)
        if b == 8:
            def n8():
                m = p._optmark
                emit_flag_a(p)
                p._optmark = m
            def n8b():
                n8()
                m = p._optmark
                emit_tok_check(p)
                p._optmark = m
            alt7(p, n8b, lambda q: None)


def emit_hops(p):
    p(f's_branch L_hop1')
    p.label('L_hop')
    p(f"""
    s_sub_u32 s93, s{sK}, 2
    {"" if Cfg.notok else f"buffer_store_dwordx4 v[{HA}:{HA + 3}], v{vGA}, {WSR}, s{sTO} offen sc1"}
    {"" if Cfg.notok else f"buffer_store_dwordx2 v[{HB}:{HB + 1}], v{vGB}, {WSR}, s{sTO} offen sc1"}
    """)
    p(f"""
    v_mov_b32 v{vFV}, s93
    s_cmp_lg_u32 s{sW}, 0
    s_cbranch_scc1 L_notf
    s_lshl_b32 s93, s93, 15
    s_mov_b64 exec, 1
    {flag_store(vTF, 's93')} sc1
    s_mov_b64 exec, -1
    """)
    p.raw('L_notf:')
    p(f"""
    s_cmp_lt_u32 s{sK}, {Cfg.lag + 1}
    s_cbranch_scc1 L_hop1
    s_sub_u32 s87, s{sK}, {Cfg.lag}
    s_cmp_eq_u32 s{sK}, 7
    s_cselect_b32 s87, 5, s87
    s_cmp_eq_u32 s{sW}, 7
    s_cselect_b32 s87, s87, 0
    s_lshl_b32 s92, s{sW}, 3
    s_add_u32 s92, s92, s{sK}
    s_cmp_eq_u32 s92, 54
    s_cselect_b32 s87, 3, s87
    s_lshl_b32 s40, s87, 15
    s_lshl_b32 s92, s{sK}, 8
    s_add_u32 s92, s92, s{sTASK}
    s_sub_u32 s92, s92, 0x400
    s_cmp_lt_u32 s92, 16
    s_cbranch_scc1 L_prepD
    s_cmp_gt_u32 s{sK}, {Cfg.lag + 1}
    s_cbranch_scc1 L_stg
    L_stgr:
    s_cmp_lg_u32 s87, 0
    s_cbranch_scc1 L_tpl
    """)
    q = Prog()
    q.auto = False
    q(f's_sub_u32 s95, s{sK}, {Cfg.lag + 1}')
    if not Cfg.nostage:
        stage_plane(q, 95)
    q(f"""
    s_cmp_lg_u32 s{sK}, {Cfg.junk_at}
    s_cbranch_scc1 L_stgr
    s_lshl_b32 s92, s{sR}, 3
    s_add_u32 s92, s92, s{sW}
    s_mul_i32 s92, s92, 288
    s_add_u32 s92, s92, {WS_WF}
    v_lshlrev_b32 v{vT0}, 5, v1
    s_mov_b64 exec, 0x1ff
    buffer_load_dword v2, v{vT0}, {WSR}, s92 offen
    s_mov_b64 exec, -1
    """)
    LATE.append(('L_stg', [l.strip() for l in q.L], 'L_stgr'))
    LATE.append(('L_tpl', [f's_cmp_eq_u32 s{sK}, 7', 's_cbranch_scc1 L_hop1', 's_mov_b32 exec_hi, 0', poll_load(vG0, vP2, 's40'), 's_mov_b64 exec, -1'], 'L_hop1'))
    p.label('L_hop1')
    p.auto = False
    p(f'''
    s_add_u32 s{sTO}, s{sTO}, {TOK_PL}
    s_mul_i32 s{sFC}, s{sK}, 3
    s_add_u32 s{sFA}, s{sFC}, 1
    s_add_u32 s{sFB}, s{sFC}, 2
    v_mov_b32 v{vFV}, s{sFC}
    ''')
    xstore(p, ['s_mov_b64 exec, 1', flag_store(vFO), 's_mov_b64 exec, -1'])
    p(f'''
    s_bitcmp1_b32 s{sQ}, 20
    s_cbranch_scc1 L_slow
    ''')
    emit_gather(p)
    p.label('L_gath_done', keep=True)
    p.forget()
    p(f'''
    s_cmp_eq_u32 s{sK}, 7
    s_cbranch_scc1 L_gath7_done
    ''')
    if not Cfg.pa_early and Cfg.pa_pre != 3:
        p(f's_mov_b64 exec, 0xff\n{poll_load(vFP, vPL)}\ns_mov_b64 exec, -1')
    for x in finish(D2, vD2, HB, GB):
        p(x)
    xstore(p, [f'buffer_store_dwordx2 v[{GB}:{GB + 1}], v{vGB}, {WSR}, s{sGO} offen'])
    stamp(p, 'gath', True)
    if Cfg.pa_pre == 1:
        p('s_waitcnt vmcnt(1)')
        poll(p, vFP, 0xff, f's{sFA}', first_issued=True)
    if Cfg.pa_pre in (2, 3):
        p(f'v_mov_b32 v{vFV}, s{sFB}\ns_waitcnt vmcnt(0)')
        xstore(p, ['s_mov_b64 exec, 1', flag_store(vFO), 's_mov_b64 exec, -1'])
    if Cfg.pa_pre == 2:
        poll(p, vFP, 0xff, f's{sFA}', first_issued=True)
    if Cfg.pa_pre == 3:
        p(f's_mov_b64 exec, 0xff\n{poll_load(vFP, vPL)}\ns_mov_b64 exec, -1')
    p('s_barrier')
    stamp(p, 'bar1', True)
    if Cfg.pa_pre < 2:
        p(f'v_mov_b32 v{vFV}, s{sFB}\ns_waitcnt vmcnt(0)')
        xstore(p, ['s_mov_b64 exec, 1', flag_store(vFO), 's_mov_b64 exec, -1'])
    if Cfg.pa_pre == 3:
        p('s_waitcnt vmcnt(0)')
    if Cfg.pa_pre in (0, 3):
        poll(p, vFP, 0xff, f's{sFA}', first_issued=True)
    stamp(p, 'pollA', True)

    def dA(i):
        p(f's_add_u32 m0, s{sLA}, s{sOFF + i}\ns_add_u32 s97, s{sGO}, s{sOFF + i}')
        p(f'buffer_load_dwordx4 v{vDA}, {WSR}, s97 offen sc1 lds')
    for i in range(Cfg.pollb_at):
        dA(i)
    p(f"""
    s_cmp_lt_u32 s{sW}, 4
    s_cselect_b32 exec_lo, 0xffff, 0
    s_mov_b32 exec_hi, 0
    {poll_load(vG0, vPL)}
    s_mov_b64 exec, -1
    """)
    for i in range(Cfg.pollb_at, 7):
        dA(i)
    p(f'ds_write_b128 v{vOWN}, v[{GA}:{GA + 3}]')
    p(f's_cmp_ge_u32 s{sW}, 4\ns_cbranch_scc1 L_nob\ns_waitcnt vmcnt({7 - Cfg.pollb_at})')
    poll(p, vG0, 0xffff, f's{sFB}', first_issued=True)
    stamp(p, 'pollB', True)
    p(f's_mov_b32 m0, s{sLB}')
    for j in range(4):
        p(f'buffer_load_dwordx4 v{vDB}, {WSR}, s{sGO} offen offset:{1024 * j} sc1 lds')
    p.raw('L_nob:')
    stamp(p, 'pp0', True)
    p(f's_cmp_lt_u32 s{sTASK}, 18\ns_cbranch_scc1 L_prepW')
    p.raw('L_prepB_back:')
    stamp(p, 'pp1', True)
    LATE.append(('L_bxw', ['ds_write_b64 v54, v[46:47]', 'ds_write_b64 v54, v[48:49] offset:320',
                           'ds_write_b64 v55, v[50:51] offset:256', 'ds_write_b64 v55, v[52:53] offset:576', f's_mov_b32 s{sTASK}, 99'], 'L_prepB_back'))
    LATE.append(('L_prepW', [f's_cmp_eq_u32 s{sTASK}, 17', 's_cbranch_scc1 L_bxw', f's_cmp_eq_u32 s{sK}, 1', 's_cbranch_scc1 L_prepB', f's_cmp_eq_u32 s{sTASK}, 16', 's_cbranch_scc1 L_prepB_back',
                             f's_cmp_eq_u32 s{sK}, 2', 's_cbranch_scc1 L_prepB2',
                             f's_cmp_eq_u32 s{sK}, 3', 's_cbranch_scc1 L_prepC'], 'L_prepB_back'))
    p(f'''
    s_waitcnt vmcnt(0) lgkmcnt(0)
    L_bar2:
    s_barrier
    ''')
    stamp(p, 'bar2', True)
    p(f's_add_u32 s{sK}, s{sK}, 1\ns_branch L_hop')
    p.auto = True
    emit_slow_unit(p)
    emit_prep_blocks(p)
    emit_late(p)


def emit_handoff(p):
    p.label('L_gath7_done')
    p.forget()
    p.auto = False
    p(f's_mov_b32 s94, {WS_X7}\ns_nop 4')
    for x in finish(D2, vD2, Z2, GB)[:6]:
        p(x)
    p('s_waitcnt vmcnt(0)')
    p(x7_store(Z2, vGB, 94))
    stamp(p, 'gath7')
    emit_tok_check(p)
    p('s_barrier')
    for pl in range(7 - Cfg.lag, 6):
        p(f's_mov_b32 s95, {pl}')
        stage_plane(p, 95)
    p(f"""
    v_lshlrev_b32 v{vT2}, 4, v1
    s_lshl_b32 s92, s{sW}, 13
    s_add_u32 s93, s92, {WS_WF}
    s_add_u32 s92, s92, {L_W}
    s_mov_b32 m0, s92
    s_add_u32 s94, s93, 4096
    """)
    ldb = f'buffer_load_dwordx4 v[{Y + 8}:{Y + 11}], v{YB}, {WSR}, s82 offen sc1'
    for i in range(8):
        if i == 4:
            p('s_add_u32 m0, s92, 4096')
        if i == Cfg.x7_at:
            p(f's_mov_b32 exec_hi, 0\n{ldb}\ns_mov_b64 exec, -1')
        p(f'buffer_load_dwordx4 v{vT2}, {WSR}, s{93 + i // 4} offen offset:{1024 * (i % 4)} sc1 lds')
    p(f"""
    s_and_b32 s92, s{sW}, 3
    s_lshl_b32 s92, s92, 10
    s_add_u32 s93, s92, {WS_WF + 65536}
    s_add_u32 m0, s92, {L_LIN}
    v_mov_b32 v{vT3}, {WS_WF + 69632}
    buffer_load_dwordx4 v{vT2}, {WSR}, s93 offen sc1 lds
    buffer_load_dword v{vSWR}, v{vT3}, {WSR}, 0 offen sc1
    s_lshr_b32 s78, s2, 2
    s_and_b32 s79, s2, 3
    """)
    p.auto = True
    p.forget()
    emit_tf_setup(p, sW, 78, 79, 92)
    p('s_mov_b32 exec_hi, 0')
    if Cfg.x7_at > 7:
        p(ldb)
    p(f's_waitcnt vmcnt({max(0, 10 - Cfg.x7_at)})')
    chk = [f'v_xor_b32 v{vT0}, v{Y + 10}, v{vNON}', f'v_xor_b32 v{vT1}, v{Y + 11}, v{vNON}', f'v_or_b32 v{vT0}, v{vT0}, v{vT1}',
           f'v_cmp_ne_u32 vcc, 0, v{vT0}', 's_cbranch_vccnz L_x7again']
    for x in chk:
        p(x)
    LATE.append(('L_x7again', [f's_sleep {Cfg.nap}', ldb, f's_add_u32 s{sSPIN}, s{sSPIN}, 1', f's_cmp_gt_u32 s{sSPIN}, {SPIN_MAX}',
                               's_cbranch_scc1 L_end', 's_waitcnt vmcnt(0)'] + chk, 'L_x7ok'))
    p.label('L_x7ok')
    p(f'ds_write_b64 v{LB}, v[{Y + 8}:{Y + 9}]\ns_mov_b64 exec, -1')
    stamp(p, 'hint7')
    p(f"""
    s_mul_i32 s93, s{sW}, 1280
    s_mov_b32 s92, {WS_TOK + 6 * TOK_PL}
    s_mov_b32 s94, {WS_TOK + 7 * TOK_PL}
    s_add_u32 m0, s93, {6 * L_PL}
    s_nop 0
    buffer_load_dwordx4 v{E0}, {WSR}, s92 offen sc1 lds
    s_add_u32 m0, s93, {7 * L_PL}
    s_mov_b64 exec, s[80:81]
    buffer_load_dwordx4 v{E0}, {WSR}, s94 offen sc1 lds
    s_add_u32 m0, s93, {6 * L_PL + 1024}
    s_mov_b64 exec, 0xffff
    buffer_load_dwordx4 v{E1}, {WSR}, s92 offen sc1 lds
    s_add_u32 m0, s93, {7 * L_PL + 1024}
    s_mov_b64 exec, 0xfff
    buffer_load_dwordx4 v{E1}, {WSR}, s94 offen sc1 lds
    s_mov_b64 exec, -1
    """)
    if Cfg.st:
        p(f'''
        v_writelane_b32 v{vST}, s{sQ}, 22
        v_writelane_b32 v{vST}, s{sSLOW}, 23
        s_lshl_b32 s80, s2, 3
        s_add_u32 s80, s80, s{sW}
        s_lshl_b32 s80, s80, 8
        s_add_u32 s80, s80, {WS_OVF}
        v_lshl_add_u32 v{vT0}, v1, 2, s80
        buffer_store_dword v{vST}, v{vT0}, {WSR}, 0 offen
        ''')
    p('s_waitcnt vmcnt(0) lgkmcnt(0)\ns_barrier')
    if Cfg.st:
        p('s_memtime s[82:83]\ns_waitcnt lgkmcnt(0)')
    p(f's_cmp_ge_u32 s{sW}, 4\ns_cbranch_scc1 L_tf_two')
    emit_tf(p, 3, sOUT)
    p('s_branch L_tf_fin')
    emit_late(p)
    p.label('L_tf_two')
    p.forget()
    emit_tf(p, 2, sOUT)
    p.label('L_tf_fin')
    if Cfg.st:
        p(f'''
        s_memtime s[84:85]
        s_memrealtime s[86:87]
        s_waitcnt lgkmcnt(0)
        v_mov_b32 v2, s80
        v_mov_b32 v4, s82
        v_mov_b32 v5, s84
        v_mov_b32 v6, s86
        s_mov_b64 exec, 1
        buffer_store_dwordx2 v[4:5], v2, {WSR}, 0 offen offset:248
        buffer_store_dword v6, v2, {WSR}, 0 offen offset:80
        ''')


def gen(st=False, **kw):
    Cfg.st = st
    for k, v in kw.items():
        setattr(Cfg, k, v)
    STAMPS.clear()
    PRIO.clear()
    PRIO.update({(2, 1): 1})
    OPT.update(pk3=0, pk5=1, bw=1)
    p = Prog()
    p.raw('; @launch grid=(256,1,1) block=(512,1,1) lds=163840')
    p.raw('.amdgcn_target "amdgcn-amd-amdhsa--gfx950"\n.text')
    p.kstart(KN)
    p.junk = {('v', 2), ('v', 3)}
    emit_prologue(p)
    emit_g1(p)
    emit_b2(p)
    emit_hops(p)
    p.junk = set()
    emit_handoff(p)
    p.label('L_end')
    p('s_endpgm')
    p.raw('L_code_end:')
    p.raw('.section .rodata,"a"\n.p2align 6')
    p.kdesc(KN, vgpr=256)
    if st:
        json.dump(STAMPS, open(kw.get('names', 'stamps.json'), 'w'))
    print('nops', p.nnop, 'lines', len(p.L))
    return p.text()


if __name__ == '__main__':
    import copy
    base = {k: v for k, v in vars(Cfg).items() if not k.startswith('__')}

    def out(name, st, **kw):
        for k, v in base.items():
            setattr(Cfg, k, v)
        open(name, 'w').write(gen(st, names=name + '.json', **kw))
    if len(sys.argv) > 1:
        for spec in sys.argv[1:]:
            name, _, rest = spec.partition(':')
            kw = dict((x.split('=')[0], eval(x.split('=')[1])) for x in rest.split(';') if x)
            kw.setdefault('hopst', ('bar2',))
            out(name, True, **kw)
    else:
        out('j_st.s', True)
        out('j_st1.s', True, hopst=('bar2',))
        out('j_st2.s', True, hopst=('w0', 'w1', 'bar1', 'bar2'))
        out('j_slow8.s', False, force_slow=8)
        out('j.s', False)
        out('j_end.s', False, wsoff=0xE000000)
        out('j_mid.s', False, wsoff=0x8000000)
```

```python
import sys, json
from prog import *
from parts_tf import *

F_HOP = 0x0000
F_TOK = 0xC0000
F_G0 = 0x80000
F_B2 = 0x20000
WS_D2 = WS_D + 0x200000
WS_X7 = WS_TOK + 8 * TOK_PL
WS_TAG = 0x3ff80
PAD = 0xFFFC3FFF

TBL = 81920
CNT1, BUCK, IMG, PSUM = 10496, 12288, 20480, 72192
TT, NN, OO, UF, CC, LIST, SEG = 35840, 37632, 38528, 39296, 39424, 43008, 50176
DUMMY = 10239
Z0, Z1, Z2 = 56, 60, 64

sWS, sSRC, sDST, sX_, sDIS, sDBG, sOUT = 4, 8, 12, 16, 20, 24, 28
sPA, sPB, sPR = 32, 36, 24
sW, sXC, sR, sJ, sSL, sU, sSLOW, sQ, sK, sGO, sTO, sFA, sFB, sSPIN = 44, 45, 46, 47, 48, 49, 50, 51, 52, 53, 54, 55, 56, 57
sTAG = 43
sKA = 88
sFC = 42
sBU = 76
sTASK = 41
sNEG = 58
sMK = 60
sLA, sLB = 100, 101

D0, D1, D2 = 4, 8, 12
GA, GB, HA, HB = 16, 20, 24, 28
vD0, vD1, vD2 = 30, 31, 32
vGA, vGB, vDA, vDB, vFP, vFO, vG0, vT0, vT1, vT2, vT3 = 33, 34, 35, 36, 37, 38, 39, 40, 41, 42, 43
vFV, vNON = 22, 23
vPL = 94
vBETA, vUB = 44, 45
vTP, vTF = 44, 45
XA, XB, XD = 100, 104, 108
sOFF = 80
vBL, vK0, vK1 = 96, 97, 98
vOWN = 3
vP2 = 92
vST = 99
PS = 88
ADDR = lambda b, q: 100 + 10 * b + q
DATA = lambda b, q: 200 + 20 * (b & 1) + 2 * q
SEL = 240
SPIN_MAX = 1 << 22
WSR = f's[{sWS}:{sWS + 3}]'


class Cfg:
    st = False
    prio_until = 5
    force_slow = 0
    dump_tbl = 0
    pollb_at = 3
    pollc_at = 4
    wb = 0
    outf = ''
    late = None
    lat = 0
    c_first = 1
    sameplane = 0
    tokf = 'sc1'
    pre_pairs = 2
    gnap = 4
    coop = 1
    fill_first = 0
    hnap = 0
    pa_pre = 0
    pa_early = 0
    probe = 0
    pnap = 4
    predelay = 0
    wsoff = 0
    tlb = 0
    nostage = 0
    notok = 0
    junk_at = 7
    dbg = 0
    x7_at = 10
    lag = 3
    nap = 4
    tpoll_at = 0
    gflag = ''
    early_a = 0
    hopst = ('gath', 'bar1', 'pollA', 'pollB', 'bar2')


def srd(p, d, lo, size):
    p(f's_mov_b32 s{d}, s{lo}\ns_mov_b32 s{d + 1}, s{lo + 1}\ns_mov_b32 s{d + 2}, {size}\ns_mov_b32 s{d + 3}, 0x20000')


class Uniq:
    n = 0


def lbl(x):
    Uniq.n += 1
    return f'L_{x}_{Uniq.n}'


LATE = []


def xstore(p, ins):
    a, b = lbl('xs'), lbl('xe')
    p(f's_cmp_lg_u32 s{sSLOW}, 0\ns_cbranch_scc1 {a}')
    p.opt_begin()
    for i in ins:
        p(i + (' ' + Cfg.gflag if i.startswith('buffer_store') else ''))
    p.opt_end(b)
    LATE.append((a, ['s_nop 4'] + [i + (' sc1' if i.startswith('buffer_store') else '') for i in ins] + ['s_nop 1'], b))


def emit_late(p):
    for a, ins, b in LATE:
        p.raw(a + ':')
        for i in ins:
            p.raw(i)
        p.raw(f'    s_branch {b}')
    LATE.clear()


def poll_load(vaddr, res, so='0'):
    return f'buffer_load_dwordx2 v[{res}:{res + 1}], v{vaddr}, {WSR}, {so} offen sc1'


def poll(p, vaddr, ex, need, first_issued=False, res=None, bound='64', nap=0, so='0'):
    res = vPL if res is None else res
    a, b = lbl('pl'), lbl('pd')
    setex = {32: 's_mov_b32 exec_hi, 0', 40: 's_mov_b32 exec_hi, 0xff'}.get(ex, f's_mov_b64 exec, {ex}')
    cond = [f'v_lshl_add_u64 v[{vT0}:{vT1}], v[{res}:{res + 1}], 0, s[{sNEG}:{sNEG + 1}]',
            f'v_cmp_le_u64 vcc, {bound}, v[{vT0}:{vT1}]']
    body = [poll_load(vaddr, res, so),
            f's_add_u32 s{sSPIN}, s{sSPIN}, 1',
            f's_cmp_gt_u32 s{sSPIN}, {SPIN_MAX}',
            's_cbranch_scc1 L_end',
            's_waitcnt vmcnt(0)'] + cond + [f's_cbranch_vccnz {a}']
    if nap:
        c_ = lbl('pn')
        body = body[:-1] + [f's_cbranch_vccz {c_}', f's_sleep {nap}', f's_branch {a}', c_ + ':']
    p(f's_sub_u32 s{sNEG}, 0, {need}')
    p(setex)
    if first_issued:
        for c in cond:
            p(c)
        p(f's_cbranch_vccnz {a}')
        p.raw(b + ':')
        LATE.append((a, body, b))
    else:
        p.label(a)
        for c in body:
            p(c)
    p('s_mov_b64 exec, -1')


def flag_store(vaddr, so='0'):
    return f'buffer_store_dwordx2 v[{vFV}:{vNON}], v{vaddr}, {WSR}, {so} offen'


def finish(D, dis, H, G):
    o = [f'v_mul_f32 v{D + i}, v{D + i}, v{dis}' for i in range(4)]
    o += [cvt(H, D), cvt(H + 1, D + 2)]
    return o + scale_g(D, dis, H, G)


def scale_g(D, dis, H, G):
    o = [f'v_lshlrev_b32 v{D}, 16, v{H}', f'v_and_b32 v{D + 1}, 0xffff0000, v{H}',
         f'v_lshlrev_b32 v{D + 2}, 16, v{H + 1}', f'v_and_b32 v{D + 3}, 0xffff0000, v{H + 1}']
    o += [f'v_mul_f32 v{D + i}, v{D + i}, v{dis}' for i in range(4)]
    o += [cvt(G, D), cvt(G + 1, D + 2)]
    return o


STAMPS = []


def stamp(p, name, hop=False):
    if not Cfg.st:
        return
    if hop and name not in Cfg.hopst:
        return
    if hop:
        i = 24 + sum(1 for n in STAMPS if n.startswith('h:')) * 8
        STAMPS.append('h:' + name)
        p(f's_memtime s[90:91]\ns_add_u32 m0, s{sK}, {i - 1}\ns_waitcnt lgkmcnt(0)\nv_writelane_b32 v{vST}, s90, m0')
    else:
        i = sum(1 for n in STAMPS if not n.startswith('h:'))
        STAMPS.append(name)
        p(f's_memtime s[90:91]\ns_waitcnt lgkmcnt(0)\nv_writelane_b32 v{vST}, s90, {i}')


def emit_desc(p):
    p(f'''
    s_cmp_ge_u32 s{sTASK}, 8
    s_cselect_b32 s{sPA}, s64, s60
    s_cselect_b32 s{sPA + 1}, s65, s61
    s_cselect_b32 s{sPB}, s66, s62
    s_cselect_b32 s{sPB + 1}, s67, s63
    s_mov_b32 s{sPA + 2}, 32768
    s_mov_b32 s{sPA + 3}, 0x20000
    s_mov_b32 s{sPB + 2}, 32768
    s_mov_b32 s{sPB + 3}, 0x20000
    ''')
    srd(p, sPR, 68, 256)


PV, PRA, PBF, PRT, PD, PI, PR = 80, 46, 62, 62, 200, 78, 84


def emit_prep_blocks(p):
    va, t0, t1 = PV, PV + 1, PV + 2
    PB = PSUM + 512
    p.label('L_prepA')
    p.forget()
    emit_desc(p)
    emit_lane_consts_prep(p, 1, va, t0)
    p(f'''
    s_cmp_eq_u32 s{sTASK}, 16
    s_cbranch_scc1 L_prepA_lin
    s_lshr_b32 s72, s{sW}, 1
    s_lshl_b32 s75, s72, 6
    s_lshl_b32 s72, s72, 13
    s_and_b32 s73, s{sW}, 1
    s_lshl_b32 s74, s73, 3
    s_add_u32 s75, s75, s74
    s_lshl_b32 s73, s73, 10
    s_add_u32 s72, s72, s73
    s_bfe_u32 s73, s{sTASK}, 0x20001
    s_lshl_b32 s73, s73, 5
    s_and_b32 s74, s{sTASK}, 1
    s_lshl_b32 s74, s74, 2
    s_add_u32 s73, s73, s74
    s_lshl_b32 s74, s73, 8
    s_add_u32 s74, s74, s75
    s_lshl_b32 s73, s73, 1
    s_add_u32 s73, s73, s72
    s_cmp_ge_u32 s{sTASK}, 8
    s_cselect_b32 s73, s73, s74
    buffer_load_dwordx2 v[{PBF}:{PBF + 1}], v{va}, s[{sPB}:{sPB + 3}], s73 offen
    ''')
    for e4 in range(4):
        p(f'buffer_load_dwordx4 v[{PRA + 4 * e4}:{PRA + 4 * e4 + 3}], v{va}, s[{sPA}:{sPA + 3}], s72 offen offset:{64 * e4}')
    p('s_branch L_hop1')
    p.label('L_prepA_lin')
    p(f'v_and_b32 v{t0}, 48, v1')
    for s4 in range(4):
        p(f'buffer_load_dwordx4 v[{PRA + 4 * s4}:{PRA + 4 * s4 + 3}], v{t0}, s[{sPR}:{sPR + 3}], 0 offen offset:{64 * s4}')
    p('s_branch L_hop1')
    p.label('L_prepB')
    p.forget()
    p(f's_cmp_eq_u32 s{sTASK}, 16\ns_cbranch_scc1 L_prepB_lin\ns_cmp_lt_u32 s{sTASK}, 8\ns_cbranch_scc1 L_prepB_m')
    emit_i16(p, 1, PI, t0, t1)
    p(mf16(PD, PBF, PI, None))
    p(cvt(PBF, PD))
    p(cvt(PBF + 1, PD + 2))
    p.label('L_prepB_m')
    p(f'''
    s_lshr_b32 s72, s{sW}, 1
    s_lshl_b32 s72, s72, 10
    s_and_b32 s73, s{sW}, 1
    s_lshl_b32 s73, s73, 3
    s_add_u32 s72, s72, s73
    s_add_u32 s72, s72, {PB}
    v_lshl_add_u32 v{va}, v1, 4, s72
    ds_write_b64 v{va}, v[{PBF}:{PBF + 1}]
    s_branch L_prepB_back
    ''')
    p.label('L_prepB2')
    p.forget()
    p(f'v_lshlrev_b32 v{va}, 4, v1\nv_add_u32 v{va}, {PB}, v{va}')
    for e4 in range(4):
        p(f'ds_read_b128 v[{PBF + 4 * e4}:{PBF + 4 * e4 + 3}], v{va} offset:{1024 * e4}')
    for e4 in range(4):
        p(mf32(PR, PRA + 4 * e4, PBF + 4 * e4, None if e4 == 0 else PR))
    p(f'''
    v_lshlrev_b32 v{va}, 5, v1
    s_lshl_b32 s72, s{sW}, 2
    s_add_u32 s72, s72, {PSUM}
    v_add_u32 v{va}, s72, v{va}
    v_add_f32 v{t0}, v{PR}, v{PR + 1}
    v_add_f32 v{t1}, v{PR + 2}, v{PR + 3}
    v_add_f32 v{t0}, v{t0}, v{t1}
    v_mov_b32 v{t1}, v{t0}
    v_permlane16_swap_b32 v{t0}, v{t1}
    v_add_f32 v{t0}, v{t0}, v{t1}
    v_mov_b32 v{t1}, v{t0}
    v_permlane32_swap_b32 v{t0}, v{t1}
    v_add_f32 v{t0}, v{t0}, v{t1}
    s_mov_b64 exec, 0xffff
    ds_write_b32 v{va}, v{t0}
    s_mov_b64 exec, -1
    s_branch L_prepB_back
    ''')
    p.label('L_prepB_lin')
    F, O = PRA, PBF
    p(f'''
    s_cmp_lg_u32 s{sW}, 0
    s_cbranch_scc1 L_prepB_back
    v_and_b32 v{t1}, 3, v1
    v_cmp_eq_u32 s[72:73], 1, v{t1}
    v_cmp_eq_u32 vcc, 0, v{t1}
    v_mov_b32 v{t1}, 0x{ONE2:x}
    ''')
    for i in range(4):
        p(f'v_mov_b32 v{O + i}, 0x{ONE2:x}')
    p(f'v_cndmask_b32 v{t1}, 0, v{t1}, vcc')
    for i in range(16):
        p(f'v_cndmask_b32 v{F + i}, v{t1}, v{F + i}, s[72:73]')
    for s4 in range(4):
        p(mf32(PD, F + 4 * s4, O, None if s4 == 0 else PD))
    p(f'v_lshlrev_b32 v{t0}, 4, v1\ns_mov_b32 s74, {WS_WF + 65536}\ns_waitcnt vmcnt(0)')
    for s4 in range(4):
        p(f'buffer_store_dwordx4 v[{F + 4 * s4}:{F + 4 * s4 + 3}], v{t0}, {WSR}, s74 offen offset:{1024 * s4} sc1')
    p(f'''
    v_lshlrev_b32 v{t0}, 2, v1
    s_mov_b32 s74, {WS_WF + 69632}
    buffer_store_dword v{PD + 1}, v{t0}, {WSR}, s74 offen sc1
    s_branch L_prepS
    ''')
    p.label('L_prepS')
    p(f'''
    s_waitcnt lgkmcnt(0)
    s_branch L_bar2
    ''')
    p.label('L_prepC')
    p.forget()
    p(f'''
    v_and_b32 v{va}, 15, v1
    v_lshlrev_b32 v{va}, 5, v{va}
    v_add_u32 v{va}, {PSUM}, v{va}
    ds_read_b128 v[{PRA}:{PRA + 3}], v{va}
    ds_read_b128 v[{PRA + 4}:{PRA + 7}], v{va} offset:16
    s_lshr_b32 s72, s{sW}, 1
    s_lshl_b32 s72, s72, 10
    s_and_b32 s73, s{sW}, 1
    s_lshl_b32 s73, s73, 3
    s_add_u32 s72, s72, s73
    s_add_u32 s72, s72, {PB}
    v_lshl_add_u32 v{va}, v1, 4, s72
    v_add_f32 v{t0}, v{PRA}, v{PRA + 1}
    v_add_f32 v{t1}, v{PRA + 2}, v{PRA + 3}
    v_add_f32 v{t0}, v{t0}, v{PRA + 4}
    v_add_f32 v{t1}, v{t1}, v{PRA + 5}
    v_add_f32 v{t0}, v{t0}, v{PRA + 6}
    v_add_f32 v{t1}, v{t1}, v{PRA + 7}
    v_add_f32 v{t0}, v{t0}, v{t1}
    v_mul_f32 v{t0}, 0x3c000000, v{t0}
    ''')
    for i in range(4):
        p(f'v_sub_f32 v{PR + i}, v{PR + i}, v{t0}')
    p(cvt(PBF, PR))
    p(cvt(PBF + 1, PR + 2))
    p(f'ds_write_b64 v{va}, v[{PBF}:{PBF + 1}]\ns_branch L_prepB_back')
    p.label('L_prepD')
    p.forget()
    p(f'''
    s_cmp_ge_u32 s{sW}, 4
    s_cbranch_scc1 L_prepDr
    s_lshl_b32 s72, s{sW}, 10
    s_add_u32 s73, s72, {PB}
    v_lshl_add_u32 v{va}, v1, 4, s73
    ds_read_b128 v[{PBF}:{PBF + 3}], v{va}
    s_lshl_b32 s73, s{sTASK}, 12
    s_add_u32 s72, s72, s73
    s_add_u32 s72, s72, {WS_WF}
    v_lshlrev_b32 v{va}, 4, v1
    buffer_store_dwordx4 v[{PBF}:{PBF + 3}], v{va}, {WSR}, s72 offen sc1
    s_branch L_prepDr
    ''')
    p.forget()


def fill_list():
    o = [f's_mov_b32 m0, s{sLA}']
    o += [f'buffer_load_dwordx4 v{vDA}, {WSR}, s{sGO} offen offset:{1024 * j} sc1 lds' for j in range(4)]
    o += [f's_add_u32 m0, s{sLA}, 4096\ns_add_u32 s92, s{sGO}, 4096']
    o += [f'buffer_load_dwordx4 v{vDA}, {WSR}, s92 offen offset:{1024 * j} sc1 lds' for j in range(4)]
    o += [f's_mul_i32 s92, s{sSL}, 81920\ns_lshl_b32 s93, s{sW}, 11\ns_add_u32 m0, s93, {TBL + 65536}\n'
          f's_add_u32 s92, s92, s93\ns_add_u32 s92, s92, {WS_G + 65536}\nv_lshlrev_b32 v{vT3}, 4, v1']
    o += [f'buffer_load_dwordx4 v{vT3}, {WSR}, s92 offen offset:{1024 * j} sc1 lds' for j in range(2)]
    return o


def emit_prologue(p):
    p('s_cmp_ge_u32 s2, 256\ns_cbranch_scc1 L_end')
    if Cfg.st:
        p(f's_memrealtime s[90:91]\ns_waitcnt lgkmcnt(0)\nv_writelane_b32 v{vST}, s90, 21')
    stamp(p, 'entry')
    p(f"""
    s_load_dwordx8 s[32:39], s[0:1], 0
    s_load_dwordx4 s[92:95], s[0:1], 80
    s_load_dwordx8 s[60:67], s[0:1], 32
    s_load_dwordx4 s[68:71], s[0:1], 64
    v_readfirstlane_b32 s{sW}, v0
    v_and_b32 v1, 63, v0
    s_and_b32 s{sXC}, s2, 7
    s_lshr_b32 s{sR}, s2, 3
    s_lshr_b32 s{sW}, s{sW}, 6
    """)
    p('s_getpc_b64 s[96:97]')
    p.raw('L_pc:')
    p(f"""
    s_lshl_b32 s98, s{sR}, 3
    s_add_u32 s98, s98, s{sW}
    s_lshl_b32 s98, s98, 7
    v_lshl_add_u32 v{vT0}, v1, 1, s98
    v_min_u32 v{vT0}, L_code_end-L_pc-4, v{vT0}
    v_and_b32 v{vT0}, -4, v{vT0}
    global_load_dword v3, v{vT0}, s[96:97]
    v_lshlrev_b32 v{vT3}, 3, v0
    s_mul_i32 s96, s2, 2560
    v_mov_b32 v64, 0x{PAD:x}
    v_mov_b32 v65, v64
    v_mov_b32 v66, v64
    v_mov_b32 v67, v64
    v_lshlrev_b32 v70, 4, v0
    v_lshlrev_b32 v71, 2, v0
    v_lshlrev_b32 v72, 7, v1
    v_add_u32 v72, {BUCK}, v72
    v_lshlrev_b32 v73, 2, v1
    s_waitcnt lgkmcnt(0)
    {f"s_add_u32 s94, s94, {Cfg.wsoff}" if Cfg.wsoff else ""}
    {"s_addc_u32 s95, s95, 0" if Cfg.wsoff else ""}
    s_load_dword s78, s[94:95], {WS_TAG}
    """)
    srd(p, sDST, 36, 640000)
    srd(p, sSRC, 34, 640000)
    p(f"""
    buffer_load_dwordx2 v[56:57], v{vT3}, s[{sDST}:{sDST + 3}], s96 offen
    buffer_load_dwordx2 v[58:59], v{vT3}, s[{sSRC}:{sSRC + 3}], s96 offen
    ds_write_b128 v70, v[64:67] offset:{BUCK}
    ds_write_b32 v73, v72 offset:{CNT1}
    """)
    stamp(p, 'srd')
    srd(p, sWS, 94, 0x10000000 - Cfg.wsoff)
    srd(p, sX_, 32, 2560000)
    srd(p, sDIS, 38, 20000)
    srd(p, sOUT, 70, 2560000)
    p(f"""
    s_and_b32 s{sJ}, s{sR}, 7
    s_lshr_b32 s{sSL}, s{sR}, 3
    s_lshl_b32 s96, s{sXC}, 2
    s_add_u32 s{sSL}, s{sSL}, s96
    s_lshl_b32 s{sU}, s{sW}, 3
    s_add_u32 s{sU}, s{sU}, s{sJ}
    s_mov_b32 s{sSPIN}, 0
    v_lshrrev_b32 v{vT1}, 3, v1
    v_and_b32 v{vT2}, 7, v1
    v_cmp_eq_u32 s[74:75], 7, v{vT2}
    v_lshlrev_b32 v{vT2}, 4, v{vT2}
    v_lshl_add_u32 v75, v{vT1}, 15, v{vT2}
    s_lshl_b32 s72, s{sW}, 18
    s_lshl_b32 s97, s2, 7
    s_add_u32 s72, s72, s97
    s_add_u32 s72, s72, {WS_D}
    """)
    p(f"""
    v_and_b32 v{vT0}, 7, v1
    v_lshrrev_b32 v{vT1}, 3, v1
    v_lshlrev_b32 v{vT2}, 8, v{vT0}
    v_lshl_add_u32 v{vT2}, v{vT1}, 4, v{vT2}
    s_lshl_b32 s96, s2, 13
    s_lshr_b32 s97, s{sW}, 1
    s_lshl_b32 s92, s97, 11
    s_and_b32 s94, s{sW}, 1
    s_lshl_b32 s95, s94, 7
    s_add_u32 s92, s92, s95
    s_add_u32 s92, s92, s96
    s_mov_b32 s80, s92
    s_lshr_b32 s96, s96, 2
    s_add_u32 s96, s96, s95
    s_add_u32 s96, s96, {8192 * 256}
    s_mov_b32 s81, s96
    v_mov_b32 v112, v{vT2}
    v_mul_u32_u24 v{vT1}, 640, v{vT1}
    v_lshl_add_u32 v{vT1}, v{vT0}, 3, v{vT1}
    s_mul_i32 s94, s94, 5120
    v_add_u32 v109, s94, v{vT1}
    s_lshl_b32 s97, s97, 6
    v_add_u32 v108, s97, v109
    v_lshlrev_b32 v{vT0}, 4, v1
    v_and_b32 v{vT0}, 16, v{vT0}
    s_waitcnt lgkmcnt(0)
    s_barrier
    s_add_u32 s78, s78, 0x100
    s_lshr_b32 s79, s78, 4
    s_not_b32 s79, s79
    s_and_b32 s79, s79, 15
    s_and_b32 s78, s78, -16
    s_or_b32 s{sTAG}, s78, s79
    s_not_b32 s{sNEG + 1}, s{sTAG}
    v_mov_b32 v{vNON}, s{sTAG}
    s_mov_b32 s79, 0x3c000
    v_lshrrev_b32 v{vT0}, v{vT0}, v{vNON}
    """)
    for r in range(4):
        p(f'v_lshlrev_b32 v{PS + r}, {14 - 4 * r}, v{vT0}\nv_and_b32 v{PS + r}, s79, v{PS + r}')
    stamp(p, 'init issued')


def emit_g1(p):
    p(f"""
    s_waitcnt vmcnt(0)
    s_and_b32 s82, s{sR}, 3
    s_cbranch_scc0 L_nox2
    buffer_load_dwordx4 v[100:103], v112, s[{sX_}:{sX_ + 3}], s80 offen
    buffer_load_dwordx4 v[104:107], v112, s[{sX_}:{sX_ + 3}], s81 offen
    s_cmp_lg_u32 s82, 1
    s_cbranch_scc1 L_nox2
    s_sub_u32 s80, s80, 65536
    s_sub_u32 s81, s81, 16384
    buffer_load_dwordx4 v[116:119], v112, s[{sX_}:{sX_ + 3}], s80 offen
    buffer_load_dwordx4 v[120:123], v112, s[{sX_}:{sX_ + 3}], s81 offen
    """)
    p.vm.pop()
    p.vm.pop()
    p.raw('L_nox2:')
    p(f"""
    s_cmp_ge_u32 s{sW}, 5
    s_cbranch_scc1 L_g1_skip
    s_cmp_ge_u32 s2, 250
    s_cbranch_scc1 L_g1_skip
    s_movk_i32 s96, 0xfc00
    v_mov_b32 v{vT0}, 4
    """)
    vm = list(p.vm)
    for i in range(2):
        p(f"""
        v_lshrrev_b32 v{vT1}, 5, v{56 + i}
        v_lshl_or_b32 v{58 + i}, v{56 + i}, 18, v{58 + i}
        v_and_b32 v{vT2}, -4, v{vT1}
        v_lshl_add_u32 v{vT1}, v{vT1}, 2, s96
        v_min_u32 v{vT1}, v{vT1}, v{vT2}
        ds_add_rtn_u32 v{60 + i}, v{vT1}, v{vT0} offset:{CNT1}
        """)
    p('ds_write_b32 v60, v58\nds_write_b32 v61, v59\ns_waitcnt lgkmcnt(0)')
    p.vm = vm
    p.label('L_g1_skip')
    stamp(p, 'g1')
    p(f"""
    s_barrier
    ds_read_b32 v74, v73 offset:{CNT1}
    ds_read_b128 v[64:67], v70 offset:{BUCK}
    s_sub_u32 s{sTASK}, s2, 8
    s_cmp_eq_u32 s{sTASK}, 17
    s_cselect_b32 s{sTASK}, 99, s{sTASK}
    s_lshr_b32 s{sBU}, s{sR}, 2
    s_lshl_b32 s{sBU}, s{sBU}, 3
    s_add_u32 s{sBU}, s{sBU}, s{sXC}
    v_sub_u32 v74, v74, v72
    v_cmp_lt_u32 vcc, 0x7c, v74
    s_cmp_lg_u64 vcc, 0
    s_cselect_b32 s97, 1, 0
    s_sub_u32 s97, 0x{PAD:x}, s97
    v_mov_b32 v74, s97
    v_xor_b32 v64, v64, v{PS}
    v_cndmask_b32 v67, v67, v74, s[74:75]
    v_xor_b32 v65, v65, v{PS + 1}
    v_xor_b32 v66, v66, v{PS + 2}
    v_xor_b32 v67, v67, v{PS + 3}
    buffer_store_dwordx4 v[64:67], v75, {WSR}, s72 offen sc1
    """)
    stamp(p, 'b1 out')
    p(f"""
    s_getreg_b32 s99, hwreg(HW_REG_XCC_ID, 0, 4)
    s_add_u32 s96, s99, 1
    v_mov_b32 v{vFV}, s96
    s_lshl_b32 s96, s2, 7
    s_add_u32 s96, s96, {F_G0}
    v_lshl_add_u32 v{vUB}, v1, 15, s96
    s_cmp_eq_u32 s82, 0
    s_cbranch_scc1 L_builder
    """)
    emit_common(p)
    Cfg.vm_builder = list(p.vm)
    emit_imgpat(p)
    xw = lambda r, o: f"""
    ds_write_b64 v108, v[{r}:{r + 1}] offset:{o}
    ds_write_b64 v108, v[{r + 2}:{r + 3}] offset:{o + 320}
    ds_write_b64 v109, v[{r + 4}:{r + 5}] offset:{o + 256}
    ds_write_b64 v109, v[{r + 6}:{r + 7}] offset:{o + 576}
    """
    p(xw(100, 0))
    vm_ = list(p.vm)
    p('s_cmp_lg_u32 s82, 1\ns_cbranch_scc1 L_nox3\ns_waitcnt vmcnt(6)')
    p(xw(116, 40960))
    p.vm = vm_
    p.label('L_nox3')
    stamp(p, 'x in')
    p('s_waitcnt lgkmcnt(0)\ns_barrier')

    def rows(o, d0, k0, k1, t):
        p(f"""
        ds_read_b128 v[100:103], v70 offset:{o}
        ds_read_b128 v[104:107], v70 offset:{o + 8192}
        v_and_b32 v113, 0xffff0000, v{d0}
        v_lshlrev_b32 v112, 16, v{d0}
        v_and_b32 v115, 0xffff0000, v{d0 + 1}
        v_lshlrev_b32 v114, 16, v{d0 + 1}
        """)
        for x in scale_g(D0, 112, 100, GA) + scale_g(D1, 113, 102, GA + 2):
            p(x)
        p(f'buffer_store_dwordx4 v[{GA}:{GA + 3}], v{k0}, {WSR}, s{sGO} offen sc1')
        p(f's_cmp_ge_u32 s{sW}, 2\ns_cbranch_scc1 L_g0b{t}')
        for x in scale_g(D0, 114, 104, HA) + scale_g(D1, 115, 106, HA + 2):
            p(x)
        p(f'buffer_store_dwordx4 v[{HA}:{HA + 3}], v{k1}, {WSR}, s{sGO} offen sc1')
        p.label(f'L_g0b{t}')
        p('s_waitcnt lgkmcnt(0)')
    rows(0, 110, vK0, vK1, 'a')
    p('s_cmp_lg_u32 s82, 1\ns_cbranch_scc1 L_nox4')
    rows(40960, 124, 126, 127, 'b')
    p.label('L_nox4')
    emit_g0_flag(p, 0, 'a')
    stamp(p, 'g0 flag')
    p('s_branch L_fill0')


def emit_common(p, builder=False):
    p(f"""
    s_lshl_b32 s96, s2, 8
    s_lshr_b32 s97, s96, 2
    s_add_u32 s97, s97, {65536 - 256}
    s_mov_b32 s92, 81920
    s_lshl_b32 s94, s{sW}, 6
    """)
    for v, add, dd, ka in ((vK0, 0, 110, sKA), (vK1, 512, 111, 78)):
        p(f"""
        v_add_u32 v{vT0}, s94, v1
        v_add_u32 v{vT0}, {add}, v{vT0}
        v_mul_u32_u24 v{vT1}, 3277, v{vT0}
        v_lshrrev_b32 v{vT1}, 16, v{vT1}
        v_mul_u32_u24 v{vT2}, 20, v{vT1}
        v_sub_u32 v{vT2}, v{vT0}, v{vT2}
        v_mov_b32 v{vT0}, s97
        v_mov_b32 v{vT3}, s96
        v_cmp_gt_u32 vcc, 16, v{vT2}
        v_mul_lo_u32 v{vT1}, v{vT1}, s92
        v_cndmask_b32 v{vT0}, v{vT0}, v{vT3}, vcc
        v_lshl_add_u32 v{vT0}, v{vT2}, 4, v{vT0}
        v_add_u32 v{v}, v{vT1}, v{vT0}
        """)
        if not builder:
            p(f"""
            v_lshrrev_b32 v{vT0}, 2, v{vT0}
            buffer_load_dword v{dd}, v{vT0}, s[{sDIS}:{sDIS + 3}], 0 offen
            v_mov_b32 v{vT1}, 512
            v_mov_b32 v{vT3}, 0x800
            v_cndmask_b32 v{vT1}, v{vT1}, v{vT3}, vcc
            v_sub_u32 v{dd + 16}, v{v}, v{vT1}
            v_lshrrev_b32 v{vT1}, 2, v{vT1}
            v_sub_u32 v{vT0}, v{vT0}, v{vT1}
            buffer_load_dword v{dd + 14}, v{vT0}, s[{sDIS}:{sDIS + 3}], 0 offen
            """)
    if not builder:
        p(f"""
        s_bitcmp1_b32 s{sW}, 0
        s_cselect_b32 s72, s62, s60
        s_cselect_b32 s73, s63, s61
        s_cselect_b32 s74, s66, s64
        s_cselect_b32 s75, s67, s65
        s_bitcmp1_b32 s{sW}, 1
        s_cselect_b32 s72, s74, s72
        s_cselect_b32 s73, s75, s73
        s_lshr_b32 s92, s{sR}, 2
        s_sub_u32 s92, s{sR}, s92
        s_sub_u32 s92, s92, 1
        s_lshl_b32 s92, s92, 1
        s_lshr_b32 s93, s{sW}, 2
        s_add_u32 s92, s92, s93
        s_lshl_b32 s92, s92, 10
        v_lshl_add_u32 v{vT1}, v1, 4, s92
        v_min_u32 v{vT1}, 32764, v{vT1}
        global_load_dword v3, v{vT1}, s[72:73]
        """)
    emit_offsets(p)
    emit_sel(p)
    p(f"""
    s_lshl_b32 s96, s{sW}, 5
    v_add_u32 v{vT1}, s96, v1
    s_and_b32 s96, s2, 0xc7
    s_sub_u32 s96, s96, 256
    v_lshl_add_u32 v{vT2}, v1, 3, s96
    v_and_b32 v{vT3}, 24, v{vT1}
    v_cmp_eq_u32 vcc, 0, v{vT3}
    v_or_b32 v{vT3}, 8, v{vT1}
    v_cndmask_b32 v{vT1}, v{vT1}, v{vT3}, vcc
    v_cmp_gt_u32 vcc, 32, v1
    v_cndmask_b32 v{vT1}, v{vT2}, v{vT1}, vcc
    v_lshlrev_b32 v{vG0}, 7, v{vT1}
    s_lshl_b32 s96, s{sXC}, 15
    s_add_u32 s96, s96, {F_G0}
    v_add_u32 v{vG0}, s96, v{vG0}
    """)


def emit_g0_flag(p, n, t):
    p(f"""
    s_waitcnt vmcnt({n})
    s_barrier
    s_cmp_lg_u32 s{sW}, 0
    s_cbranch_scc1 L_ng0{t}
    s_mov_b64 exec, 0xff
    {flag_store(vUB)} sc1
    s_mov_b64 exec, -1
    """)
    p.vm.pop()
    p.raw(f'L_ng0{t}:')


def emit_offsets(p):
    p(f"""
    v_lshrrev_b32 v{vT1}, 4, v1
    v_and_b32 v{vT2}, 15, v1
    v_lshl_add_u32 v{vT1}, v{vT1}, 3, v{vT2}
    v_mov_b32 v{vT3}, 0x2000000
    v_cmp_gt_u32 vcc, 8, v{vT2}
    v_cndmask_b32 v{vBL}, v{vT3}, v{vT1}, vcc
    s_mul_i32 s96, s{sSL}, 81920
    s_lshl_b32 s97, s{sU}, 10
    s_add_u32 s97, s97, s96
    v_lshl_add_u32 v{vGA}, v1, 4, s97
    s_lshl_b32 s97, s{sU}, 8
    s_add_u32 s97, s97, s96
    s_add_u32 s97, s97, 65536
    v_lshl_add_u32 v{vGB}, v{vBL}, 3, s97
    s_mov_b32 s{sGO}, {WS_G}
    s_mov_b32 s{sTO}, {WS_TOK}
    s_lshl_b32 s97, s{sW}, 13
    s_add_u32 s{sLA}, s97, {TBL}
    s_add_u32 s97, s97, s96
    v_lshl_add_u32 v{vDA}, v1, 4, s97
    s_lshl_b32 s97, s{sW}, 12
    s_add_u32 s{sLB}, s97, {TBL + 65536}
    s_add_u32 s97, s97, s96
    s_add_u32 s97, s97, 65536
    v_lshl_add_u32 v{vDB}, v1, 4, s97
    s_lshl_b32 s96, s{sSL}, 3
    s_add_u32 s96, s96, s{sW}
    s_lshl_b32 s96, s96, 7
    v_lshl_add_u32 v{vFP}, v1, 3, s96
    s_lshl_b32 s97, s{sJ}, 3
    s_add_u32 s96, s96, s97
    v_mov_b32 v{vFO}, s96
    """)


def emit_sel(p):
    p(f"""
    v_and_b32 v80, 15, v1
    v_lshrrev_b32 v81, 4, v1
    v_and_b32 v82, 3, v80
    v_lshrrev_b32 v80, 2, v80
    v_mov_b32 v83, 0x{ONE2:x}
    v_cmp_eq_u32 vcc, v81, v82
    v_cndmask_b32 v83, 0, v83, vcc
    """)
    for b in range(4):
        p(f'v_cmp_eq_u32 vcc, {b}, v80')
        for r in range(4):
            p(f'v_cndmask_b32 v{SEL + 4 * b + r}, 0, v83, vcc')


def emit_misc_loads(p):
    p(f"""
    s_lshl_b32 s96, s{sU}, 8
    v_lshlrev_b32 v{vT1}, 2, v1
    buffer_load_dword v{vD0}, v{vT1}, s[{sDIS}:{sDIS + 3}], s96 offen
    s_lshl_b32 s96, s{sU}, 6
    s_add_u32 s96, s96, 16384
    v_lshlrev_b32 v{vT1}, 1, v{vBL}
    buffer_load_ushort v{vD2}, v{vT1}, s[{sDIS}:{sDIS + 3}], s96 offen
    """)


def emit_imgpat(p):
    a0 = 82
    for r in range(4):
        p(f'v_lshlrev_b32 v{a0}, 14, v{PS + r}\nv_and_b32 v{a0}, 0xc0000000, v{a0}\nv_and_b32 v{PS + r}, 0xc000, v{PS + r}\nv_or_b32 v{PS + r}, v{PS + r}, v{a0}')


def emit_init2(p):
    for i in range(4):
        p(f'v_mov_b32 v{76 + i}, 0x{DUMMY | DUMMY << 16:x}')
    p(f"""
    ds_write_b128 v70, v[76:79] offset:{IMG}
    ds_write_b128 v70, v[76:79] offset:{IMG + 7168}
    v_and_b32 v76, 31, v0
    v_mul_u32_u24 v77, 43, v76
    v_lshrrev_b32 v77, 8, v77
    v_mul_u32_u24 v77, 6, v77
    v_sub_u32 v76, v76, v77
    ds_write_b32 v71, v76 offset:{CC}
    ds_write_b32 v71, v76 offset:{CC + 768}
    v_and_b32 v76, 1, v0
    v_bfe_u32 v77, v0, 3, 2
    v_lshl_add_u32 v80, v76, 2, v77
    v_bfe_u32 v76, v0, 1, 2
    v_bfe_u32 v77, v0, 5, 2
    ; B node 128<=t<160
    v_bfe_u32 v78, v0, 2, 1
    v_add_u32 v78, 8, v78
    v_and_b32 v79, 3, v0
    v_bfe_u32 v81, v0, 3, 2
    v_cmp_gt_u32 vcc, 0x80, v0
    v_cndmask_b32 v80, v78, v80, vcc
    v_cndmask_b32 v76, v79, v76, vcc
    v_cndmask_b32 v77, v81, v77, vcc
    v_lshrrev_b32 v79, 1, v76
    v_lshl_add_u32 v79, v80, 1, v79
    v_lshlrev_b32 v79, 7, v79
    v_add_u32 v79, {CC}, v79
    v_lshl_add_u32 v76, v76, 4, v77
    v_lshlrev_b32 v76, 4, v76
    v_and_b32 v77, 1, v80
    v_lshl_add_u32 v76, v77, 3, v76
    v_lshrrev_b32 v77, 1, v80
    v_lshl_add_u32 v76, v77, 10, v76
    v_add_u32 v78, {IMG}, v76
    v_add_u32 v77, {CC + 2560 - 640 - 124}, v71
    v_cmp_gt_u32 vcc, 0xa0, v0
    v_cndmask_b32 v79, v77, v79, vcc
    v_mov_b32 v76, 0
    v_mov_b32 v77, {LIST}
    v_lshlrev_b32 v80, 3, v0
    v_cmp_gt_u32 vcc, 0xe0, v0
    s_and_saveexec_b64 s[92:93], vcc
    ds_write_b64 v80, v[78:79] offset:{TT}
    ds_write_b32 v71, v76 offset:{NN}
    ds_write_b32 v71, v76 offset:{OO - 256}
    ds_write_b64 v76, v[76:77] offset:{UF}
    s_mov_b64 exec, s[92:93]
    """)


def emit_b2(p):
    E, CN, TV, PF, OD, SH = 46, 62, 140, 112, 120, 128
    vDUM, vFOUR, vZ = 70, 71, 72
    a0, a1, a2, vONE, vFIVE, vMX = 82, 83, 85, 86, 87, 78
    MK = 60
    sRUN = 76
    SD = 'dst_sel:DWORD dst_unused:UNUSED_PAD'
    p.label('L_builder')
    p.vm = []
    p.lgkm = []
    p(f"""
    v_bfe_u32 v85, v1, 4, 2
    v_lshlrev_b32 v85, 5, v85
    v_lshlrev_b32 v84, 4, v1
    v_xor_b32 v84, v84, v85
    v_lshrrev_b32 v136, 1, v1
    v_lshlrev_b32 v136, 7, v136
    v_and_b32 v85, 1, v1
    v_lshl_add_u32 v136, v85, 4, v136
    v_bfe_u32 v85, v1, 2, 2
    v_lshl_add_u32 v136, v85, 5, v136
    s_lshl_b32 s79, s{sW}, 12
    s_add_u32 s79, s79, {SEG}
    v_add_u32 v136, s79, v136
    v_xor_b32 v137, 32, v136
    v_xor_b32 v138, 64, v136
    v_xor_b32 v139, 0x60, v136
    s_mov_b32 s77, s{sBU}
    s_lshl_b32 s98, s{sBU}, 15
    s_lshl_b32 s97, s{sW}, 12
    s_add_u32 s98, s98, s97
    s_add_u32 s98, s98, {WS_D}
    """)
    ld = ['s_mov_b32 m0, s79', 's_nop 0'] + [f'buffer_load_dwordx4 v84, {WSR}, s98 offen offset:{1024 * i} sc1 lds' for i in range(4)]
    p(f"""
    s_cmp_lg_u32 s{sW}, 7
    s_cbranch_scc1 L_ng0b
    s_mov_b64 exec, 0xff
    {flag_store(vUB)} sc1
    s_mov_b64 exec, -1
    """)
    p.vm.pop()
    p.raw('L_ng0b:')
    emit_init2(p)
    emit_common(p, True)
    p(f"""
    v_mov_b32 v{vONE}, 1
    v_mov_b32 v{vFIVE}, 5
    v_mov_b32 v{vMX}, 0
    s_lshl_b32 s96, s77, 9
    s_lshl_b32 s97, s77, 7
    s_add_u32 s97, s97, 32256
    s_movk_i32 s92, 640
    s_movk_i32 s93, 5112
    v_lshlrev_b32 v{vDUM}, 2, v1
    v_add_u32 v{vDUM}, 640, v{vDUM}
    v_mov_b32 v{vFOUR}, 4
    v_mov_b32 v{vZ}, 0
    s_waitcnt lgkmcnt(0)
    s_barrier
    """)
    if Cfg.predelay:
        p(f's_sleep {Cfg.predelay}')
    if Cfg.probe:
        p('s_mov_b32 exec_lo, 0x01010101\ns_mov_b32 exec_hi, 0x01010101')
        p.label('L_probe')
        p(f'buffer_load_dwordx4 v[{E}:{E + 3}], v84, {WSR}, s98 offen offset:3072 sc1')
        p(f's_add_u32 s{sSPIN}, s{sSPIN}, 1\ns_cmp_gt_u32 s{sSPIN}, {SPIN_MAX}\ns_cbranch_scc1 L_end')
        for i in range(4):
            p(f'v_xor_b32 v{CN + i}, v{E + i}, v{PS + i}')
        p(f"""
        v_or3_b32 v{a0}, v{CN}, v{CN + 1}, v{CN + 2}
        v_or_b32 v{a0}, v{a0}, v{CN + 3}
        v_and_b32 v{a0}, 0x3c000, v{a0}
        v_cmp_ne_u32 vcc, 0, v{a0}
        s_cbranch_vccz L_probed
        s_sleep {Cfg.pnap}
        s_branch L_probe
        """)
        p.label('L_probed')
        p('s_mov_b64 exec, -1')
    p.label('L_segagain')
    for x in ld:
        p(x)
    p(f's_add_u32 s{sSPIN}, s{sSPIN}, 1\ns_cmp_gt_u32 s{sSPIN}, {SPIN_MAX}\ns_cbranch_scc1 L_end\ns_waitcnt vmcnt(0)')
    for i in range(4):
        p(f'ds_read_b128 v[{E + 4 * i}:{E + 4 * i + 3}], v{136 + i}')
    for i in range(16):
        p(f'v_xor_b32 v{E + i}, v{E + i}, v{PS + (i & 3)}')
    p(f'v_or3_b32 v{a0}, v{E}, v{E + 1}, v{E + 2}')
    for i in range(3, 15, 2):
        p(f'v_or3_b32 v{a0}, v{a0}, v{E + i}, v{E + i + 1}')
    p(f"""
    v_or_b32 v{a0}, v{a0}, v{E + 15}
    v_and_b32 v{a0}, 0x3c000, v{a0}
    v_cmp_ne_u32 vcc, 0, v{a0}
    s_cbranch_vccnz L_segagain
    """)
    stamp(p, 'seg issued')
    m = lambda i: f's[{MK + 2 * i}:{MK + 2 * i + 1}]'
    for i in range(8):
        p(f"""
        v_lshrrev_b32 v{a0}, 16, v{E + i}
        v_subrev_u32 v{a1}, s96, v{a0}
        v_subrev_u32 v{a0}, s97, v{a0}
        v_min3_u32 v{CN + i}, v{a0}, v{a1}, v{vDUM}
        v_lshlrev_b32 v{a0}, 1, v{CN + i}
        ds_read_b64 v[{TV + 2 * i}:{TV + 2 * i + 1}], v{a0} offset:{TT}
        v_and_b32 v{SH + i}, 31, v{E + i}
        """)
    for i in range(8):
        p(f"""
        v_lshl_add_u32 v{PF + i}, v{SH + i}, 2, v{TV + 2 * i + 1}
        ds_inc_rtn_u32 v{PF + i}, v{PF + i}, v{vFIVE}
        """)
    p('s_mov_b32 s94, 0xfffc0000')
    p(f'v_min3_u32 v{a0}, v{E + 8}, v{E + 9}, v{E + 10}\nv_min3_u32 v{a1}, v{E + 11}, v{E + 12}, v{E + 13}')
    p(f'v_min3_u32 v{a0}, v{a0}, v{E + 14}, v{E + 15}\nv_min_u32 v{a0}, v{a0}, v{a1}\nv_cmp_gt_u32 vcc, s94, v{a0}\ns_cbranch_vccnz L_rare')
    p.raw('L_rared:')
    q = Prog()
    q.auto = False
    for i in range(8, 16):
        l = lbl('rs')
        q(f"""
        v_cmp_gt_u32 vcc, s94, v{E + i}
        s_cbranch_vccz {l}
        s_mov_b64 exec, vcc
        ds_add_rtn_u32 v{a2}, v{vZ}, v{vFOUR} offset:{UF + 4}
        s_waitcnt lgkmcnt(0)
        ds_write_b32 v{a2}, v{E + i}
        s_mov_b64 exec, -1
        """)
        q.raw(l + ':')
    q('s_waitcnt lgkmcnt(0)')
    LATE.append(('L_rare', [l.strip() for l in q.L], 'L_rared'))
    for i in range(8):
        p(f"""
        v_mul_u32_u24 v{SH + i}, 5, v{PF + i}
        v_lshlrev_b32 v{OD + i}, v{SH + i}, v{vONE}
        ds_add_rtn_u32 v{OD + i}, v{CN + i}, v{OD + i} offset:{NN}
        v_lshrrev_b32 v{a0}, 2, v{PF + i}
        v_mad_u32_u24 v{TV + 2 * i}, v{a0}, s93, v{TV + 2 * i}
        v_lshl_add_u32 v{TV + 2 * i}, v{PF + i}, 1, v{TV + 2 * i}
        v_cmp_gt_u32 {m(i)}, s92, v{CN + i}
        """)
    stamp(p, 'b2 atomics')
    for i in range(8):
        p(f"""
        v_bfe_u32 v{a1}, v{OD + i}, v{SH + i}, 5
        s_mov_b64 exec, {m(i)}
        v_cmp_gt_u32 vcc, 4, v{a1}
        v_lshl_add_u32 v{a0}, v{a1}, 6, v{TV + 2 * i}
        v_max_u32 v{vMX}, v{vMX}, v{a1}
        s_andn2_b64 {m(i)}, {m(i)}, vcc
        s_mov_b64 exec, vcc
        ds_write_b16 v{a0}, v{E + i}
        s_mov_b64 exec, {m(i)}
        ds_add_rtn_u32 v{PF + i}, v{vZ}, v{vFOUR} offset:{UF + 4}
        s_mov_b64 exec, -1
        """)
    for i in range(8):
        p(f's_mov_b64 exec, {m(i)}\nds_write_b32 v{PF + i}, v{E + i}')
    a, r_ = lbl('ov'), lbl('ovr')
    p(f"""
    s_mov_b64 exec, -1
    v_mov_b32 v{a1}, 0x{PAD - 1:x}
    v_cmp_eq_u32 vcc, v{a1}, v{E + 15}
    v_cmp_eq_u32 s[60:61], 31, v{vMX}
    s_or_b64 vcc, vcc, s[60:61]
    s_cbranch_vccnz {a}
    """)
    p.raw(r_ + ':')
    LATE.append((a, [f'v_mov_b32 v{a0}, 0x100000', f'ds_or_b32 v{vZ}, v{a0} offset:{UF}', 's_waitcnt lgkmcnt(0)'], r_))
    e, c, o, F, T, Q, S = 62, 63, 64, 65, 66, 68, 69
    emit_imgpat(p)
    p(f"""
    s_mul_i32 s94, s{sW}, 1920
    v_lshl_add_u32 v{vT3}, v1, 4, s94
    v_mov_b32 v{vT1}, 0
    v_lshlrev_b32 v{c}, 2, v0
    v_add_u32 v{c}, {LIST}, v{c}
    s_waitcnt lgkmcnt(0)
    s_barrier
    """)
    stamp(p, 'b2 pass1')
    a, r_ = lbl('ov'), lbl('ovr')
    p(f"""
    ds_read_b32 v{o}, v{vZ} offset:{UF + 4}
    ds_read_b32 v{e}, v{c}
    v_cmp_lt_u32 s[60:61], v{c}, v{o}
    v_cmp_lt_u32 vcc, {LIST + 2048}, v{o}
    s_cbranch_vccnz {a}
    """)
    p.raw(r_ + ':')
    LATE.append((a, [f'v_mov_b32 v{a0}, 0x100000', f'ds_or_b32 v{vZ}, v{a0} offset:{UF}', 's_waitcnt lgkmcnt(0)'], r_))
    p(f"""
    v_lshrrev_b32 v{a0}, 16, v{e}
    v_subrev_u32 v{a1}, s96, v{a0}
    v_subrev_u32 v{a0}, s97, v{a0}
    v_min_u32 v{c}, v{a0}, v{a1}
    v_cmp_gt_u32 vcc, s92, v{c}
    v_lshlrev_b32 v{a0}, 1, v{c}
    s_and_b64 s[60:61], s[60:61], vcc
    s_cbranch_scc0 L_p2done
    s_mov_b64 exec, s[60:61]
    ds_add_rtn_u32 v{o}, v{c}, v{vONE} offset:{OO}
    ds_read_b32 v{F}, v{c} offset:{NN}
    ds_read_b64 v[{T}:{T + 1}], v{a0} offset:{TT}
    v_mov_b32 v{Q}, 0
    v_mov_b32 v{S}, 0
    """)
    for qq in range(6):
        p(f"""
        v_bfe_u32 v{a0}, v{F}, {5 * qq}, 5
        v_sub_u32 v{a1}, 4, v{a0} clamp
        v_cmp_lt_u32 vcc, v{o}, v{a1}
        v_add_u32 v{a0}, v{a0}, v{o}
        v_sub_u32 v{o}, v{o}, v{a1}
        v_cndmask_b32 v{S}, v{S}, v{a0}, vcc
        """)
        if qq:
            p(f'v_cndmask_b32 v{Q}, v{Q}, {qq}, vcc')
    p(f"""
    v_lshrrev_b32 v{a0}, 2, v{o}
    v_add_u32 v{a0}, 6, v{a0}
    v_and_b32 v{a1}, 3, v{o}
    v_cmp_le_i32 vcc, 0, v{o}
    v_cndmask_b32 v{Q}, v{Q}, v{a0}, vcc
    v_cndmask_b32 v{S}, v{S}, v{a1}, vcc
    v_lshrrev_b32 v{a0}, 2, v{Q}
    v_mad_u32_u24 v{a0}, v{a0}, s93, v{T}
    v_lshl_add_u32 v{a0}, v{Q}, 1, v{a0}
    v_lshl_add_u32 v{a0}, v{S}, 6, v{a0}
    v_subrev_u32 v{T}, {CC}, v{T + 1}
    v_lshrrev_b32 v{T}, 8, v{T}
    v_lshlrev_b32 v{T}, v{T}, v{vONE}
    v_lshlrev_b32 v{F}, 10, v{T}
    v_cmp_lt_u32 vcc, 7, v{Q}
    v_cndmask_b32 v{F}, 0, v{F}, vcc
    v_or_b32 v{T}, v{T}, v{F}
    v_mov_b32 v{F}, 0x100000
    v_cmp_lt_u32 vcc, 9, v{Q}
    v_cndmask_b32 v{F}, 0, v{F}, vcc
    v_or_b32 v{T}, v{T}, v{F}
    v_cmp_gt_u32 vcc, 12, v{Q}
    s_and_b64 exec, s[60:61], vcc
    ds_write_b16 v{a0}, v{e}
    s_mov_b64 exec, s[60:61]
    v_cmp_lt_u32 vcc, 5, v{Q}
    s_and_b64 exec, exec, vcc
    ds_or_b32 v{vT1}, v{T} offset:{UF}
    s_mov_b64 exec, -1
    """)
    p.label('L_p2done')
    p(f"""
    s_lshl_b32 s96, s77, 14
    s_add_u32 s96, s96, {WS_D2}
    s_waitcnt lgkmcnt(0)
    s_barrier
    """)
    stamp(p, 'b2 done')
    p(f"""
    ds_read_b128 v[{E}:{E + 3}], v{vT3} offset:{IMG}
    ds_read_b128 v[{E + 4}:{E + 7}], v{vT3} offset:{IMG + 1024}
    ds_read_b32 v{vFV}, v{vT1} offset:{UF}
    s_lshl_b32 s97, s77, 7
    s_add_u32 s97, s97, {F_B2}
    v_lshl_add_u32 v{vT2}, v1, 13, s97
    """)
    for i in range(8):
        p(f'v_xor_b32 v{E + i}, v{E + i}, v{PS + (i & 3)}')
    p(f"""
    buffer_store_dwordx4 v[{E}:{E + 3}], v{vT3}, {WSR}, s96 offen sc1
    s_mov_b32 exec_hi, 0xffffff
    buffer_store_dwordx4 v[{E + 4}:{E + 7}], v{vT3}, {WSR}, s96 offen offset:1024 sc1
    s_mov_b64 exec, -1
    v_or_b32 v{vFV}, 0x80000000, v{vFV}
    s_cmp_lg_u32 s{sW}, 7
    s_cbranch_scc1 L_nohdr
    s_mov_b64 exec, 0xff
    {flag_store(vT2)} sc1
    s_mov_b64 exec, -1
    """)
    p.vm.pop()
    p.label('L_nohdr')
    stamp(p, 'b2 flag')
    p(f's_mov_b32 s{sTASK}, 17')
    p.label('L_fill0')
    p.forget()
    emit_misc_loads(p)
    p(f"""
    s_lshl_b32 s96, s{sU}, 7
    s_lshl_b32 s97, s{sXC}, 13
    s_add_u32 s96, s96, s97
    s_add_u32 s96, s96, {F_B2}
    v_mov_b32 v{vT3}, s96
    s_bfe_u32 s96, s2, 0x30002
    s_lshl_b32 s96, s96, 12
    s_add_u32 s96, s96, {F_TOK}
    v_lshl_add_u32 v{vTP}, v1, 7, s96
    s_lshl_b32 s96, s{sJ}, 5
    s_add_u32 s96, s96, s{sSL}
    s_lshl_b32 s96, s96, 7
    s_add_u32 s96, s96, {F_TOK}
    v_mov_b32 v{vTF}, s96
    s_mov_b32 s{sK}, 1
    s_lshl_b32 s96, s{sU}, 10
    s_add_u32 s96, s96, {TBL}
    v_lshl_add_u32 v{vOWN}, v1, 4, s96
    v_lshrrev_b32 v{vT0}, 3, v1
    v_lshlrev_b32 v{vT0}, 7, v{vT0}
    v_and_b32 v{vT1}, 7, v1
    v_lshl_add_u32 v{vT0}, v{vT1}, 3, v{vT0}
    s_lshl_b32 s96, s{sSL}, 10
    s_lshl_b32 s97, s{sW}, 8
    s_add_u32 s96, s96, s97
    v_add_u32 v230, s96, v{vT0}
    s_cmp_eq_u32 s{sW}, 7
    s_cselect_b64 vcc, -1, 0
    v_cndmask_b32 v230, v230, v{vTP}, vcc
    v_min_u32 v{vT1}, 16, v1
    v_and_b32 v{vT0}, 7, v{vT1}
    v_lshlrev_b32 v{vT0}, 9, v{vT0}
    v_lshrrev_b32 v{vT1}, 3, v{vT1}
    v_lshl_add_u32 v{vT0}, v{vT1}, 12, v{vT0}
    v_add_u32 v{vT0}, {F_TOK + 4096}, v{vT0}
    s_cmp_eq_u32 s{sW}, 6
    s_cselect_b64 vcc, -1, 0
    v_cndmask_b32 v230, v230, v{vT0}, vcc
    s_mov_b32 s87, 0
    s_mov_b32 s{sFC}, 3
    s_mov_b32 s{sFA}, 4
    s_mov_b32 s{sFB}, 5
    s_mov_b32 s{sTO}, {WS_TOK + TOK_PL}
    """)
    for i in range(7):
        p(f's_add_u32 s95, s{sJ}, {i + 1}\ns_and_b32 s95, s95, 7\ns_lshl_b32 s{sOFF + i}, s95, 10')
    p('s_mov_b32 s92, 0x200000\ns_mov_b32 s93, 0')
    poll(p, vT3, 1, '0x80000000', bound='s[92:93]', nap=Cfg.hnap)
    p(f"""
    v_readfirstlane_b32 s{sQ}, v{vPL}
    v_lshlrev_b32 v{vT3}, 4, v1
    s_lshl_b32 s88, s{sU}, 14
    s_add_u32 s88, s88, {WS_D2}
    s_add_u32 s89, s88, 5120
    s_mov_b32 s78, {TBL}
    """)
    if Cfg.force_slow:
        p(f's_and_b32 s96, s{sU}, {Cfg.force_slow - 1}\ns_cselect_b32 s96, 0, 0x100000\ns_or_b32 s{sQ}, s{sQ}, s96')
    stamp(p, 'hdr seen')
    il = img_loads()
    n1 = 2 * Cfg.pre_pairs
    p(f's_mov_b32 exec_hi, 0xff\n{poll_load(vG0, vPL)}\ns_mov_b64 exec, -1')
    for x in il[:n1]:
        p(x)
    p(f"""
    v_and_b32 v{vD1}, 0xffff0000, v{vD0}
    v_lshlrev_b32 v{vD0}, 16, v{vD0}
    v_lshlrev_b32 v{vD2}, 16, v{vD2}
    v_mov_b32 v{vT2}, 0
    v_mov_b32 v{vFV}, 3
    """)
    poll(p, vG0, 40, 1, first_issued=True, nap=Cfg.gnap)
    p(f"""
    v_subrev_u32 v{vT1}, 1, v{vPL}
    v_cmp_ne_u32 vcc, s99, v{vT1}
    v_mov_b32 v{vG0}, v230
    s_and_b32 s{sSLOW}, vcc_hi, 0xff
    """)
    stamp(p, 'g0 seen')
    for x in fill_list():
        p(x)
    for x in il[n1:]:
        p(x)
    p(f's_waitcnt vmcnt({10 - n1})\ns_barrier')
    xstore(p, ['s_mov_b64 exec, 1', flag_store(vFO), 's_mov_b64 exec, -1'])
    stamp(p, 'ready')
    p(f's_and_b32 s96, s{sQ}, 0x1ffc00\ns_cbranch_scc1 L_imp')
    p.auto = False
    emit_gather(p, True)
    p('s_branch L_gath_done')
    p.auto = True
    p.label('L_impagain')
    p(f's_add_u32 s{sSPIN}, s{sSPIN}, 1\ns_cmp_gt_u32 s{sSPIN}, {SPIN_MAX}\ns_cbranch_scc1 L_end\ns_setprio 0\ns_waitcnt vmcnt(0) lgkmcnt(0)')
    for x in img_loads():
        p(x)
    p.label('L_imp')
    p.forget()
    p(f's_add_u32 s96, s88, 10240\ns_add_u32 s97, s88, 14336\nv_mov_b32 v{vT2}, 0')
    for c in range(10, 15):
        p(f'buffer_load_dwordx4 v[{imgreg(c)}:{imgreg(c) + 3}], v{vT3}, {WSR}, s{96 + (c - 10) // 4} offen offset:{1024 * ((c - 10) % 4)} sc1')
    p('s_waitcnt vmcnt(0)')
    for c in range(15):
        for x in unpack(c):
            p(x)
    p(f"""
    v_and_b32 v{vT2}, 0xc000c000, v{vT2}
    v_cmp_ne_u32 vcc, 0, v{vT2}
    s_cbranch_vccnz L_impagain
    s_branch L_hop1b
    """)


imgreg = lambda c: 46 + 4 * c if c < 10 else 200 + 4 * (c - 10)


def img_loads():
    o = []
    for i in range(5):
        for h in range(2):
            c = i + 5 * h
            so, off = (f's{88 + h}', 1024 * i) if i < 4 else ('s96', 0)
            if i == 4:
                o.append(f's_add_u32 s96, s{88 + h}, 4096')
            o.append(f'buffer_load_dwordx4 v[{imgreg(c)}:{imgreg(c) + 3}], v{vT3}, {WSR}, {so} offen offset:{off} sc1')
    return o


def unpack(c):
    r = imgreg(c)
    o = [f'v_xor_b32 v{r + i}, v{r + i}, v{PS + i}' for i in range(4)]
    o += [f'v_or3_b32 v{vT2}, v{vT2}, v{r}, v{r + 1}', f'v_or3_b32 v{vT2}, v{vT2}, v{r + 2}, v{r + 3}']
    for i in range(4):
        b, q = 2 * (c % 5) + (i >> 1), 4 * (c // 5) + 2 * (i & 1)
        if q < 10:
            o.append(f'v_mad_u32_u16 v{ADDR(b, q)}, v{r + i}, 8, s78')
            o.append(f'v_mad_u32_u16 v{ADDR(b, q + 1)}, v{r + i}, 8, s78 op_sel:[1,0,0,0]')
    return o


def emit_reads(p, b):
    rd = lambda q: f'ds_read_b64_tr_b16 v[{DATA(b, q)}:{DATA(b, q) + 1}], v{ADDR(b, q)}'
    for q in range(6):
        p(rd(q))
    a, r = lbl('r'), lbl('rr')
    p(f's_bitcmp1_b32 s{sQ}, {b}\ns_cbranch_scc1 {a}')
    p.raw(r + ':')
    LATE.append((a, [rd(6), rd(7), f's_bitcmp1_b32 s{sQ}, {10 + b}', f's_cbranch_scc0 {r}', rd(8), rd(9)], r))


def emit_mfmas(p, b):
    D = (D0, D1, D2)[b >> 2]
    sel = SEL + 4 * (b & 3)
    for i in range(3):
        p(mf32(D, DATA(b, 2 * i), sel, None if (b & 3) == 0 and i == 0 else D))
    a, r = lbl('m'), lbl('mr')
    p(f's_bitcmp1_b32 s{sQ}, {b}\ns_cbranch_scc1 {a}')
    p.raw(r + ':')
    g = Ins(mf32(D, DATA(b, 6), sel, D))
    g.ghost = True
    p.hist.append(g)
    LATE.append((a, [mf32(D, DATA(b, 6), sel, D), f's_bitcmp1_b32 s{sQ}, {10 + b}', f's_cbranch_scc0 {r}', mf32(D, DATA(b, 8), sel, D)], r))


def stage_plane(p, spl):
    a = lbl('sp')
    p(f'''
    s_mul_i32 s92, s{spl}, {TOK_PL}
    s_add_u32 s92, s92, {WS_TOK}
    s_mul_i32 s93, s{spl}, {L_PL}
    s_lshl_b32 s94, s{sW}, 10
    s_add_u32 s93, s93, s94
    s_mov_b32 m0, s93
    s_cmp_ge_u32 s{sW}, 2
    buffer_load_dwordx4 v{vK0}, {WSR}, s92 offen sc1 lds
    s_cbranch_scc1 {a}
    s_add_u32 m0, s93, 8192
    s_cmp_lg_u32 0, 0
    buffer_load_dwordx4 v{vK1}, {WSR}, s92 offen sc1 lds
    ''')
    p.vm.pop()
    p.raw(a + ':')


YA, YB, LA, LB, Y = 46, 47, 48, 49, 68


E0, E1 = 50, 51


def x_addr(p):
    p(f"""
    s_lshl_b32 s93, s{sW}, 2
    v_bfe_u32 v{vT2}, v1, 3, 2
    v_add_u32 v{vT2}, s93, v{vT2}
    v_lshlrev_b32 v{YB}, 15, v{vT2}
    v_mul_u32_u24 v{LB}, 320, v{vT2}
    v_and_b32 v{vT2}, 7, v1
    v_lshl_add_u32 v{YB}, v{vT2}, 4, v{YB}
    v_lshl_add_u32 v{LB}, v{vT2}, 3, v{LB}
    v_add_u32 v{LB}, {7 * L_PL + 256}, v{LB}
    s_lshl_b32 s82, s2, 7
    s_add_u32 s82, s82, {WS_X7}
    s_lshl_b32 s92, s{sSL}, 15
    s_lshl_b32 s96, s{sU}, 9
    s_add_u32 s92, s92, s96
    v_lshl_add_u32 v{vGB}, v{vBL}, 4, s92
    v_mov_b32 v{Z2 + 2}, v{vNON}
    v_mov_b32 v{Z2 + 3}, v{vNON}
    s_lshl_b32 s96, s2, 8
    s_lshr_b32 s97, s96, 2
    s_add_u32 s97, s97, {65536 - 256}
    s_mov_b32 s92, 81920
    v_mul_u32_u24 v{vT1}, 3277, v1
    v_lshrrev_b32 v{vT1}, 16, v{vT1}
    v_mul_u32_u24 v{vT2}, 20, v{vT1}
    v_sub_u32 v{vT2}, v1, v{vT2}
    v_add_u32 v{vT1}, s93, v{vT1}
    v_mul_lo_u32 v{vT1}, v{vT1}, s92
    v_mov_b32 v{vT0}, s97
    v_mov_b32 v{vT3}, s96
    v_cmp_gt_u32 vcc, 16, v{vT2}
    v_cndmask_b32 v{E0}, v{vT0}, v{vT3}, vcc
    s_mov_b64 s[80:81], vcc
    v_lshl_add_u32 v{E0}, v{vT2}, 4, v{E0}
    v_add_u32 v{E0}, v{E0}, v{vT1}
    v_cmp_gt_u32 vcc, 12, v1
    v_cndmask_b32 v{E1}, v{vT0}, v{vT3}, vcc
    v_lshl_add_u32 v{E1}, v1, 4, v{E1}
    s_add_u32 s93, s93, 3
    s_mul_i32 s93, s93, 81920
    s_add_u32 s93, s93, 64
    v_add_u32 v{E1}, s93, v{E1}
    """)


def emit_slow_unit(p):
    n0, n1, n2, ed, es, m0_, m1_ = 200, 201, 202, 203, 204, 205, 206
    X = 208
    p.label('L_slow')
    p.forget()
    for i in range(12):
        p(f'v_mov_b32 v{D0 + i}, 0')
    p(f'''
    s_lshl_b32 s96, s{sU}, 7
    v_lshl_add_u32 v{n0}, v1, 1, s96
    v_add_u32 v{n1}, 1, v{n0}
    s_lshl_b32 s96, s{sU}, 5
    s_add_u32 s96, s96, 8192
    v_add_u32 v{n2}, s96, v{vBL}
    v_lshlrev_b32 v{X + 8}, 2, v1
    s_mov_b32 s92, 0
    s_add_u32 s94, s{sU}, 256
    ''')
    p.label('L_slow_e')
    p(f'''
    buffer_load_dword v{ed}, v{X + 8}, s[{sDST}:{sDST + 3}], s92 offen
    buffer_load_dword v{es}, v{X + 8}, s[{sSRC}:{sSRC + 3}], s92 offen
    s_waitcnt vmcnt(0)
    v_lshrrev_b32 v{m0_}, 7, v{ed}
    v_lshrrev_b32 v{m1_}, 5, v{ed}
    v_cmp_eq_u32 s[96:97], s{sU}, v{m0_}
    v_cmp_eq_u32 vcc, s94, v{m1_}
    s_or_b64 s[96:97], s[96:97], vcc
    ''')
    p.label('L_slow_b')
    p(f'''
    s_cmp_eq_u64 s[96:97], 0
    s_cbranch_scc1 L_slow_n
    s_ff1_i32_b64 s95, s[96:97]
    s_bitset0_b64 s[96:97], s95
    v_readlane_b32 s98, v{ed}, s95
    v_readlane_b32 s99, v{es}, s95
    s_lshl_b32 s99, s99, 3
    s_add_u32 s99, s99, {TBL}
    v_mov_b32 v{X + 6}, s99
    ds_read_b64 v[{X + 4}:{X + 5}], v{X + 6}
    s_waitcnt lgkmcnt(0)
    v_lshlrev_b32 v{X}, 16, v{X + 4}
    v_and_b32 v{X + 1}, 0xffff0000, v{X + 4}
    v_lshlrev_b32 v{X + 2}, 16, v{X + 5}
    v_and_b32 v{X + 3}, 0xffff0000, v{X + 5}
    ''')
    for D, n in ((D0, n0), (D1, n1), (D2, n2)):
        p(f'v_cmp_eq_u32 vcc, s98, v{n}\ns_mov_b64 exec, vcc')
        for i in range(4):
            p(f'v_add_f32 v{D + i}, v{D + i}, v{X + i}')
        p('s_mov_b64 exec, -1')
    p('s_branch L_slow_b')
    p.label('L_slow_n')
    p('s_add_u32 s92, s92, 256\ns_cmp_lt_u32 s92, 640000\ns_cbranch_scc1 L_slow_e')
    p(f's_cmp_eq_u32 s{sK}, 7\ns_cbranch_scc1 L_slow7')
    for x in finish(D0, vD0, HA, GA) + finish(D1, vD1, HA + 2, GA + 2):
        p(x)
    poll(p, vFP, 0xff, f's{sFC}')
    xstore(p, [f'buffer_store_dwordx4 v[{GA}:{GA + 3}], v{vGA}, {WSR}, s{sGO} offen'])
    emit_flag_a(p)
    emit_tok_check(p)
    p('s_branch L_gath_done')
    p.label('L_slow7')
    p.auto = False
    for x in finish(D0, vD0, HA, GA)[:6] + finish(D1, vD1, HA + 2, GA)[:6]:
        p(x)
    x_addr(p)
    p(a7_store())
    p.auto = True
    p('s_branch L_gath7_done')


def emit_flag_a(p):
    p(f'v_mov_b32 v{vFV}, s{sFA}\ns_waitcnt vmcnt(0)')
    xstore(p, ['s_mov_b64 exec, 1', flag_store(vFO), 's_mov_b64 exec, -1'])
    if Cfg.pa_early:
        p(f's_mov_b64 exec, 0xff\n{poll_load(vFP, vPL)}\ns_mov_b64 exec, -1')


def x7_store(z, vaddr, so):
    return f'buffer_store_dwordx4 v[{z}:{z + 3}], v{vaddr}, {WSR}, s{so} offen sc1'


def emit_tok_check(p):
    a, r = lbl('tc'), lbl('tcr')
    p(f's_cmp_lg_u32 s87, 0\ns_cbranch_scc1 {a}')
    p.raw(r + ':')
    q = Prog()
    poll(q, vG0, 32, 's87', first_issued=True, res=vP2, so='s40', nap=Cfg.nap)
    LATE.append((a, [l.strip() for l in q.L], r))


def a7_store():
    return f'buffer_store_dwordx4 v[{HA}:{HA + 3}], v{vGA}, {WSR}, s{sTO} offen sc1'


def alt7(p, normal, alt):
    a, r = lbl('a7'), lbl('a7r')
    p(f's_cmp_eq_u32 s{sK}, 7\ns_cbranch_scc1 {a}')
    p.opt_begin()
    normal()
    p.opt_end(r)
    q = Prog()
    q.auto = False
    q('s_nop 7')
    alt(q)
    LATE.append((a, [l.strip() for l in q.L], r))


def emit_gather(p, first=False):
    def need(b):
        if first and b % 2 == 0:
            p(f's_waitcnt vmcnt({9 - b + (1 if b > 5 else 0)})')
            for x in unpack(b // 2) + unpack(5 + b // 2):
                p(x)
    if Cfg.prio_until:
        a = lbl('np')
        p(f's_cmp_lt_u32 s{sW}, 4\ns_cbranch_scc1 {a}\ns_setprio 1')
        p.raw(a + ':')
    need(0)
    emit_reads(p, 0)
    for b in range(10):
        if b < 9:
            need(b + 1)
            emit_reads(p, b + 1)
        p(f's_waitcnt lgkmcnt({6 if b < 9 else 0})')
        emit_mfmas(p, b)
        if Cfg.tpoll_at and b == Cfg.tpoll_at and not first:
            a, r = lbl('tp'), lbl('tpr')
            p(f's_cmp_lg_u32 s87, 0\ns_cbranch_scc1 {a}')
            p.raw(r + ':')
            LATE.append((a, [f's_cmp_eq_u32 s{sK}, 7', f's_cbranch_scc1 {r}', 's_mov_b32 exec_hi, 0', poll_load(vG0, vP2, 's40'), 's_mov_b64 exec, -1'], r))
        if b == 4:
            def n4():
                for x in finish(D0, vD0, HA, GA):
                    p(x)
                p(f's_mov_b64 exec, 0xff\n{poll_load(vFP, vPL)}\ns_mov_b64 exec, -1')

            def a4(q):
                for x in finish(D0, vD0, HA, GA)[:6]:
                    q(x)
                x_addr(q)
            if first:
                n4()
            else:
                alt7(p, n4, a4)
        if Cfg.prio_until and b == Cfg.prio_until:
            p('s_setprio 0')
        if b == 7:
            def n7():
                for x in finish(D1, vD1, HA + 2, GA + 2):
                    p(x)
                p('s_waitcnt vmcnt(0)')
                p._inopt = False
                if first:
                    p(f'v_and_b32 v{vT2}, 0xc000c000, v{vT2}\nv_cmp_ne_u32 vcc, 0, v{vT2}\ns_cbranch_vccnz L_impagain')
                poll(p, vFP, 0xff, f's{sFC}', first_issued=True)
                m = p._optmark
                xstore(p, [f'buffer_store_dwordx4 v[{GA}:{GA + 3}], v{vGA}, {WSR}, s{sGO} offen'])
                p._optmark = m

            def a7(q):
                for x in finish(D1, vD1, HA + 2, GA)[:6]:
                    q(x)
                q('s_cmp_lg_u32 s87, 0\ns_cselect_b32 exec_lo, -1, 0\ns_mov_b32 exec_hi, 0')
                q(poll_load(vG0, vP2, 's40'))
                q('s_mov_b64 exec, -1')
                q(a7_store())
            if first:
                p._optmark = len(p.hist)
                n7()
            else:
                alt7(p, n7, a7)
        if b == 8:
            def n8():
                m = p._optmark
                emit_flag_a(p)
                p._optmark = m
            def n8b():
                n8()
                m = p._optmark
                emit_tok_check(p)
                p._optmark = m
            if first:
                emit_flag_a(p)
            else:
                alt7(p, n8b, lambda q: None)


def emit_flag_c(p):
    p(f"""
    s_mul_i32 s{sFC}, s{sK}, 3
    s_add_u32 s{sFA}, s{sFC}, 1
    s_add_u32 s{sFB}, s{sFC}, 2
    v_mov_b32 v{vFV}, s{sFC}
    """)
    xstore(p, ['s_mov_b64 exec, 1', flag_store(vFO), 's_mov_b64 exec, -1'])


def emit_hops(p):
    p.label('L_hop')
    if Cfg.c_first:
        emit_flag_c(p)
    p(f"""
    s_sub_u32 s93, s{sK}, 2
    {"" if Cfg.notok else f"buffer_store_dwordx4 v[{HA}:{HA + 3}], v{vGA}, {WSR}, s{sTO} offen {Cfg.tokf}"}
    {"" if Cfg.notok else f"buffer_store_dwordx2 v[{HB}:{HB + 1}], v{vGB}, {WSR}, s{sTO} offen {Cfg.tokf}"}
    """)
    p(f"""
    v_mov_b32 v{vFV}, s93
    s_cmp_lg_u32 s{sW}, 0
    s_cbranch_scc1 L_notf
    s_lshl_b32 s93, s93, 15
    s_mov_b64 exec, 1
    {flag_store(vTF, 's93')} sc1
    s_mov_b64 exec, -1
    """)
    p.raw('L_notf:')
    if Cfg.lat:
        p('s_waitcnt vmcnt(0)')
        stamp(p, 't1', True)
    p(f's_cmp_eq_u32 s{sK}, 2\ns_cbranch_scc1 L_hop2x')
    q = Prog()
    q.auto = False
    q(f"""
    s_cmp_lt_u32 s{sTASK}, 17
    s_cbranch_scc1 L_prepA
    s_or_b32 s96, s2, s{sW}
    s_cbranch_scc1 L_keeptag
    v_mov_b32 v{vT0}, {WS_TAG}
    s_mov_b64 exec, 1
    buffer_store_dword v{vNON}, v{vT0}, {WSR}, 0 offen sc1
    s_mov_b64 exec, -1
    L_keeptag:
    s_cmp_lg_u32 s{sTASK}, 17
    s_cbranch_scc1 L_hop1
    v_and_b32 v{vT0}, 7, v1
    v_lshrrev_b32 v{vT1}, 3, v1
    v_lshlrev_b32 v{vT2}, 8, v{vT0}
    v_lshl_add_u32 v{vT2}, v{vT1}, 4, v{vT2}
    s_lshl_b32 s96, s2, 13
    s_lshr_b32 s97, s{sW}, 1
    s_lshl_b32 s92, s97, 11
    s_and_b32 s94, s{sW}, 1
    s_lshl_b32 s95, s94, 7
    s_add_u32 s92, s92, s95
    s_add_u32 s92, s92, s96
    buffer_load_dwordx4 v[46:49], v{vT2}, s[{sX_}:{sX_ + 3}], s92 offen
    s_lshr_b32 s96, s96, 2
    s_add_u32 s96, s96, s95
    s_add_u32 s96, s96, {8192 * 256}
    buffer_load_dwordx4 v[50:53], v{vT2}, s[{sX_}:{sX_ + 3}], s96 offen
    v_mul_u32_u24 v{vT1}, 640, v{vT1}
    v_lshl_add_u32 v{vT1}, v{vT0}, 3, v{vT1}
    s_mul_i32 s94, s94, 5120
    v_add_u32 v55, s94, v{vT1}
    s_lshl_b32 s97, s97, 6
    v_add_u32 v54, s97, v55
    """)
    LATE.append(('L_hop2x', [l.strip() for l in q.L], 'L_hop1'))
    p(f"""
    s_cmp_lt_u32 s{sK}, {5 if Cfg.late else Cfg.lag + 1}
    s_cbranch_scc1 L_hop1
    s_sub_u32 s87, s{sK}, {Cfg.lag}
    s_cmp_eq_u32 s{sK}, 7
    s_cselect_b32 s87, 5, s87
    s_cmp_eq_u32 s{sW}, 7
    s_cselect_b32 s87, s87, 0
    {f"s_cmp_lt_u32 s{sK}, {min(Cfg.late) - 1}" if Cfg.late else ""}
    {"s_cselect_b32 s87, 0, s87" if Cfg.late else ""}
    s_lshl_b32 s92, s{sW}, 3
    s_add_u32 s92, s92, s{sK}
    s_cmp_eq_u32 s92, 55
    s_cselect_b32 s87, 4, s87
    s_lshl_b32 s40, s87, 15
    s_lshl_b32 s92, s{sK}, 8
    s_add_u32 s92, s92, s{sTASK}
    s_sub_u32 s92, s92, 0x500
    s_cmp_lt_u32 s92, 16
    s_cbranch_scc1 L_prepD
    L_prepDr:
    s_cmp_gt_u32 s{sK}, {min(Cfg.late) - 1 if Cfg.late else Cfg.lag + 1}
    s_cbranch_scc1 L_stg
    L_stgr:
    {"" if Cfg.tpoll_at else "s_cmp_lg_u32 s87, 0"}
    {"" if Cfg.tpoll_at else "s_cbranch_scc1 L_tpl"}
    """)
    q = Prog()
    q.auto = False
    if Cfg.late:
        for k, planes in Cfg.late.items():
            l = lbl('lt')
            q(f's_cmp_lg_u32 s{sK}, {k}\ns_cbranch_scc1 {l}')
            for pl in planes:
                q(f's_mov_b32 s95, {pl}')
                stage_plane(q, 95)
            q.raw(l + ':')
    else:
        q(f's_sub_u32 s95, s{sK}, {Cfg.lag + 1}')
        if not Cfg.nostage:
            stage_plane(q, 95)
    q(f"""
    s_cmp_lg_u32 s{sK}, {Cfg.junk_at}
    s_cbranch_scc1 L_stgr
    s_lshl_b32 s92, s{sR}, 3
    s_add_u32 s92, s92, s{sW}
    s_mul_i32 s92, s92, 288
    s_add_u32 s92, s92, {WS_WF}
    v_lshlrev_b32 v{vT0}, 5, v1
    s_mov_b64 exec, 0x1ff
    buffer_load_dword v2, v{vT0}, {WSR}, s92 offen
    s_mov_b64 exec, -1
    """)
    LATE.append(('L_stg', [l.strip() for l in q.L], 'L_stgr'))
    LATE.append(('L_tpl', [f's_cmp_eq_u32 s{sK}, 7', 's_cbranch_scc1 L_hop1', 's_mov_b32 exec_hi, 0', poll_load(vG0, vP2, 's40'), 's_mov_b64 exec, -1'], 'L_hop1'))
    p.label('L_hop1')
    if Cfg.lat:
        p('s_waitcnt vmcnt(0)')
        stamp(p, 't2', True)
    p.auto = False
    p(f's_add_u32 s{sTO}, s{sTO}, {0 if Cfg.sameplane else TOK_PL}')
    if not Cfg.c_first:
        emit_flag_c(p)
    p.label('L_hop1b')
    p(f'''
    s_bitcmp1_b32 s{sQ}, 20
    s_cbranch_scc1 L_slow
    ''')
    emit_gather(p)
    p.label('L_gath_done', keep=True)
    p.forget()
    p(f'''
    s_cmp_eq_u32 s{sK}, 7
    s_cbranch_scc1 L_gath7_done
    ''')
    if not Cfg.pa_early and Cfg.pa_pre != 3:
        p(f's_mov_b64 exec, 0xff\n{poll_load(vFP, vPL)}\ns_mov_b64 exec, -1')
    for x in finish(D2, vD2, HB, GB):
        p(x)
    xstore(p, [f'buffer_store_dwordx2 v[{GB}:{GB + 1}], v{vGB}, {WSR}, s{sGO} offen'])
    stamp(p, 'gath', True)
    if Cfg.pa_pre == 1:
        p('s_waitcnt vmcnt(1)')
        poll(p, vFP, 0xff, f's{sFA}', first_issued=True)
    if Cfg.pa_pre in (2, 3):
        p(f'v_mov_b32 v{vFV}, s{sFB}\ns_waitcnt vmcnt(0)')
        xstore(p, ['s_mov_b64 exec, 1', flag_store(vFO), 's_mov_b64 exec, -1'])
    if Cfg.pa_pre == 2:
        poll(p, vFP, 0xff, f's{sFA}', first_issued=True)
    if Cfg.pa_pre == 3:
        p(f's_mov_b64 exec, 0xff\n{poll_load(vFP, vPL)}\ns_mov_b64 exec, -1')
    p('s_barrier')
    stamp(p, 'bar1', True)
    if Cfg.pa_pre < 2:
        p(f'v_mov_b32 v{vFV}, s{sFB}\ns_waitcnt vmcnt(0)')
        xstore(p, ['s_mov_b64 exec, 1', flag_store(vFO), 's_mov_b64 exec, -1'])
    if Cfg.pa_pre == 3:
        p('s_waitcnt vmcnt(0)')
    if Cfg.pa_pre in (0, 3):
        poll(p, vFP, 0xff, f's{sFA}', first_issued=True)
    stamp(p, 'pollA', True)

    def dA(i):
        p(f's_add_u32 m0, s{sLA}, s{sOFF + i}\ns_add_u32 s97, s{sGO}, s{sOFF + i}')
        p(f'buffer_load_dwordx4 v{vDA}, {WSR}, s97 offen sc1 lds')
    for i in range(Cfg.pollb_at):
        dA(i)
    p(f"""
    s_cmp_lt_u32 s{sW}, 4
    s_cselect_b32 exec_lo, 0xffff, 0
    s_mov_b32 exec_hi, 0
    {poll_load(vG0, vPL)}
    s_mov_b64 exec, -1
    """)
    for i in range(Cfg.pollb_at, 7):
        dA(i)
    p(f'ds_write_b128 v{vOWN}, v[{GA}:{GA + 3}]')
    p(f's_cmp_ge_u32 s{sW}, 4\ns_cbranch_scc1 L_nob\ns_waitcnt vmcnt({7 - Cfg.pollb_at})')
    poll(p, vG0, 0xffff, f's{sFB}', first_issued=True)
    stamp(p, 'pollB', True)
    p(f's_mov_b32 m0, s{sLB}')
    for j in range(4):
        p(f'buffer_load_dwordx4 v{vDB}, {WSR}, s{sGO} offen offset:{1024 * j} sc1 lds')
    p.raw('L_nob:')
    stamp(p, 'pp0', True)
    p(f's_cmp_lt_u32 s{sTASK}, 18\ns_cbranch_scc1 L_prepW')
    p.raw('L_prepB_back:')
    stamp(p, 'pp1', True)
    LATE.append(('L_bxw', ['ds_write_b64 v54, v[46:47]', 'ds_write_b64 v54, v[48:49] offset:320',
                           'ds_write_b64 v55, v[50:51] offset:256', 'ds_write_b64 v55, v[52:53] offset:576', f's_mov_b32 s{sTASK}, 99'], 'L_prepB_back'))
    LATE.append(('L_prepW', [f's_cmp_eq_u32 s{sK}, 1', 's_cbranch_scc1 L_prepB_back',
                             f's_cmp_eq_u32 s{sTASK}, 17', 's_cbranch_scc1 L_bxw', f's_cmp_eq_u32 s{sK}, 2', 's_cbranch_scc1 L_prepB', f's_cmp_eq_u32 s{sTASK}, 16', 's_cbranch_scc1 L_prepB_back',
                             f's_cmp_eq_u32 s{sK}, 3', 's_cbranch_scc1 L_prepB2',
                             f's_cmp_eq_u32 s{sK}, 4', 's_cbranch_scc1 L_prepC'], 'L_prepB_back'))
    p(f'''
    s_waitcnt vmcnt(0) lgkmcnt(0)
    L_bar2:
    s_barrier
    ''')
    stamp(p, 'bar2', True)
    p(f's_add_u32 s{sK}, s{sK}, 1\ns_branch L_hop')
    p.auto = True
    emit_slow_unit(p)
    emit_prep_blocks(p)
    emit_late(p)


def emit_handoff(p):
    p.label('L_gath7_done')
    p.forget()
    p.auto = False
    p(f's_mov_b32 s94, {WS_X7}\ns_nop 4')
    for x in finish(D2, vD2, Z2, GB)[:6]:
        p(x)
    p('s_waitcnt vmcnt(0)')
    p(x7_store(Z2, vGB, 94))
    stamp(p, 'gath7')
    emit_tok_check(p)
    p('s_barrier')
    for pl in range(7 - Cfg.lag, 6):
        p(f's_mov_b32 s95, {pl}')
        stage_plane(p, 95)
    p(f"""
    v_lshlrev_b32 v{vT2}, 4, v1
    s_lshl_b32 s92, s{sW}, 13
    s_add_u32 s93, s92, {WS_WF}
    s_add_u32 s92, s92, {L_W}
    s_mov_b32 m0, s92
    s_add_u32 s94, s93, 4096
    """)
    ldb = f'buffer_load_dwordx4 v[{Y + 8}:{Y + 11}], v{YB}, {WSR}, s82 offen sc1'
    for i in range(8):
        if i == 4:
            p('s_add_u32 m0, s92, 4096')
        if i == Cfg.x7_at:
            p(f's_mov_b32 exec_hi, 0\n{ldb}\ns_mov_b64 exec, -1')
        p(f'buffer_load_dwordx4 v{vT2}, {WSR}, s{93 + i // 4} offen offset:{1024 * (i % 4)} sc1 lds')
    p(f"""
    s_and_b32 s92, s{sW}, 3
    s_lshl_b32 s92, s92, 10
    s_add_u32 s93, s92, {WS_WF + 65536}
    s_add_u32 m0, s92, {L_LIN}
    v_mov_b32 v{vT3}, {WS_WF + 69632}
    buffer_load_dwordx4 v{vT2}, {WSR}, s93 offen sc1 lds
    buffer_load_dword v{vSWR}, v{vT3}, {WSR}, 0 offen sc1
    s_lshr_b32 s78, s2, 2
    s_and_b32 s79, s2, 3
    """)
    p.auto = True
    p.forget()
    emit_tf_setup(p, sW, 78, 79, 92)
    p('s_mov_b32 exec_hi, 0')
    if Cfg.x7_at > 7:
        p(ldb)
    p(f's_waitcnt vmcnt({max(0, 10 - Cfg.x7_at)})')
    chk = [f'v_xor_b32 v{vT0}, v{Y + 10}, v{vNON}', f'v_xor_b32 v{vT1}, v{Y + 11}, v{vNON}', f'v_or_b32 v{vT0}, v{vT0}, v{vT1}',
           f'v_cmp_ne_u32 vcc, 0, v{vT0}', 's_cbranch_vccnz L_x7again']
    for x in chk:
        p(x)
    LATE.append(('L_x7again', [f's_sleep {Cfg.nap}', ldb, f's_add_u32 s{sSPIN}, s{sSPIN}, 1', f's_cmp_gt_u32 s{sSPIN}, {SPIN_MAX}',
                               's_cbranch_scc1 L_end', 's_waitcnt vmcnt(0)'] + chk, 'L_x7ok'))
    p.label('L_x7ok')
    p(f'ds_write_b64 v{LB}, v[{Y + 8}:{Y + 9}]\ns_mov_b64 exec, -1')
    stamp(p, 'hint7')
    p(f"""
    s_mul_i32 s93, s{sW}, 1280
    s_mov_b32 s92, {WS_TOK + 6 * TOK_PL}
    s_mov_b32 s94, {WS_TOK + 7 * TOK_PL}
    s_add_u32 m0, s93, {6 * L_PL}
    s_nop 0
    buffer_load_dwordx4 v{E0}, {WSR}, s92 offen sc1 lds
    s_add_u32 m0, s93, {7 * L_PL}
    s_mov_b64 exec, s[80:81]
    buffer_load_dwordx4 v{E0}, {WSR}, s94 offen sc1 lds
    s_add_u32 m0, s93, {6 * L_PL + 1024}
    s_mov_b64 exec, 0xffff
    buffer_load_dwordx4 v{E1}, {WSR}, s92 offen sc1 lds
    s_add_u32 m0, s93, {7 * L_PL + 1024}
    s_mov_b64 exec, 0xfff
    buffer_load_dwordx4 v{E1}, {WSR}, s94 offen sc1 lds
    s_mov_b64 exec, -1
    """)
    if Cfg.st:
        p(f'''
        v_writelane_b32 v{vST}, s{sQ}, 22
        v_writelane_b32 v{vST}, s{sSLOW}, 23
        s_lshl_b32 s80, s2, 3
        s_add_u32 s80, s80, s{sW}
        s_lshl_b32 s80, s80, 8
        s_add_u32 s80, s80, {WS_OVF}
        v_lshl_add_u32 v{vT0}, v1, 2, s80
        buffer_store_dword v{vST}, v{vT0}, {WSR}, 0 offen
        ''')
    p('s_waitcnt vmcnt(0) lgkmcnt(0)\ns_barrier')
    if Cfg.st:
        p('s_memtime s[82:83]\ns_waitcnt lgkmcnt(0)')
    if Cfg.wb:
        p(f's_cmp_lg_u32 s{sW}, 7\ns_cbranch_scc1 L_nowb\ns_cmp_ge_u32 s2, {Cfg.wb}\ns_cbranch_scc1 L_nowb\nbuffer_wbl2 sc1')
        p.forget()
        p.raw('L_nowb:')
    OPT['outf'] = Cfg.outf
    p(f's_cmp_ge_u32 s{sW}, 4\ns_cbranch_scc1 L_tf_two')
    emit_tf(p, 3, sOUT)
    p('s_branch L_tf_fin')
    emit_late(p)
    p.label('L_tf_two')
    p.forget()
    emit_tf(p, 2, sOUT)
    p.label('L_tf_fin')
    if Cfg.st:
        p(f'''
        s_memtime s[84:85]
        s_memrealtime s[86:87]
        s_waitcnt lgkmcnt(0)
        v_mov_b32 v2, s80
        v_mov_b32 v4, s82
        v_mov_b32 v5, s84
        v_mov_b32 v6, s86
        s_mov_b64 exec, 1
        buffer_store_dwordx2 v[4:5], v2, {WSR}, 0 offen offset:248
        buffer_store_dword v6, v2, {WSR}, 0 offen offset:80
        ''')


def gen(st=False, **kw):
    Cfg.st = st
    for k, v in kw.items():
        setattr(Cfg, k, v)
    STAMPS.clear()
    PRIO.clear()
    PRIO.update({(2, 1): 1})
    OPT.update(pk3=0, pk5=1, bw=1)
    p = Prog()
    p.raw('; @launch grid=(256,1,1) block=(512,1,1) lds=163840')
    p.raw('.amdgcn_target "amdgcn-amd-amdhsa--gfx950"\n.text')
    p.kstart(KN)
    p.junk = {('v', 2), ('v', 3)}
    emit_prologue(p)
    emit_g1(p)
    emit_b2(p)
    emit_hops(p)
    p.junk = set()
    emit_handoff(p)
    p.label('L_end')
    p('s_endpgm')
    p.raw('L_code_end:')
    p.raw('.section .rodata,"a"\n.p2align 6')
    p.kdesc(KN, vgpr=256)
    if st:
        json.dump(STAMPS, open(kw.get('names', 'stamps.json'), 'w'))
    print('nops', p.nnop, 'lines', len(p.L))
    return p.text()


if __name__ == '__main__':
    import copy
    base = {k: v for k, v in vars(Cfg).items() if not k.startswith('__')}

    def out(name, st, **kw):
        for k, v in base.items():
            setattr(Cfg, k, v)
        open(name, 'w').write(gen(st, names=name + '.json', **kw))
    if len(sys.argv) > 1:
        for spec in sys.argv[1:]:
            name, _, rest = spec.partition(':')
            kw = dict((x.split('=')[0], eval(x.split('=')[1])) for x in rest.split(';') if x)
            kw.setdefault('hopst', ('bar2',))
            out(name, True, **kw)
    else:
        out('k_st.s', True)
        out('k_st1.s', True, hopst=('bar2',))
        out('k_slow8.s', False, force_slow=8)
        out('k.s', False)
        out('k_wb.s', False, wb=8)
        out('k_sc1.s', False, outf='sc1')
        out('k_nt.s', False, outf='nt')
        out('k_wbsc1.s', False, wb=8, outf='sc1')
```

```python
import sys, json
from prog import *
from parts_tf import *

F_HOP = 0x0000
F_TOK = 0xC0000
F_G0 = 0x80000
F_B2 = 0x20000
WS_D2 = WS_D + 0x200000
WS_X7 = WS_TOK + 8 * TOK_PL
WS_TAG = 0x3ff80
PAD = 0xFFFC3FFF

TBL = 81920
CNT1, BUCK, IMG, PSUM = 10496, 12288, 20480, 72192
TT, NN, OO, UF, CC, LIST, SEG = 35840, 37632, 38528, 39296, 39424, 43008, 50176
DUMMY = 10239
Z0, Z1, Z2 = 56, 60, 64

sWS, sSRC, sDST, sX_, sDIS, sDBG, sOUT = 4, 8, 12, 16, 20, 24, 28
sPA, sPB, sPR = 32, 36, 24
sW, sXC, sR, sJ, sSL, sU, sSLOW, sQ, sK, sGO, sTO, sFA, sFB, sSPIN = 44, 45, 46, 47, 48, 49, 50, 51, 52, 53, 54, 55, 56, 57
sTAG = 43
sKA = 88
sFC = 42
sBU = 76
sTASK = 41
sNEG = 58
sMK = 60
sLA, sLB = 100, 101

D0, D1, D2 = 4, 8, 12
GA, GB, HA, HB = 16, 20, 24, 28
vD0, vD1, vD2 = 30, 31, 32
vGA, vGB, vDA, vDB, vFP, vFO, vG0, vT0, vT1, vT2, vT3 = 33, 34, 35, 36, 37, 38, 39, 40, 41, 42, 43
vFV, vNON = 22, 23
vPL = 94
vBETA, vUB = 44, 45
vTP, vTF = 44, 45
XA, XB, XD = 100, 104, 108
sOFF = 80
vBL, vK0, vK1 = 96, 97, 98
vOWN = 3
vP2 = 92
vST = 99
PS = 88
ADDR = lambda b, q: 100 + 10 * b + q
DATA = lambda b, q: 200 + 20 * (b & 1) + 2 * q
SEL = 240
SPIN_MAX = 1 << 22
WSR = f's[{sWS}:{sWS + 3}]'


class Cfg:
    st = False
    prio_until = 5
    force_slow = 0
    dump_tbl = 0
    pollb_at = 3
    pollc_at = 4
    wb = 0
    outf = 'sc1'
    dbgt = 0
    late = None
    lat = 0
    c_first = 1
    sameplane = 0
    tokf = 'sc1'
    pre_pairs = 2
    gnap = 4
    coop = 1
    fill_first = 0
    hnap = 0
    pa_pre = 0
    pa_early = 0
    probe = 0
    pnap = 4
    predelay = 0
    wsoff = 0
    tlb = 0
    nostage = 0
    notok = 0
    junk_at = 7
    dbg = 0
    x7_at = 10
    lag = 3
    nap = 4
    tpoll_at = 0
    gflag = ''
    early_a = 0
    hopst = ('gath', 'bar1', 'pollA', 'pollB', 'bar2')


def srd(p, d, lo, size):
    p(f's_mov_b32 s{d}, s{lo}\ns_mov_b32 s{d + 1}, s{lo + 1}\ns_mov_b32 s{d + 2}, {size}\ns_mov_b32 s{d + 3}, 0x20000')


class Uniq:
    n = 0


def lbl(x):
    Uniq.n += 1
    return f'L_{x}_{Uniq.n}'


LATE = []


def xstore(p, ins):
    a, b = lbl('xs'), lbl('xe')
    p(f's_cmp_lg_u32 s{sSLOW}, 0\ns_cbranch_scc1 {a}')
    p.opt_begin()
    for i in ins:
        p(i + (' ' + Cfg.gflag if i.startswith('buffer_store') else ''))
    p.opt_end(b)
    LATE.append((a, ['s_nop 4'] + [i + (' sc1' if i.startswith('buffer_store') else '') for i in ins] + ['s_nop 1'], b))


def emit_late(p):
    for a, ins, b in LATE:
        p.raw(a + ':')
        for i in ins:
            p.raw(i)
        p.raw(f'    s_branch {b}')
    LATE.clear()


def poll_load(vaddr, res, so='0'):
    return f'buffer_load_dwordx2 v[{res}:{res + 1}], v{vaddr}, {WSR}, {so} offen sc1'


def poll(p, vaddr, ex, need, first_issued=False, res=None, bound='64', nap=0, so='0'):
    res = vPL if res is None else res
    a, b = lbl('pl'), lbl('pd')
    setex = {32: 's_mov_b32 exec_hi, 0', 40: 's_mov_b32 exec_hi, 0xff'}.get(ex, f's_mov_b64 exec, {ex}')
    cond = [f'v_lshl_add_u64 v[{vT0}:{vT1}], v[{res}:{res + 1}], 0, s[{sNEG}:{sNEG + 1}]',
            f'v_cmp_le_u64 vcc, {bound}, v[{vT0}:{vT1}]']
    body = [poll_load(vaddr, res, so),
            f's_add_u32 s{sSPIN}, s{sSPIN}, 1',
            f's_cmp_gt_u32 s{sSPIN}, {SPIN_MAX}',
            's_cbranch_scc1 L_end',
            's_waitcnt vmcnt(0)'] + cond + [f's_cbranch_vccnz {a}']
    if nap:
        c_ = lbl('pn')
        body = body[:-1] + [f's_cbranch_vccz {c_}', f's_sleep {nap}', f's_branch {a}', c_ + ':']
    p(f's_sub_u32 s{sNEG}, 0, {need}')
    p(setex)
    if first_issued:
        for c in cond:
            p(c)
        p(f's_cbranch_vccnz {a}')
        p.raw(b + ':')
        LATE.append((a, body, b))
    else:
        p.label(a)
        for c in body:
            p(c)
    p('s_mov_b64 exec, -1')


def flag_store(vaddr, so='0'):
    return f'buffer_store_dwordx2 v[{vFV}:{vNON}], v{vaddr}, {WSR}, {so} offen'


def finish(D, dis, H, G):
    o = [f'v_mul_f32 v{D + i}, v{D + i}, v{dis}' for i in range(4)]
    o += [cvt(H, D), cvt(H + 1, D + 2)]
    return o + scale_g(D, dis, H, G)


def scale_g(D, dis, H, G):
    o = [f'v_lshlrev_b32 v{D}, 16, v{H}', f'v_and_b32 v{D + 1}, 0xffff0000, v{H}',
         f'v_lshlrev_b32 v{D + 2}, 16, v{H + 1}', f'v_and_b32 v{D + 3}, 0xffff0000, v{H + 1}']
    o += [f'v_mul_f32 v{D + i}, v{D + i}, v{dis}' for i in range(4)]
    o += [cvt(G, D), cvt(G + 1, D + 2)]
    return o


STAMPS = []


def stamp(p, name, hop=False):
    if not Cfg.st:
        return
    if hop and name not in Cfg.hopst:
        return
    if hop:
        i = 24 + sum(1 for n in STAMPS if n.startswith('h:')) * 8
        STAMPS.append('h:' + name)
        p(f's_memtime s[90:91]\ns_add_u32 m0, s{sK}, {i - 1}\ns_waitcnt lgkmcnt(0)\nv_writelane_b32 v{vST}, s90, m0')
    else:
        i = sum(1 for n in STAMPS if not n.startswith('h:'))
        STAMPS.append(name)
        p(f's_memtime s[90:91]\ns_waitcnt lgkmcnt(0)\nv_writelane_b32 v{vST}, s90, {i}')


def emit_desc(p):
    p(f'''
    s_cmp_ge_u32 s{sTASK}, 8
    s_cselect_b32 s{sPA}, s64, s60
    s_cselect_b32 s{sPA + 1}, s65, s61
    s_cselect_b32 s{sPB}, s66, s62
    s_cselect_b32 s{sPB + 1}, s67, s63
    s_mov_b32 s{sPA + 2}, 32768
    s_mov_b32 s{sPA + 3}, 0x20000
    s_mov_b32 s{sPB + 2}, 32768
    s_mov_b32 s{sPB + 3}, 0x20000
    ''')
    srd(p, sPR, 68, 256)


PV, PRA, PBF, PRT, PD, PI, PR = 80, 46, 62, 62, 200, 78, 84


def emit_prep_blocks(p):
    va, t0, t1 = PV, PV + 1, PV + 2
    PB = PSUM + 512
    p.label('L_prepA')
    p.forget()
    emit_desc(p)
    emit_lane_consts_prep(p, 1, va, t0)
    p(f'''
    s_cmp_eq_u32 s{sTASK}, 16
    s_cbranch_scc1 L_prepA_lin
    s_lshr_b32 s72, s{sW}, 1
    s_lshl_b32 s75, s72, 6
    s_lshl_b32 s72, s72, 13
    s_and_b32 s73, s{sW}, 1
    s_lshl_b32 s74, s73, 3
    s_add_u32 s75, s75, s74
    s_lshl_b32 s73, s73, 10
    s_add_u32 s72, s72, s73
    s_bfe_u32 s73, s{sTASK}, 0x20001
    s_lshl_b32 s73, s73, 5
    s_and_b32 s74, s{sTASK}, 1
    s_lshl_b32 s74, s74, 2
    s_add_u32 s73, s73, s74
    s_lshl_b32 s74, s73, 8
    s_add_u32 s74, s74, s75
    s_lshl_b32 s73, s73, 1
    s_add_u32 s73, s73, s72
    s_cmp_ge_u32 s{sTASK}, 8
    s_cselect_b32 s73, s73, s74
    buffer_load_dwordx2 v[{PBF}:{PBF + 1}], v{va}, s[{sPB}:{sPB + 3}], s73 offen
    ''')
    for e4 in range(4):
        p(f'buffer_load_dwordx4 v[{PRA + 4 * e4}:{PRA + 4 * e4 + 3}], v{va}, s[{sPA}:{sPA + 3}], s72 offen offset:{64 * e4}')
    p('s_branch L_hop1')
    p.label('L_prepA_lin')
    p(f'v_and_b32 v{t0}, 48, v1')
    for s4 in range(4):
        p(f'buffer_load_dwordx4 v[{PRA + 4 * s4}:{PRA + 4 * s4 + 3}], v{t0}, s[{sPR}:{sPR + 3}], 0 offen offset:{64 * s4}')
    p('s_branch L_hop1')
    p.label('L_prepB')
    p.forget()
    p(f's_cmp_eq_u32 s{sTASK}, 16\ns_cbranch_scc1 L_prepB_lin\ns_cmp_lt_u32 s{sTASK}, 8\ns_cbranch_scc1 L_prepB_m')
    emit_i16(p, 1, PI, t0, t1)
    p(mf16(PD, PBF, PI, None))
    p(cvt(PBF, PD))
    p(cvt(PBF + 1, PD + 2))
    p.label('L_prepB_m')
    p(f'''
    s_lshr_b32 s72, s{sW}, 1
    s_lshl_b32 s72, s72, 10
    s_and_b32 s73, s{sW}, 1
    s_lshl_b32 s73, s73, 3
    s_add_u32 s72, s72, s73
    s_add_u32 s72, s72, {PB}
    v_lshl_add_u32 v{va}, v1, 4, s72
    ds_write_b64 v{va}, v[{PBF}:{PBF + 1}]
    s_branch L_prepB_back
    ''')
    p.label('L_prepB2')
    p.forget()
    p(f'v_lshlrev_b32 v{va}, 4, v1\nv_add_u32 v{va}, {PB}, v{va}')
    for e4 in range(4):
        p(f'ds_read_b128 v[{PBF + 4 * e4}:{PBF + 4 * e4 + 3}], v{va} offset:{1024 * e4}')
    for e4 in range(4):
        p(mf32(PR, PRA + 4 * e4, PBF + 4 * e4, None if e4 == 0 else PR))
    p(f'''
    v_lshlrev_b32 v{va}, 5, v1
    s_lshl_b32 s72, s{sW}, 2
    s_add_u32 s72, s72, {PSUM}
    v_add_u32 v{va}, s72, v{va}
    v_add_f32 v{t0}, v{PR}, v{PR + 1}
    v_add_f32 v{t1}, v{PR + 2}, v{PR + 3}
    v_add_f32 v{t0}, v{t0}, v{t1}
    v_mov_b32 v{t1}, v{t0}
    v_permlane16_swap_b32 v{t0}, v{t1}
    v_add_f32 v{t0}, v{t0}, v{t1}
    v_mov_b32 v{t1}, v{t0}
    v_permlane32_swap_b32 v{t0}, v{t1}
    v_add_f32 v{t0}, v{t0}, v{t1}
    s_mov_b64 exec, 0xffff
    ds_write_b32 v{va}, v{t0}
    s_mov_b64 exec, -1
    s_branch L_prepB_back
    ''')
    p.label('L_prepB_lin')
    F, O = PRA, PBF
    p(f'''
    s_cmp_lg_u32 s{sW}, 0
    s_cbranch_scc1 L_prepB_back
    v_and_b32 v{t1}, 3, v1
    v_cmp_eq_u32 s[72:73], 1, v{t1}
    v_cmp_eq_u32 vcc, 0, v{t1}
    v_mov_b32 v{t1}, 0x{ONE2:x}
    ''')
    for i in range(4):
        p(f'v_mov_b32 v{O + i}, 0x{ONE2:x}')
    p(f'v_cndmask_b32 v{t1}, 0, v{t1}, vcc')
    for i in range(16):
        p(f'v_cndmask_b32 v{F + i}, v{t1}, v{F + i}, s[72:73]')
    for s4 in range(4):
        p(mf32(PD, F + 4 * s4, O, None if s4 == 0 else PD))
    p(f'v_lshlrev_b32 v{t0}, 4, v1\ns_mov_b32 s74, {WS_WF + 65536}\ns_waitcnt vmcnt(0)')
    for s4 in range(4):
        p(f'buffer_store_dwordx4 v[{F + 4 * s4}:{F + 4 * s4 + 3}], v{t0}, {WSR}, s74 offen offset:{1024 * s4} sc1')
    p(f'''
    v_lshlrev_b32 v{t0}, 2, v1
    s_mov_b32 s74, {WS_WF + 69632}
    buffer_store_dword v{PD + 1}, v{t0}, {WSR}, s74 offen sc1
    s_branch L_prepS
    ''')
    p.label('L_prepS')
    p(f'''
    s_waitcnt lgkmcnt(0)
    s_branch L_bar2
    ''')
    p.label('L_prepC')
    p.forget()
    p(f'''
    v_and_b32 v{va}, 15, v1
    v_lshlrev_b32 v{va}, 5, v{va}
    v_add_u32 v{va}, {PSUM}, v{va}
    ds_read_b128 v[{PRA}:{PRA + 3}], v{va}
    ds_read_b128 v[{PRA + 4}:{PRA + 7}], v{va} offset:16
    s_lshr_b32 s72, s{sW}, 1
    s_lshl_b32 s72, s72, 10
    s_and_b32 s73, s{sW}, 1
    s_lshl_b32 s73, s73, 3
    s_add_u32 s72, s72, s73
    s_add_u32 s72, s72, {PB}
    v_lshl_add_u32 v{va}, v1, 4, s72
    v_add_f32 v{t0}, v{PRA}, v{PRA + 1}
    v_add_f32 v{t1}, v{PRA + 2}, v{PRA + 3}
    v_add_f32 v{t0}, v{t0}, v{PRA + 4}
    v_add_f32 v{t1}, v{t1}, v{PRA + 5}
    v_add_f32 v{t0}, v{t0}, v{PRA + 6}
    v_add_f32 v{t1}, v{t1}, v{PRA + 7}
    v_add_f32 v{t0}, v{t0}, v{t1}
    v_mul_f32 v{t0}, 0x3c000000, v{t0}
    ''')
    for i in range(4):
        p(f'v_sub_f32 v{PR + i}, v{PR + i}, v{t0}')
    p(cvt(PBF, PR))
    p(cvt(PBF + 1, PR + 2))
    p(f'ds_write_b64 v{va}, v[{PBF}:{PBF + 1}]\ns_branch L_prepB_back')
    p.label('L_prepD')
    p.forget()
    p(f'''
    s_cmp_ge_u32 s{sW}, 4
    s_cbranch_scc1 L_prepDr
    s_lshl_b32 s72, s{sW}, 10
    s_add_u32 s73, s72, {PB}
    v_lshl_add_u32 v{va}, v1, 4, s73
    ds_read_b128 v[{PBF}:{PBF + 3}], v{va}
    s_lshl_b32 s73, s{sTASK}, 12
    s_add_u32 s72, s72, s73
    s_add_u32 s72, s72, {WS_WF}
    v_lshlrev_b32 v{va}, 4, v1
    buffer_store_dwordx4 v[{PBF}:{PBF + 3}], v{va}, {WSR}, s72 offen sc1
    s_branch L_prepDr
    ''')
    p.forget()


def fill_list():
    o = [f's_mov_b32 m0, s{sLA}']
    o += [f'buffer_load_dwordx4 v{vDA}, {WSR}, s{sGO} offen offset:{1024 * j} sc1 lds' for j in range(4)]
    o += [f's_add_u32 m0, s{sLA}, 4096\ns_add_u32 s92, s{sGO}, 4096']
    o += [f'buffer_load_dwordx4 v{vDA}, {WSR}, s92 offen offset:{1024 * j} sc1 lds' for j in range(4)]
    o += [f's_mul_i32 s92, s{sSL}, 81920\ns_lshl_b32 s93, s{sW}, 11\ns_add_u32 m0, s93, {TBL + 65536}\n'
          f's_add_u32 s92, s92, s93\ns_add_u32 s92, s92, {WS_G + 65536}\nv_lshlrev_b32 v{vT3}, 4, v1']
    o += [f'buffer_load_dwordx4 v{vT3}, {WSR}, s92 offen offset:{1024 * j} sc1 lds' for j in range(2)]
    return o


def emit_prologue(p):
    p('s_cmp_ge_u32 s2, 256\ns_cbranch_scc1 L_end')
    if Cfg.st:
        p(f's_memrealtime s[90:91]\ns_waitcnt lgkmcnt(0)\nv_writelane_b32 v{vST}, s90, 21')
    stamp(p, 'entry')
    if Cfg.dbgt:
        p('s_memrealtime s[90:91]')
    p(f"""
    s_load_dwordx8 s[32:39], s[0:1], 0
    s_load_dwordx4 s[92:95], s[0:1], 80
    s_load_dwordx8 s[60:67], s[0:1], 32
    s_load_dwordx4 s[68:71], s[0:1], 64
    v_readfirstlane_b32 s{sW}, v0
    v_and_b32 v1, 63, v0
    s_and_b32 s{sXC}, s2, 7
    s_lshr_b32 s{sR}, s2, 3
    s_lshr_b32 s{sW}, s{sW}, 6
    """)
    p('s_getpc_b64 s[96:97]')
    p.raw('L_pc:')
    p(f"""
    s_lshl_b32 s98, s{sR}, 3
    s_add_u32 s98, s98, s{sW}
    s_lshl_b32 s98, s98, 7
    v_lshl_add_u32 v{vT0}, v1, 1, s98
    v_min_u32 v{vT0}, L_code_end-L_pc-4, v{vT0}
    v_and_b32 v{vT0}, -4, v{vT0}
    global_load_dword v3, v{vT0}, s[96:97]
    v_lshlrev_b32 v{vT3}, 3, v0
    s_mul_i32 s96, s2, 2560
    v_mov_b32 v64, 0x{PAD:x}
    v_mov_b32 v65, v64
    v_mov_b32 v66, v64
    v_mov_b32 v67, v64
    v_lshlrev_b32 v70, 4, v0
    v_lshlrev_b32 v71, 2, v0
    v_lshlrev_b32 v72, 7, v1
    v_add_u32 v72, {BUCK}, v72
    v_lshlrev_b32 v73, 2, v1
    s_waitcnt lgkmcnt(0)
    {f"s_add_u32 s94, s94, {Cfg.wsoff}" if Cfg.wsoff else ""}
    {"s_addc_u32 s95, s95, 0" if Cfg.wsoff else ""}
    s_load_dword s78, s[94:95], {WS_TAG}
    """)
    srd(p, sDST, 36, 640000)
    srd(p, sSRC, 34, 640000)
    p(f"""
    buffer_load_dwordx2 v[56:57], v{vT3}, s[{sDST}:{sDST + 3}], s96 offen
    buffer_load_dwordx2 v[58:59], v{vT3}, s[{sSRC}:{sSRC + 3}], s96 offen
    ds_write_b128 v70, v[64:67] offset:{BUCK}
    ds_write_b32 v73, v72 offset:{CNT1}
    """)
    stamp(p, 'srd')
    srd(p, sWS, 94, 0x10000000 - Cfg.wsoff)
    srd(p, sX_, 32, 2560000)
    srd(p, sDIS, 38, 20000)
    srd(p, sOUT, 70, 2560000)
    p(f"""
    s_and_b32 s{sJ}, s{sR}, 7
    s_lshr_b32 s{sSL}, s{sR}, 3
    s_lshl_b32 s96, s{sXC}, 2
    s_add_u32 s{sSL}, s{sSL}, s96
    s_lshl_b32 s{sU}, s{sW}, 3
    s_add_u32 s{sU}, s{sU}, s{sJ}
    s_mov_b32 s{sSPIN}, 0
    v_lshrrev_b32 v{vT1}, 3, v1
    v_and_b32 v{vT2}, 7, v1
    v_cmp_eq_u32 s[74:75], 7, v{vT2}
    v_lshlrev_b32 v{vT2}, 4, v{vT2}
    v_lshl_add_u32 v75, v{vT1}, 15, v{vT2}
    s_lshl_b32 s72, s{sW}, 18
    s_lshl_b32 s97, s2, 7
    s_add_u32 s72, s72, s97
    s_add_u32 s72, s72, {WS_D}
    """)
    p(f"""
    v_and_b32 v{vT0}, 7, v1
    v_lshrrev_b32 v{vT1}, 3, v1
    v_lshlrev_b32 v{vT2}, 8, v{vT0}
    v_lshl_add_u32 v{vT2}, v{vT1}, 4, v{vT2}
    s_lshl_b32 s96, s2, 13
    s_lshr_b32 s97, s{sW}, 1
    s_lshl_b32 s92, s97, 11
    s_and_b32 s94, s{sW}, 1
    s_lshl_b32 s95, s94, 7
    s_add_u32 s92, s92, s95
    s_add_u32 s92, s92, s96
    s_mov_b32 s80, s92
    s_lshr_b32 s96, s96, 2
    s_add_u32 s96, s96, s95
    s_add_u32 s96, s96, {8192 * 256}
    s_mov_b32 s81, s96
    v_mov_b32 v112, v{vT2}
    v_mul_u32_u24 v{vT1}, 640, v{vT1}
    v_lshl_add_u32 v{vT1}, v{vT0}, 3, v{vT1}
    s_mul_i32 s94, s94, 5120
    v_add_u32 v109, s94, v{vT1}
    s_lshl_b32 s97, s97, 6
    v_add_u32 v108, s97, v109
    v_lshlrev_b32 v{vT0}, 4, v1
    v_and_b32 v{vT0}, 16, v{vT0}
    s_waitcnt lgkmcnt(0)
    s_barrier
    s_add_u32 s78, s78, 0x100
    s_lshr_b32 s79, s78, 4
    s_not_b32 s79, s79
    s_and_b32 s79, s79, 15
    s_and_b32 s78, s78, -16
    s_or_b32 s{sTAG}, s78, s79
    s_not_b32 s{sNEG + 1}, s{sTAG}
    v_mov_b32 v{vNON}, s{sTAG}
    s_mov_b32 s79, 0x3c000
    v_lshrrev_b32 v{vT0}, v{vT0}, v{vNON}
    """)
    for r in range(4):
        p(f'v_lshlrev_b32 v{PS + r}, {14 - 4 * r}, v{vT0}\nv_and_b32 v{PS + r}, s79, v{PS + r}')
    stamp(p, 'init issued')


def emit_g1(p):
    p(f"""
    s_waitcnt vmcnt(0)
    s_and_b32 s82, s{sR}, 3
    s_cbranch_scc0 L_nox2
    buffer_load_dwordx4 v[100:103], v112, s[{sX_}:{sX_ + 3}], s80 offen
    buffer_load_dwordx4 v[104:107], v112, s[{sX_}:{sX_ + 3}], s81 offen
    s_cmp_lg_u32 s82, 1
    s_cbranch_scc1 L_nox2
    s_sub_u32 s80, s80, 65536
    s_sub_u32 s81, s81, 16384
    buffer_load_dwordx4 v[116:119], v112, s[{sX_}:{sX_ + 3}], s80 offen
    buffer_load_dwordx4 v[120:123], v112, s[{sX_}:{sX_ + 3}], s81 offen
    """)
    p.vm.pop()
    p.vm.pop()
    p.raw('L_nox2:')
    p(f"""
    s_cmp_ge_u32 s{sW}, 5
    s_cbranch_scc1 L_g1_skip
    s_cmp_ge_u32 s2, 250
    s_cbranch_scc1 L_g1_skip
    s_movk_i32 s96, 0xfc00
    v_mov_b32 v{vT0}, 4
    """)
    vm = list(p.vm)
    for i in range(2):
        p(f"""
        v_lshrrev_b32 v{vT1}, 5, v{56 + i}
        v_lshl_or_b32 v{58 + i}, v{56 + i}, 18, v{58 + i}
        v_and_b32 v{vT2}, -4, v{vT1}
        v_lshl_add_u32 v{vT1}, v{vT1}, 2, s96
        v_min_u32 v{vT1}, v{vT1}, v{vT2}
        ds_add_rtn_u32 v{60 + i}, v{vT1}, v{vT0} offset:{CNT1}
        """)
    p('ds_write_b32 v60, v58\nds_write_b32 v61, v59\ns_waitcnt lgkmcnt(0)')
    p.vm = vm
    p.label('L_g1_skip')
    stamp(p, 'g1')
    p(f"""
    s_barrier
    ds_read_b32 v74, v73 offset:{CNT1}
    ds_read_b128 v[64:67], v70 offset:{BUCK}
    s_sub_u32 s{sTASK}, s2, 8
    s_cmp_eq_u32 s{sTASK}, 17
    s_cselect_b32 s{sTASK}, 99, s{sTASK}
    s_lshr_b32 s{sBU}, s{sR}, 2
    s_lshl_b32 s{sBU}, s{sBU}, 3
    s_add_u32 s{sBU}, s{sBU}, s{sXC}
    v_sub_u32 v74, v74, v72
    v_cmp_lt_u32 vcc, 0x7c, v74
    s_cmp_lg_u64 vcc, 0
    s_cselect_b32 s97, 1, 0
    s_sub_u32 s97, 0x{PAD:x}, s97
    v_mov_b32 v74, s97
    v_xor_b32 v64, v64, v{PS}
    v_cndmask_b32 v67, v67, v74, s[74:75]
    v_xor_b32 v65, v65, v{PS + 1}
    v_xor_b32 v66, v66, v{PS + 2}
    v_xor_b32 v67, v67, v{PS + 3}
    buffer_store_dwordx4 v[64:67], v75, {WSR}, s72 offen sc1
    """)
    stamp(p, 'b1 out')
    p(f"""
    s_getreg_b32 s99, hwreg(HW_REG_XCC_ID, 0, 4)
    s_add_u32 s96, s99, 1
    v_mov_b32 v{vFV}, s96
    s_lshl_b32 s96, s2, 7
    s_add_u32 s96, s96, {F_G0}
    v_lshl_add_u32 v{vUB}, v1, 15, s96
    s_cmp_eq_u32 s82, 0
    s_cbranch_scc1 L_builder
    """)
    emit_common(p)
    Cfg.vm_builder = list(p.vm)
    emit_imgpat(p)
    xw = lambda r, o: f"""
    ds_write_b64 v108, v[{r}:{r + 1}] offset:{o}
    ds_write_b64 v108, v[{r + 2}:{r + 3}] offset:{o + 320}
    ds_write_b64 v109, v[{r + 4}:{r + 5}] offset:{o + 256}
    ds_write_b64 v109, v[{r + 6}:{r + 7}] offset:{o + 576}
    """
    p(xw(100, 0))
    vm_ = list(p.vm)
    p('s_cmp_lg_u32 s82, 1\ns_cbranch_scc1 L_nox3\ns_waitcnt vmcnt(6)')
    p(xw(116, 40960))
    p.vm = vm_
    p.label('L_nox3')
    stamp(p, 'x in')
    p('s_waitcnt lgkmcnt(0)\ns_barrier')

    def rows(o, d0, k0, k1, t):
        p(f"""
        ds_read_b128 v[100:103], v70 offset:{o}
        ds_read_b128 v[104:107], v70 offset:{o + 8192}
        v_and_b32 v113, 0xffff0000, v{d0}
        v_lshlrev_b32 v112, 16, v{d0}
        v_and_b32 v115, 0xffff0000, v{d0 + 1}
        v_lshlrev_b32 v114, 16, v{d0 + 1}
        """)
        for x in scale_g(D0, 112, 100, GA) + scale_g(D1, 113, 102, GA + 2):
            p(x)
        p(f'buffer_store_dwordx4 v[{GA}:{GA + 3}], v{k0}, {WSR}, s{sGO} offen sc1')
        p(f's_cmp_ge_u32 s{sW}, 2\ns_cbranch_scc1 L_g0b{t}')
        for x in scale_g(D0, 114, 104, HA) + scale_g(D1, 115, 106, HA + 2):
            p(x)
        p(f'buffer_store_dwordx4 v[{HA}:{HA + 3}], v{k1}, {WSR}, s{sGO} offen sc1')
        p.label(f'L_g0b{t}')
        p('s_waitcnt lgkmcnt(0)')
    rows(0, 110, vK0, vK1, 'a')
    p('s_cmp_lg_u32 s82, 1\ns_cbranch_scc1 L_nox4')
    rows(40960, 124, 126, 127, 'b')
    p.label('L_nox4')
    emit_g0_flag(p, 0, 'a')
    stamp(p, 'g0 flag')
    p('s_branch L_fill0')


def emit_common(p, builder=False):
    p(f"""
    s_lshl_b32 s96, s2, 8
    s_lshr_b32 s97, s96, 2
    s_add_u32 s97, s97, {65536 - 256}
    s_mov_b32 s92, 81920
    s_lshl_b32 s94, s{sW}, 6
    """)
    for v, add, dd, ka in ((vK0, 0, 110, sKA), (vK1, 512, 111, 78)):
        p(f"""
        v_add_u32 v{vT0}, s94, v1
        v_add_u32 v{vT0}, {add}, v{vT0}
        v_mul_u32_u24 v{vT1}, 3277, v{vT0}
        v_lshrrev_b32 v{vT1}, 16, v{vT1}
        v_mul_u32_u24 v{vT2}, 20, v{vT1}
        v_sub_u32 v{vT2}, v{vT0}, v{vT2}
        v_mov_b32 v{vT0}, s97
        v_mov_b32 v{vT3}, s96
        v_cmp_gt_u32 vcc, 16, v{vT2}
        v_mul_lo_u32 v{vT1}, v{vT1}, s92
        v_cndmask_b32 v{vT0}, v{vT0}, v{vT3}, vcc
        v_lshl_add_u32 v{vT0}, v{vT2}, 4, v{vT0}
        v_add_u32 v{v}, v{vT1}, v{vT0}
        """)
        if not builder:
            p(f"""
            v_lshrrev_b32 v{vT0}, 2, v{vT0}
            buffer_load_dword v{dd}, v{vT0}, s[{sDIS}:{sDIS + 3}], 0 offen
            v_mov_b32 v{vT1}, 512
            v_mov_b32 v{vT3}, 0x800
            v_cndmask_b32 v{vT1}, v{vT1}, v{vT3}, vcc
            v_sub_u32 v{dd + 16}, v{v}, v{vT1}
            v_lshrrev_b32 v{vT1}, 2, v{vT1}
            v_sub_u32 v{vT0}, v{vT0}, v{vT1}
            buffer_load_dword v{dd + 14}, v{vT0}, s[{sDIS}:{sDIS + 3}], 0 offen
            """)
    if not builder:
        p(f"""
        s_bitcmp1_b32 s{sW}, 0
        s_cselect_b32 s72, s62, s60
        s_cselect_b32 s73, s63, s61
        s_cselect_b32 s74, s66, s64
        s_cselect_b32 s75, s67, s65
        s_bitcmp1_b32 s{sW}, 1
        s_cselect_b32 s72, s74, s72
        s_cselect_b32 s73, s75, s73
        s_lshr_b32 s92, s{sR}, 2
        s_sub_u32 s92, s{sR}, s92
        s_sub_u32 s92, s92, 1
        s_lshl_b32 s92, s92, 1
        s_lshr_b32 s93, s{sW}, 2
        s_add_u32 s92, s92, s93
        s_lshl_b32 s92, s92, 10
        v_lshl_add_u32 v{vT1}, v1, 4, s92
        v_min_u32 v{vT1}, 32764, v{vT1}
        global_load_dword v3, v{vT1}, s[72:73]
        """)
    emit_offsets(p)
    emit_sel(p)
    p(f"""
    s_lshl_b32 s96, s{sW}, 5
    v_add_u32 v{vT1}, s96, v1
    s_and_b32 s96, s2, 0xc7
    s_sub_u32 s96, s96, 256
    v_lshl_add_u32 v{vT2}, v1, 3, s96
    v_and_b32 v{vT3}, 24, v{vT1}
    v_cmp_eq_u32 vcc, 0, v{vT3}
    v_or_b32 v{vT3}, 8, v{vT1}
    v_cndmask_b32 v{vT1}, v{vT1}, v{vT3}, vcc
    v_cmp_gt_u32 vcc, 32, v1
    v_cndmask_b32 v{vT1}, v{vT2}, v{vT1}, vcc
    v_lshlrev_b32 v{vG0}, 7, v{vT1}
    s_lshl_b32 s96, s{sXC}, 15
    s_add_u32 s96, s96, {F_G0}
    v_add_u32 v{vG0}, s96, v{vG0}
    """)


def emit_g0_flag(p, n, t):
    p(f"""
    s_waitcnt vmcnt({n})
    s_barrier
    s_cmp_lg_u32 s{sW}, 0
    s_cbranch_scc1 L_ng0{t}
    s_mov_b64 exec, 0xff
    {flag_store(vUB)} sc1
    s_mov_b64 exec, -1
    """)
    p.vm.pop()
    p.raw(f'L_ng0{t}:')


def emit_offsets(p):
    p(f"""
    v_lshrrev_b32 v{vT1}, 4, v1
    v_and_b32 v{vT2}, 15, v1
    v_lshl_add_u32 v{vT1}, v{vT1}, 3, v{vT2}
    v_mov_b32 v{vT3}, 0x2000000
    v_cmp_gt_u32 vcc, 8, v{vT2}
    v_cndmask_b32 v{vBL}, v{vT3}, v{vT1}, vcc
    s_mul_i32 s96, s{sSL}, 81920
    s_lshl_b32 s97, s{sU}, 10
    s_add_u32 s97, s97, s96
    v_lshl_add_u32 v{vGA}, v1, 4, s97
    s_lshl_b32 s97, s{sU}, 8
    s_add_u32 s97, s97, s96
    s_add_u32 s97, s97, 65536
    v_lshl_add_u32 v{vGB}, v{vBL}, 3, s97
    s_mov_b32 s{sGO}, {WS_G}
    s_mov_b32 s{sTO}, {WS_TOK}
    s_lshl_b32 s97, s{sW}, 13
    s_add_u32 s{sLA}, s97, {TBL}
    s_add_u32 s97, s97, s96
    v_lshl_add_u32 v{vDA}, v1, 4, s97
    s_lshl_b32 s97, s{sW}, 12
    s_add_u32 s{sLB}, s97, {TBL + 65536}
    s_add_u32 s97, s97, s96
    s_add_u32 s97, s97, 65536
    v_lshl_add_u32 v{vDB}, v1, 4, s97
    s_lshl_b32 s96, s{sSL}, 3
    s_add_u32 s96, s96, s{sW}
    s_lshl_b32 s96, s96, 7
    v_lshl_add_u32 v{vFP}, v1, 3, s96
    s_lshl_b32 s97, s{sJ}, 3
    s_add_u32 s96, s96, s97
    v_mov_b32 v{vFO}, s96
    """)


def emit_sel(p):
    p(f"""
    v_and_b32 v80, 15, v1
    v_lshrrev_b32 v81, 4, v1
    v_and_b32 v82, 3, v80
    v_lshrrev_b32 v80, 2, v80
    v_mov_b32 v83, 0x{ONE2:x}
    v_cmp_eq_u32 vcc, v81, v82
    v_cndmask_b32 v83, 0, v83, vcc
    """)
    for b in range(4):
        p(f'v_cmp_eq_u32 vcc, {b}, v80')
        for r in range(4):
            p(f'v_cndmask_b32 v{SEL + 4 * b + r}, 0, v83, vcc')


def emit_misc_loads(p):
    p(f"""
    s_lshl_b32 s96, s{sU}, 8
    v_lshlrev_b32 v{vT1}, 2, v1
    buffer_load_dword v{vD0}, v{vT1}, s[{sDIS}:{sDIS + 3}], s96 offen
    s_lshl_b32 s96, s{sU}, 6
    s_add_u32 s96, s96, 16384
    v_lshlrev_b32 v{vT1}, 1, v{vBL}
    buffer_load_ushort v{vD2}, v{vT1}, s[{sDIS}:{sDIS + 3}], s96 offen
    """)


def emit_imgpat(p):
    a0 = 82
    for r in range(4):
        p(f'v_lshlrev_b32 v{a0}, 14, v{PS + r}\nv_and_b32 v{a0}, 0xc0000000, v{a0}\nv_and_b32 v{PS + r}, 0xc000, v{PS + r}\nv_or_b32 v{PS + r}, v{PS + r}, v{a0}')


def emit_init2(p):
    for i in range(4):
        p(f'v_mov_b32 v{76 + i}, 0x{DUMMY | DUMMY << 16:x}')
    p(f"""
    ds_write_b128 v70, v[76:79] offset:{IMG}
    ds_write_b128 v70, v[76:79] offset:{IMG + 7168}
    v_and_b32 v76, 31, v0
    v_mul_u32_u24 v77, 43, v76
    v_lshrrev_b32 v77, 8, v77
    v_mul_u32_u24 v77, 6, v77
    v_sub_u32 v76, v76, v77
    ds_write_b32 v71, v76 offset:{CC}
    ds_write_b32 v71, v76 offset:{CC + 768}
    v_and_b32 v76, 1, v0
    v_bfe_u32 v77, v0, 3, 2
    v_lshl_add_u32 v80, v76, 2, v77
    v_bfe_u32 v76, v0, 1, 2
    v_bfe_u32 v77, v0, 5, 2
    ; B node 128<=t<160
    v_bfe_u32 v78, v0, 2, 1
    v_add_u32 v78, 8, v78
    v_and_b32 v79, 3, v0
    v_bfe_u32 v81, v0, 3, 2
    v_cmp_gt_u32 vcc, 0x80, v0
    v_cndmask_b32 v80, v78, v80, vcc
    v_cndmask_b32 v76, v79, v76, vcc
    v_cndmask_b32 v77, v81, v77, vcc
    v_lshrrev_b32 v79, 1, v76
    v_lshl_add_u32 v79, v80, 1, v79
    v_lshlrev_b32 v79, 7, v79
    v_add_u32 v79, {CC}, v79
    v_lshl_add_u32 v76, v76, 4, v77
    v_lshlrev_b32 v76, 4, v76
    v_and_b32 v77, 1, v80
    v_lshl_add_u32 v76, v77, 3, v76
    v_lshrrev_b32 v77, 1, v80
    v_lshl_add_u32 v76, v77, 10, v76
    v_add_u32 v78, {IMG}, v76
    v_add_u32 v77, {CC + 2560 - 640 - 124}, v71
    v_cmp_gt_u32 vcc, 0xa0, v0
    v_cndmask_b32 v79, v77, v79, vcc
    v_mov_b32 v76, 0
    v_mov_b32 v77, {LIST}
    v_lshlrev_b32 v80, 3, v0
    v_cmp_gt_u32 vcc, 0xe0, v0
    s_and_saveexec_b64 s[92:93], vcc
    ds_write_b64 v80, v[78:79] offset:{TT}
    ds_write_b32 v71, v76 offset:{NN}
    ds_write_b32 v71, v76 offset:{OO - 256}
    ds_write_b64 v76, v[76:77] offset:{UF}
    s_mov_b64 exec, s[92:93]
    """)


def emit_b2(p):
    E, CN, TV, PF, OD, SH = 46, 62, 140, 112, 120, 128
    vDUM, vFOUR, vZ = 70, 71, 72
    a0, a1, a2, vONE, vFIVE, vMX = 82, 83, 85, 86, 87, 78
    MK = 60
    sRUN = 76
    SD = 'dst_sel:DWORD dst_unused:UNUSED_PAD'
    p.label('L_builder')
    p.vm = []
    p.lgkm = []
    p(f"""
    v_bfe_u32 v85, v1, 4, 2
    v_lshlrev_b32 v85, 5, v85
    v_lshlrev_b32 v84, 4, v1
    v_xor_b32 v84, v84, v85
    v_lshrrev_b32 v136, 1, v1
    v_lshlrev_b32 v136, 7, v136
    v_and_b32 v85, 1, v1
    v_lshl_add_u32 v136, v85, 4, v136
    v_bfe_u32 v85, v1, 2, 2
    v_lshl_add_u32 v136, v85, 5, v136
    s_lshl_b32 s79, s{sW}, 12
    s_add_u32 s79, s79, {SEG}
    v_add_u32 v136, s79, v136
    v_xor_b32 v137, 32, v136
    v_xor_b32 v138, 64, v136
    v_xor_b32 v139, 0x60, v136
    s_mov_b32 s77, s{sBU}
    s_lshl_b32 s98, s{sBU}, 15
    s_lshl_b32 s97, s{sW}, 12
    s_add_u32 s98, s98, s97
    s_add_u32 s98, s98, {WS_D}
    """)
    ld = ['s_mov_b32 m0, s79', 's_nop 0'] + [f'buffer_load_dwordx4 v84, {WSR}, s98 offen offset:{1024 * i} sc1 lds' for i in range(4)]
    p(f"""
    s_cmp_lg_u32 s{sW}, 7
    s_cbranch_scc1 L_ng0b
    s_mov_b64 exec, 0xff
    {flag_store(vUB)} sc1
    s_mov_b64 exec, -1
    """)
    p.vm.pop()
    p.raw('L_ng0b:')
    emit_init2(p)
    emit_common(p, True)
    p(f"""
    v_mov_b32 v{vONE}, 1
    v_mov_b32 v{vFIVE}, 5
    v_mov_b32 v{vMX}, 0
    s_lshl_b32 s96, s77, 9
    s_lshl_b32 s97, s77, 7
    s_add_u32 s97, s97, 32256
    s_movk_i32 s92, 640
    s_movk_i32 s93, 5112
    v_lshlrev_b32 v{vDUM}, 2, v1
    v_add_u32 v{vDUM}, 640, v{vDUM}
    v_mov_b32 v{vFOUR}, 4
    v_mov_b32 v{vZ}, 0
    s_waitcnt lgkmcnt(0)
    s_barrier
    """)
    if Cfg.predelay:
        p(f's_sleep {Cfg.predelay}')
    if Cfg.probe:
        p('s_mov_b32 exec_lo, 0x01010101\ns_mov_b32 exec_hi, 0x01010101')
        p.label('L_probe')
        p(f'buffer_load_dwordx4 v[{E}:{E + 3}], v84, {WSR}, s98 offen offset:3072 sc1')
        p(f's_add_u32 s{sSPIN}, s{sSPIN}, 1\ns_cmp_gt_u32 s{sSPIN}, {SPIN_MAX}\ns_cbranch_scc1 L_end')
        for i in range(4):
            p(f'v_xor_b32 v{CN + i}, v{E + i}, v{PS + i}')
        p(f"""
        v_or3_b32 v{a0}, v{CN}, v{CN + 1}, v{CN + 2}
        v_or_b32 v{a0}, v{a0}, v{CN + 3}
        v_and_b32 v{a0}, 0x3c000, v{a0}
        v_cmp_ne_u32 vcc, 0, v{a0}
        s_cbranch_vccz L_probed
        s_sleep {Cfg.pnap}
        s_branch L_probe
        """)
        p.label('L_probed')
        p('s_mov_b64 exec, -1')
    p.label('L_segagain')
    for x in ld:
        p(x)
    p(f's_add_u32 s{sSPIN}, s{sSPIN}, 1\ns_cmp_gt_u32 s{sSPIN}, {SPIN_MAX}\ns_cbranch_scc1 L_end\ns_waitcnt vmcnt(0)')
    for i in range(4):
        p(f'ds_read_b128 v[{E + 4 * i}:{E + 4 * i + 3}], v{136 + i}')
    for i in range(16):
        p(f'v_xor_b32 v{E + i}, v{E + i}, v{PS + (i & 3)}')
    p(f'v_or3_b32 v{a0}, v{E}, v{E + 1}, v{E + 2}')
    for i in range(3, 15, 2):
        p(f'v_or3_b32 v{a0}, v{a0}, v{E + i}, v{E + i + 1}')
    p(f"""
    v_or_b32 v{a0}, v{a0}, v{E + 15}
    v_and_b32 v{a0}, 0x3c000, v{a0}
    v_cmp_ne_u32 vcc, 0, v{a0}
    s_cbranch_vccnz L_segagain
    """)
    stamp(p, 'seg issued')
    m = lambda i: f's[{MK + 2 * i}:{MK + 2 * i + 1}]'
    for i in range(8):
        p(f"""
        v_lshrrev_b32 v{a0}, 16, v{E + i}
        v_subrev_u32 v{a1}, s96, v{a0}
        v_subrev_u32 v{a0}, s97, v{a0}
        v_min3_u32 v{CN + i}, v{a0}, v{a1}, v{vDUM}
        v_lshlrev_b32 v{a0}, 1, v{CN + i}
        ds_read_b64 v[{TV + 2 * i}:{TV + 2 * i + 1}], v{a0} offset:{TT}
        v_and_b32 v{SH + i}, 31, v{E + i}
        """)
    for i in range(8):
        p(f"""
        v_lshl_add_u32 v{PF + i}, v{SH + i}, 2, v{TV + 2 * i + 1}
        ds_inc_rtn_u32 v{PF + i}, v{PF + i}, v{vFIVE}
        """)
    p('s_mov_b32 s94, 0xfffc0000')
    p(f'v_min3_u32 v{a0}, v{E + 8}, v{E + 9}, v{E + 10}\nv_min3_u32 v{a1}, v{E + 11}, v{E + 12}, v{E + 13}')
    p(f'v_min3_u32 v{a0}, v{a0}, v{E + 14}, v{E + 15}\nv_min_u32 v{a0}, v{a0}, v{a1}\nv_cmp_gt_u32 vcc, s94, v{a0}\ns_cbranch_vccnz L_rare')
    p.raw('L_rared:')
    q = Prog()
    q.auto = False
    for i in range(8, 16):
        l = lbl('rs')
        q(f"""
        v_cmp_gt_u32 vcc, s94, v{E + i}
        s_cbranch_vccz {l}
        s_mov_b64 exec, vcc
        ds_add_rtn_u32 v{a2}, v{vZ}, v{vFOUR} offset:{UF + 4}
        s_waitcnt lgkmcnt(0)
        ds_write_b32 v{a2}, v{E + i}
        s_mov_b64 exec, -1
        """)
        q.raw(l + ':')
    q('s_waitcnt lgkmcnt(0)')
    LATE.append(('L_rare', [l.strip() for l in q.L], 'L_rared'))
    for i in range(8):
        p(f"""
        v_mul_u32_u24 v{SH + i}, 5, v{PF + i}
        v_lshlrev_b32 v{OD + i}, v{SH + i}, v{vONE}
        ds_add_rtn_u32 v{OD + i}, v{CN + i}, v{OD + i} offset:{NN}
        v_lshrrev_b32 v{a0}, 2, v{PF + i}
        v_mad_u32_u24 v{TV + 2 * i}, v{a0}, s93, v{TV + 2 * i}
        v_lshl_add_u32 v{TV + 2 * i}, v{PF + i}, 1, v{TV + 2 * i}
        v_cmp_gt_u32 {m(i)}, s92, v{CN + i}
        """)
    stamp(p, 'b2 atomics')
    for i in range(8):
        p(f"""
        v_bfe_u32 v{a1}, v{OD + i}, v{SH + i}, 5
        s_mov_b64 exec, {m(i)}
        v_cmp_gt_u32 vcc, 4, v{a1}
        v_lshl_add_u32 v{a0}, v{a1}, 6, v{TV + 2 * i}
        v_max_u32 v{vMX}, v{vMX}, v{a1}
        s_andn2_b64 {m(i)}, {m(i)}, vcc
        s_mov_b64 exec, vcc
        ds_write_b16 v{a0}, v{E + i}
        s_mov_b64 exec, {m(i)}
        ds_add_rtn_u32 v{PF + i}, v{vZ}, v{vFOUR} offset:{UF + 4}
        s_mov_b64 exec, -1
        """)
    for i in range(8):
        p(f's_mov_b64 exec, {m(i)}\nds_write_b32 v{PF + i}, v{E + i}')
    a, r_ = lbl('ov'), lbl('ovr')
    p(f"""
    s_mov_b64 exec, -1
    v_mov_b32 v{a1}, 0x{PAD - 1:x}
    v_cmp_eq_u32 vcc, v{a1}, v{E + 15}
    v_cmp_eq_u32 s[60:61], 31, v{vMX}
    s_or_b64 vcc, vcc, s[60:61]
    s_cbranch_vccnz {a}
    """)
    p.raw(r_ + ':')
    LATE.append((a, [f'v_mov_b32 v{a0}, 0x100000', f'ds_or_b32 v{vZ}, v{a0} offset:{UF}', 's_waitcnt lgkmcnt(0)'], r_))
    e, c, o, F, T, Q, S = 62, 63, 64, 65, 66, 68, 69
    emit_imgpat(p)
    p(f"""
    s_mul_i32 s94, s{sW}, 1920
    v_lshl_add_u32 v{vT3}, v1, 4, s94
    v_mov_b32 v{vT1}, 0
    v_lshlrev_b32 v{c}, 2, v0
    v_add_u32 v{c}, {LIST}, v{c}
    s_waitcnt lgkmcnt(0)
    s_barrier
    """)
    stamp(p, 'b2 pass1')
    a, r_ = lbl('ov'), lbl('ovr')
    p(f"""
    ds_read_b32 v{o}, v{vZ} offset:{UF + 4}
    ds_read_b32 v{e}, v{c}
    v_cmp_lt_u32 s[60:61], v{c}, v{o}
    v_cmp_lt_u32 vcc, {LIST + 2048}, v{o}
    s_cbranch_vccnz {a}
    """)
    p.raw(r_ + ':')
    LATE.append((a, [f'v_mov_b32 v{a0}, 0x100000', f'ds_or_b32 v{vZ}, v{a0} offset:{UF}', 's_waitcnt lgkmcnt(0)'], r_))
    p(f"""
    v_lshrrev_b32 v{a0}, 16, v{e}
    v_subrev_u32 v{a1}, s96, v{a0}
    v_subrev_u32 v{a0}, s97, v{a0}
    v_min_u32 v{c}, v{a0}, v{a1}
    v_cmp_gt_u32 vcc, s92, v{c}
    v_lshlrev_b32 v{a0}, 1, v{c}
    s_and_b64 s[60:61], s[60:61], vcc
    s_cbranch_scc0 L_p2done
    s_mov_b64 exec, s[60:61]
    ds_add_rtn_u32 v{o}, v{c}, v{vONE} offset:{OO}
    ds_read_b32 v{F}, v{c} offset:{NN}
    ds_read_b64 v[{T}:{T + 1}], v{a0} offset:{TT}
    v_mov_b32 v{Q}, 0
    v_mov_b32 v{S}, 0
    """)
    for qq in range(6):
        p(f"""
        v_bfe_u32 v{a0}, v{F}, {5 * qq}, 5
        v_sub_u32 v{a1}, 4, v{a0} clamp
        v_cmp_lt_u32 vcc, v{o}, v{a1}
        v_add_u32 v{a0}, v{a0}, v{o}
        v_sub_u32 v{o}, v{o}, v{a1}
        v_cndmask_b32 v{S}, v{S}, v{a0}, vcc
        """)
        if qq:
            p(f'v_cndmask_b32 v{Q}, v{Q}, {qq}, vcc')
    p(f"""
    v_lshrrev_b32 v{a0}, 2, v{o}
    v_add_u32 v{a0}, 6, v{a0}
    v_and_b32 v{a1}, 3, v{o}
    v_cmp_le_i32 vcc, 0, v{o}
    v_cndmask_b32 v{Q}, v{Q}, v{a0}, vcc
    v_cndmask_b32 v{S}, v{S}, v{a1}, vcc
    v_lshrrev_b32 v{a0}, 2, v{Q}
    v_mad_u32_u24 v{a0}, v{a0}, s93, v{T}
    v_lshl_add_u32 v{a0}, v{Q}, 1, v{a0}
    v_lshl_add_u32 v{a0}, v{S}, 6, v{a0}
    v_subrev_u32 v{T}, {CC}, v{T + 1}
    v_lshrrev_b32 v{T}, 8, v{T}
    v_lshlrev_b32 v{T}, v{T}, v{vONE}
    v_lshlrev_b32 v{F}, 10, v{T}
    v_cmp_lt_u32 vcc, 7, v{Q}
    v_cndmask_b32 v{F}, 0, v{F}, vcc
    v_or_b32 v{T}, v{T}, v{F}
    v_mov_b32 v{F}, 0x100000
    v_cmp_lt_u32 vcc, 9, v{Q}
    v_cndmask_b32 v{F}, 0, v{F}, vcc
    v_or_b32 v{T}, v{T}, v{F}
    v_cmp_gt_u32 vcc, 12, v{Q}
    s_and_b64 exec, s[60:61], vcc
    ds_write_b16 v{a0}, v{e}
    s_mov_b64 exec, s[60:61]
    v_cmp_lt_u32 vcc, 5, v{Q}
    s_and_b64 exec, exec, vcc
    ds_or_b32 v{vT1}, v{T} offset:{UF}
    s_mov_b64 exec, -1
    """)
    p.label('L_p2done')
    p(f"""
    s_lshl_b32 s96, s77, 14
    s_add_u32 s96, s96, {WS_D2}
    s_waitcnt lgkmcnt(0)
    s_barrier
    """)
    stamp(p, 'b2 done')
    p(f"""
    ds_read_b128 v[{E}:{E + 3}], v{vT3} offset:{IMG}
    ds_read_b128 v[{E + 4}:{E + 7}], v{vT3} offset:{IMG + 1024}
    ds_read_b32 v{vFV}, v{vT1} offset:{UF}
    s_lshl_b32 s97, s77, 7
    s_add_u32 s97, s97, {F_B2}
    v_lshl_add_u32 v{vT2}, v1, 13, s97
    """)
    for i in range(8):
        p(f'v_xor_b32 v{E + i}, v{E + i}, v{PS + (i & 3)}')
    p(f"""
    buffer_store_dwordx4 v[{E}:{E + 3}], v{vT3}, {WSR}, s96 offen sc1
    s_mov_b32 exec_hi, 0xffffff
    buffer_store_dwordx4 v[{E + 4}:{E + 7}], v{vT3}, {WSR}, s96 offen offset:1024 sc1
    s_mov_b64 exec, -1
    v_or_b32 v{vFV}, 0x80000000, v{vFV}
    s_cmp_lg_u32 s{sW}, 7
    s_cbranch_scc1 L_nohdr
    s_mov_b64 exec, 0xff
    {flag_store(vT2)} sc1
    s_mov_b64 exec, -1
    """)
    p.vm.pop()
    p.label('L_nohdr')
    stamp(p, 'b2 flag')
    p(f's_mov_b32 s{sTASK}, 17')
    p.label('L_fill0')
    p.forget()
    emit_misc_loads(p)
    p(f"""
    s_lshl_b32 s96, s{sU}, 7
    s_lshl_b32 s97, s{sXC}, 13
    s_add_u32 s96, s96, s97
    s_add_u32 s96, s96, {F_B2}
    v_mov_b32 v{vT3}, s96
    s_bfe_u32 s96, s2, 0x30002
    s_lshl_b32 s96, s96, 12
    s_add_u32 s96, s96, {F_TOK}
    v_lshl_add_u32 v{vTP}, v1, 7, s96
    s_lshl_b32 s96, s{sJ}, 5
    s_add_u32 s96, s96, s{sSL}
    s_lshl_b32 s96, s96, 7
    s_add_u32 s96, s96, {F_TOK}
    v_mov_b32 v{vTF}, s96
    s_mov_b32 s{sK}, 1
    s_lshl_b32 s96, s{sU}, 10
    s_add_u32 s96, s96, {TBL}
    v_lshl_add_u32 v{vOWN}, v1, 4, s96
    v_lshrrev_b32 v{vT0}, 3, v1
    v_lshlrev_b32 v{vT0}, 7, v{vT0}
    v_and_b32 v{vT1}, 7, v1
    v_lshl_add_u32 v{vT0}, v{vT1}, 3, v{vT0}
    s_lshl_b32 s96, s{sSL}, 10
    s_lshl_b32 s97, s{sW}, 8
    s_add_u32 s96, s96, s97
    v_add_u32 v230, s96, v{vT0}
    s_cmp_eq_u32 s{sW}, 7
    s_cselect_b64 vcc, -1, 0
    v_cndmask_b32 v230, v230, v{vTP}, vcc
    v_min_u32 v{vT1}, 16, v1
    v_and_b32 v{vT0}, 7, v{vT1}
    v_lshlrev_b32 v{vT0}, 9, v{vT0}
    v_lshrrev_b32 v{vT1}, 3, v{vT1}
    v_lshl_add_u32 v{vT0}, v{vT1}, 12, v{vT0}
    v_add_u32 v{vT0}, {F_TOK + 4096}, v{vT0}
    s_cmp_eq_u32 s{sW}, 6
    s_cselect_b64 vcc, -1, 0
    v_cndmask_b32 v230, v230, v{vT0}, vcc
    s_mov_b32 s87, 0
    s_mov_b32 s{sFC}, 3
    s_mov_b32 s{sFA}, 4
    s_mov_b32 s{sFB}, 5
    s_mov_b32 s{sTO}, {WS_TOK + TOK_PL}
    """)
    for i in range(7):
        p(f's_add_u32 s95, s{sJ}, {i + 1}\ns_and_b32 s95, s95, 7\ns_lshl_b32 s{sOFF + i}, s95, 10')
    p('s_mov_b32 s92, 0x200000\ns_mov_b32 s93, 0')
    poll(p, vT3, 1, '0x80000000', bound='s[92:93]', nap=Cfg.hnap)
    p(f"""
    v_readfirstlane_b32 s{sQ}, v{vPL}
    v_lshlrev_b32 v{vT3}, 4, v1
    s_lshl_b32 s88, s{sU}, 14
    s_add_u32 s88, s88, {WS_D2}
    s_add_u32 s89, s88, 5120
    s_mov_b32 s78, {TBL}
    """)
    if Cfg.force_slow:
        p(f's_and_b32 s96, s{sU}, {Cfg.force_slow - 1}\ns_cselect_b32 s96, 0, 0x100000\ns_or_b32 s{sQ}, s{sQ}, s96')
    stamp(p, 'hdr seen')
    il = img_loads()
    n1 = 2 * Cfg.pre_pairs
    p(f's_mov_b32 exec_hi, 0xff\n{poll_load(vG0, vPL)}\ns_mov_b64 exec, -1')
    for x in il[:n1]:
        p(x)
    p(f"""
    v_and_b32 v{vD1}, 0xffff0000, v{vD0}
    v_lshlrev_b32 v{vD0}, 16, v{vD0}
    v_lshlrev_b32 v{vD2}, 16, v{vD2}
    v_mov_b32 v{vT2}, 0
    v_mov_b32 v{vFV}, 3
    """)
    poll(p, vG0, 40, 1, first_issued=True, nap=Cfg.gnap)
    p(f"""
    v_subrev_u32 v{vT1}, 1, v{vPL}
    v_cmp_ne_u32 vcc, s99, v{vT1}
    v_mov_b32 v{vG0}, v230
    s_and_b32 s{sSLOW}, vcc_hi, 0xff
    """)
    stamp(p, 'g0 seen')
    for x in fill_list():
        p(x)
    for x in il[n1:]:
        p(x)
    p(f's_waitcnt vmcnt({10 - n1})\ns_barrier')
    xstore(p, ['s_mov_b64 exec, 1', flag_store(vFO), 's_mov_b64 exec, -1'])
    stamp(p, 'ready')
    if Cfg.dbgt:
        p('s_memrealtime s[26:27]\ns_waitcnt lgkmcnt(0)\nv_writelane_b32 v99, s26, 2')
    p(f's_and_b32 s96, s{sQ}, 0x1ffc00\ns_cbranch_scc1 L_imp')
    p.auto = False
    emit_gather(p, True)
    p('s_branch L_gath_done')
    p.auto = True
    p.label('L_impagain')
    p(f's_add_u32 s{sSPIN}, s{sSPIN}, 1\ns_cmp_gt_u32 s{sSPIN}, {SPIN_MAX}\ns_cbranch_scc1 L_end\ns_setprio 0\ns_waitcnt vmcnt(0) lgkmcnt(0)')
    for x in img_loads():
        p(x)
    p.label('L_imp')
    p.forget()
    p(f's_add_u32 s96, s88, 10240\ns_add_u32 s97, s88, 14336\nv_mov_b32 v{vT2}, 0')
    for c in range(10, 15):
        p(f'buffer_load_dwordx4 v[{imgreg(c)}:{imgreg(c) + 3}], v{vT3}, {WSR}, s{96 + (c - 10) // 4} offen offset:{1024 * ((c - 10) % 4)} sc1')
    p('s_waitcnt vmcnt(0)')
    for c in range(15):
        for x in unpack(c):
            p(x)
    p(f"""
    v_and_b32 v{vT2}, 0xc000c000, v{vT2}
    v_cmp_ne_u32 vcc, 0, v{vT2}
    s_cbranch_vccnz L_impagain
    s_branch L_hop1b
    """)


imgreg = lambda c: 46 + 4 * c if c < 10 else 200 + 4 * (c - 10)


def img_loads():
    o = []
    for i in range(5):
        for h in range(2):
            c = i + 5 * h
            so, off = (f's{88 + h}', 1024 * i) if i < 4 else ('s96', 0)
            if i == 4:
                o.append(f's_add_u32 s96, s{88 + h}, 4096')
            o.append(f'buffer_load_dwordx4 v[{imgreg(c)}:{imgreg(c) + 3}], v{vT3}, {WSR}, {so} offen offset:{off} sc1')
    return o


def unpack(c):
    r = imgreg(c)
    o = [f'v_xor_b32 v{r + i}, v{r + i}, v{PS + i}' for i in range(4)]
    o += [f'v_or3_b32 v{vT2}, v{vT2}, v{r}, v{r + 1}', f'v_or3_b32 v{vT2}, v{vT2}, v{r + 2}, v{r + 3}']
    for i in range(4):
        b, q = 2 * (c % 5) + (i >> 1), 4 * (c // 5) + 2 * (i & 1)
        if q < 10:
            o.append(f'v_mad_u32_u16 v{ADDR(b, q)}, v{r + i}, 8, s78')
            o.append(f'v_mad_u32_u16 v{ADDR(b, q + 1)}, v{r + i}, 8, s78 op_sel:[1,0,0,0]')
    return o


def emit_reads(p, b):
    rd = lambda q: f'ds_read_b64_tr_b16 v[{DATA(b, q)}:{DATA(b, q) + 1}], v{ADDR(b, q)}'
    for q in range(6):
        p(rd(q))
    a, r = lbl('r'), lbl('rr')
    p(f's_bitcmp1_b32 s{sQ}, {b}\ns_cbranch_scc1 {a}')
    p.raw(r + ':')
    LATE.append((a, [rd(6), rd(7), f's_bitcmp1_b32 s{sQ}, {10 + b}', f's_cbranch_scc0 {r}', rd(8), rd(9)], r))


def emit_mfmas(p, b):
    D = (D0, D1, D2)[b >> 2]
    sel = SEL + 4 * (b & 3)
    for i in range(3):
        p(mf32(D, DATA(b, 2 * i), sel, None if (b & 3) == 0 and i == 0 else D))
    a, r = lbl('m'), lbl('mr')
    p(f's_bitcmp1_b32 s{sQ}, {b}\ns_cbranch_scc1 {a}')
    p.raw(r + ':')
    g = Ins(mf32(D, DATA(b, 6), sel, D))
    g.ghost = True
    p.hist.append(g)
    LATE.append((a, [mf32(D, DATA(b, 6), sel, D), f's_bitcmp1_b32 s{sQ}, {10 + b}', f's_cbranch_scc0 {r}', mf32(D, DATA(b, 8), sel, D)], r))


def stage_plane(p, spl):
    a = lbl('sp')
    p(f'''
    s_mul_i32 s92, s{spl}, {TOK_PL}
    s_add_u32 s92, s92, {WS_TOK}
    s_mul_i32 s93, s{spl}, {L_PL}
    s_lshl_b32 s94, s{sW}, 10
    s_add_u32 s93, s93, s94
    s_mov_b32 m0, s93
    s_cmp_ge_u32 s{sW}, 2
    buffer_load_dwordx4 v{vK0}, {WSR}, s92 offen sc1 lds
    s_cbranch_scc1 {a}
    s_add_u32 m0, s93, 8192
    s_cmp_lg_u32 0, 0
    buffer_load_dwordx4 v{vK1}, {WSR}, s92 offen sc1 lds
    ''')
    p.vm.pop()
    p.raw(a + ':')


YA, YB, LA, LB, Y = 46, 47, 48, 49, 68


E0, E1 = 50, 51


def x_addr(p):
    p(f"""
    s_lshl_b32 s93, s{sW}, 2
    v_bfe_u32 v{vT2}, v1, 3, 2
    v_add_u32 v{vT2}, s93, v{vT2}
    v_lshlrev_b32 v{YB}, 15, v{vT2}
    v_mul_u32_u24 v{LB}, 320, v{vT2}
    v_and_b32 v{vT2}, 7, v1
    v_lshl_add_u32 v{YB}, v{vT2}, 4, v{YB}
    v_lshl_add_u32 v{LB}, v{vT2}, 3, v{LB}
    v_add_u32 v{LB}, {7 * L_PL + 256}, v{LB}
    s_lshl_b32 s82, s2, 7
    s_add_u32 s82, s82, {WS_X7}
    s_lshl_b32 s92, s{sSL}, 15
    s_lshl_b32 s96, s{sU}, 9
    s_add_u32 s92, s92, s96
    v_lshl_add_u32 v{vGB}, v{vBL}, 4, s92
    v_mov_b32 v{Z2 + 2}, v{vNON}
    v_mov_b32 v{Z2 + 3}, v{vNON}
    s_lshl_b32 s96, s2, 8
    s_lshr_b32 s97, s96, 2
    s_add_u32 s97, s97, {65536 - 256}
    s_mov_b32 s92, 81920
    v_mul_u32_u24 v{vT1}, 3277, v1
    v_lshrrev_b32 v{vT1}, 16, v{vT1}
    v_mul_u32_u24 v{vT2}, 20, v{vT1}
    v_sub_u32 v{vT2}, v1, v{vT2}
    v_add_u32 v{vT1}, s93, v{vT1}
    v_mul_lo_u32 v{vT1}, v{vT1}, s92
    v_mov_b32 v{vT0}, s97
    v_mov_b32 v{vT3}, s96
    v_cmp_gt_u32 vcc, 16, v{vT2}
    v_cndmask_b32 v{E0}, v{vT0}, v{vT3}, vcc
    s_mov_b64 s[80:81], vcc
    v_lshl_add_u32 v{E0}, v{vT2}, 4, v{E0}
    v_add_u32 v{E0}, v{E0}, v{vT1}
    v_cmp_gt_u32 vcc, 12, v1
    v_cndmask_b32 v{E1}, v{vT0}, v{vT3}, vcc
    v_lshl_add_u32 v{E1}, v1, 4, v{E1}
    s_add_u32 s93, s93, 3
    s_mul_i32 s93, s93, 81920
    s_add_u32 s93, s93, 64
    v_add_u32 v{E1}, s93, v{E1}
    """)


def emit_slow_unit(p):
    n0, n1, n2, ed, es, m0_, m1_ = 200, 201, 202, 203, 204, 205, 206
    X = 208
    p.label('L_slow')
    p.forget()
    for i in range(12):
        p(f'v_mov_b32 v{D0 + i}, 0')
    p(f'''
    s_lshl_b32 s96, s{sU}, 7
    v_lshl_add_u32 v{n0}, v1, 1, s96
    v_add_u32 v{n1}, 1, v{n0}
    s_lshl_b32 s96, s{sU}, 5
    s_add_u32 s96, s96, 8192
    v_add_u32 v{n2}, s96, v{vBL}
    v_lshlrev_b32 v{X + 8}, 2, v1
    s_mov_b32 s92, 0
    s_add_u32 s94, s{sU}, 256
    ''')
    p.label('L_slow_e')
    p(f'''
    buffer_load_dword v{ed}, v{X + 8}, s[{sDST}:{sDST + 3}], s92 offen
    buffer_load_dword v{es}, v{X + 8}, s[{sSRC}:{sSRC + 3}], s92 offen
    s_waitcnt vmcnt(0)
    v_lshrrev_b32 v{m0_}, 7, v{ed}
    v_lshrrev_b32 v{m1_}, 5, v{ed}
    v_cmp_eq_u32 s[96:97], s{sU}, v{m0_}
    v_cmp_eq_u32 vcc, s94, v{m1_}
    s_or_b64 s[96:97], s[96:97], vcc
    ''')
    p.label('L_slow_b')
    p(f'''
    s_cmp_eq_u64 s[96:97], 0
    s_cbranch_scc1 L_slow_n
    s_ff1_i32_b64 s95, s[96:97]
    s_bitset0_b64 s[96:97], s95
    v_readlane_b32 s98, v{ed}, s95
    v_readlane_b32 s99, v{es}, s95
    s_lshl_b32 s99, s99, 3
    s_add_u32 s99, s99, {TBL}
    v_mov_b32 v{X + 6}, s99
    ds_read_b64 v[{X + 4}:{X + 5}], v{X + 6}
    s_waitcnt lgkmcnt(0)
    v_lshlrev_b32 v{X}, 16, v{X + 4}
    v_and_b32 v{X + 1}, 0xffff0000, v{X + 4}
    v_lshlrev_b32 v{X + 2}, 16, v{X + 5}
    v_and_b32 v{X + 3}, 0xffff0000, v{X + 5}
    ''')
    for D, n in ((D0, n0), (D1, n1), (D2, n2)):
        p(f'v_cmp_eq_u32 vcc, s98, v{n}\ns_mov_b64 exec, vcc')
        for i in range(4):
            p(f'v_add_f32 v{D + i}, v{D + i}, v{X + i}')
        p('s_mov_b64 exec, -1')
    p('s_branch L_slow_b')
    p.label('L_slow_n')
    p('s_add_u32 s92, s92, 256\ns_cmp_lt_u32 s92, 640000\ns_cbranch_scc1 L_slow_e')
    p(f's_cmp_eq_u32 s{sK}, 7\ns_cbranch_scc1 L_slow7')
    for x in finish(D0, vD0, HA, GA) + finish(D1, vD1, HA + 2, GA + 2):
        p(x)
    poll(p, vFP, 0xff, f's{sFC}')
    xstore(p, [f'buffer_store_dwordx4 v[{GA}:{GA + 3}], v{vGA}, {WSR}, s{sGO} offen'])
    emit_flag_a(p)
    emit_tok_check(p)
    p('s_branch L_gath_done')
    p.label('L_slow7')
    p.auto = False
    for x in finish(D0, vD0, HA, GA)[:6] + finish(D1, vD1, HA + 2, GA)[:6]:
        p(x)
    x_addr(p)
    p(a7_store())
    p.auto = True
    p('s_branch L_gath7_done')


def emit_flag_a(p):
    p(f'v_mov_b32 v{vFV}, s{sFA}\ns_waitcnt vmcnt(0)')
    xstore(p, ['s_mov_b64 exec, 1', flag_store(vFO), 's_mov_b64 exec, -1'])
    if Cfg.pa_early:
        p(f's_mov_b64 exec, 0xff\n{poll_load(vFP, vPL)}\ns_mov_b64 exec, -1')


def x7_store(z, vaddr, so):
    return f'buffer_store_dwordx4 v[{z}:{z + 3}], v{vaddr}, {WSR}, s{so} offen sc1'


def emit_tok_check(p):
    a, r = lbl('tc'), lbl('tcr')
    p(f's_cmp_lg_u32 s87, 0\ns_cbranch_scc1 {a}')
    p.raw(r + ':')
    q = Prog()
    poll(q, vG0, 32, 's87', first_issued=True, res=vP2, so='s40', nap=Cfg.nap)
    LATE.append((a, [l.strip() for l in q.L], r))


def a7_store():
    return f'buffer_store_dwordx4 v[{HA}:{HA + 3}], v{vGA}, {WSR}, s{sTO} offen sc1'


def alt7(p, normal, alt):
    a, r = lbl('a7'), lbl('a7r')
    p(f's_cmp_eq_u32 s{sK}, 7\ns_cbranch_scc1 {a}')
    p.opt_begin()
    normal()
    p.opt_end(r)
    q = Prog()
    q.auto = False
    q('s_nop 7')
    alt(q)
    LATE.append((a, [l.strip() for l in q.L], r))


def emit_gather(p, first=False):
    def need(b):
        if first and b % 2 == 0:
            p(f's_waitcnt vmcnt({9 - b + (1 if b > 5 else 0)})')
            for x in unpack(b // 2) + unpack(5 + b // 2):
                p(x)
    if Cfg.prio_until:
        a = lbl('np')
        p(f's_cmp_lt_u32 s{sW}, 4\ns_cbranch_scc1 {a}\ns_setprio 1')
        p.raw(a + ':')
    need(0)
    emit_reads(p, 0)
    for b in range(10):
        if b < 9:
            need(b + 1)
            emit_reads(p, b + 1)
        p(f's_waitcnt lgkmcnt({6 if b < 9 else 0})')
        emit_mfmas(p, b)
        if Cfg.tpoll_at and b == Cfg.tpoll_at and not first:
            a, r = lbl('tp'), lbl('tpr')
            p(f's_cmp_lg_u32 s87, 0\ns_cbranch_scc1 {a}')
            p.raw(r + ':')
            LATE.append((a, [f's_cmp_eq_u32 s{sK}, 7', f's_cbranch_scc1 {r}', 's_mov_b32 exec_hi, 0', poll_load(vG0, vP2, 's40'), 's_mov_b64 exec, -1'], r))
        if b == 4:
            def n4():
                for x in finish(D0, vD0, HA, GA):
                    p(x)
                p(f's_mov_b64 exec, 0xff\n{poll_load(vFP, vPL)}\ns_mov_b64 exec, -1')

            def a4(q):
                for x in finish(D0, vD0, HA, GA)[:6]:
                    q(x)
                x_addr(q)
            if first:
                n4()
            else:
                alt7(p, n4, a4)
        if Cfg.prio_until and b == Cfg.prio_until:
            p('s_setprio 0')
        if b == 7:
            def n7():
                for x in finish(D1, vD1, HA + 2, GA + 2):
                    p(x)
                p('s_waitcnt vmcnt(0)')
                p._inopt = False
                if first:
                    p(f'v_and_b32 v{vT2}, 0xc000c000, v{vT2}\nv_cmp_ne_u32 vcc, 0, v{vT2}\ns_cbranch_vccnz L_impagain')
                poll(p, vFP, 0xff, f's{sFC}', first_issued=True)
                m = p._optmark
                xstore(p, [f'buffer_store_dwordx4 v[{GA}:{GA + 3}], v{vGA}, {WSR}, s{sGO} offen'])
                p._optmark = m

            def a7(q):
                for x in finish(D1, vD1, HA + 2, GA)[:6]:
                    q(x)
                q('s_cmp_lg_u32 s87, 0\ns_cselect_b32 exec_lo, -1, 0\ns_mov_b32 exec_hi, 0')
                q(poll_load(vG0, vP2, 's40'))
                q('s_mov_b64 exec, -1')
                q(a7_store())
            if first:
                p._optmark = len(p.hist)
                n7()
            else:
                alt7(p, n7, a7)
        if b == 8:
            def n8():
                m = p._optmark
                emit_flag_a(p)
                p._optmark = m
            def n8b():
                n8()
                m = p._optmark
                emit_tok_check(p)
                p._optmark = m
            if first:
                emit_flag_a(p)
            else:
                alt7(p, n8b, lambda q: None)


def emit_flag_c(p):
    p(f"""
    s_mul_i32 s{sFC}, s{sK}, 3
    s_add_u32 s{sFA}, s{sFC}, 1
    s_add_u32 s{sFB}, s{sFC}, 2
    v_mov_b32 v{vFV}, s{sFC}
    """)
    xstore(p, ['s_mov_b64 exec, 1', flag_store(vFO), 's_mov_b64 exec, -1'])


def emit_hops(p):
    p.label('L_hop')
    if Cfg.c_first:
        emit_flag_c(p)
    p(f"""
    s_sub_u32 s93, s{sK}, 2
    {"" if Cfg.notok else f"buffer_store_dwordx4 v[{HA}:{HA + 3}], v{vGA}, {WSR}, s{sTO} offen {Cfg.tokf}"}
    {"" if Cfg.notok else f"buffer_store_dwordx2 v[{HB}:{HB + 1}], v{vGB}, {WSR}, s{sTO} offen {Cfg.tokf}"}
    """)
    p(f"""
    v_mov_b32 v{vFV}, s93
    s_cmp_lg_u32 s{sW}, 0
    s_cbranch_scc1 L_notf
    s_lshl_b32 s93, s93, 15
    s_mov_b64 exec, 1
    {flag_store(vTF, 's93')} sc1
    s_mov_b64 exec, -1
    """)
    p.raw('L_notf:')
    if Cfg.lat:
        p('s_waitcnt vmcnt(0)')
        stamp(p, 't1', True)
    p(f's_cmp_eq_u32 s{sK}, 2\ns_cbranch_scc1 L_hop2x')
    q = Prog()
    q.auto = False
    q(f"""
    s_cmp_lt_u32 s{sTASK}, 17
    s_cbranch_scc1 L_prepA
    s_or_b32 s96, s2, s{sW}
    s_cbranch_scc1 L_keeptag
    v_mov_b32 v{vT0}, {WS_TAG}
    s_mov_b64 exec, 1
    buffer_store_dword v{vNON}, v{vT0}, {WSR}, 0 offen sc1
    s_mov_b64 exec, -1
    L_keeptag:
    s_cmp_lg_u32 s{sTASK}, 17
    s_cbranch_scc1 L_hop1
    v_and_b32 v{vT0}, 7, v1
    v_lshrrev_b32 v{vT1}, 3, v1
    v_lshlrev_b32 v{vT2}, 8, v{vT0}
    v_lshl_add_u32 v{vT2}, v{vT1}, 4, v{vT2}
    s_lshl_b32 s96, s2, 13
    s_lshr_b32 s97, s{sW}, 1
    s_lshl_b32 s92, s97, 11
    s_and_b32 s94, s{sW}, 1
    s_lshl_b32 s95, s94, 7
    s_add_u32 s92, s92, s95
    s_add_u32 s92, s92, s96
    buffer_load_dwordx4 v[46:49], v{vT2}, s[{sX_}:{sX_ + 3}], s92 offen
    s_lshr_b32 s96, s96, 2
    s_add_u32 s96, s96, s95
    s_add_u32 s96, s96, {8192 * 256}
    buffer_load_dwordx4 v[50:53], v{vT2}, s[{sX_}:{sX_ + 3}], s96 offen
    v_mul_u32_u24 v{vT1}, 640, v{vT1}
    v_lshl_add_u32 v{vT1}, v{vT0}, 3, v{vT1}
    s_mul_i32 s94, s94, 5120
    v_add_u32 v55, s94, v{vT1}
    s_lshl_b32 s97, s97, 6
    v_add_u32 v54, s97, v55
    """)
    LATE.append(('L_hop2x', [l.strip() for l in q.L], 'L_hop1'))
    p(f"""
    s_cmp_lt_u32 s{sK}, {5 if Cfg.late else Cfg.lag + 1}
    s_cbranch_scc1 L_hop1
    s_sub_u32 s87, s{sK}, {Cfg.lag}
    s_cmp_eq_u32 s{sK}, 7
    s_cselect_b32 s87, 5, s87
    s_cmp_eq_u32 s{sW}, 7
    s_cselect_b32 s87, s87, 0
    {f"s_cmp_lt_u32 s{sK}, {min(Cfg.late) - 1}" if Cfg.late else ""}
    {"s_cselect_b32 s87, 0, s87" if Cfg.late else ""}
    s_lshl_b32 s92, s{sW}, 3
    s_add_u32 s92, s92, s{sK}
    s_cmp_eq_u32 s92, 55
    s_cselect_b32 s87, 4, s87
    s_lshl_b32 s40, s87, 15
    s_lshl_b32 s92, s{sK}, 8
    s_add_u32 s92, s92, s{sTASK}
    s_sub_u32 s92, s92, 0x500
    s_cmp_lt_u32 s92, 16
    s_cbranch_scc1 L_prepD
    L_prepDr:
    s_cmp_gt_u32 s{sK}, {min(Cfg.late) - 1 if Cfg.late else Cfg.lag + 1}
    s_cbranch_scc1 L_stg
    L_stgr:
    {"" if Cfg.tpoll_at else "s_cmp_lg_u32 s87, 0"}
    {"" if Cfg.tpoll_at else "s_cbranch_scc1 L_tpl"}
    """)
    q = Prog()
    q.auto = False
    if Cfg.late:
        for k, planes in Cfg.late.items():
            l = lbl('lt')
            q(f's_cmp_lg_u32 s{sK}, {k}\ns_cbranch_scc1 {l}')
            for pl in planes:
                q(f's_mov_b32 s95, {pl}')
                stage_plane(q, 95)
            q.raw(l + ':')
    else:
        q(f's_sub_u32 s95, s{sK}, {Cfg.lag + 1}')
        if not Cfg.nostage:
            stage_plane(q, 95)
    q(f"""
    s_cmp_lg_u32 s{sK}, {Cfg.junk_at}
    s_cbranch_scc1 L_stgr
    s_lshl_b32 s92, s{sR}, 3
    s_add_u32 s92, s92, s{sW}
    s_mul_i32 s92, s92, 288
    s_add_u32 s92, s92, {WS_WF}
    v_lshlrev_b32 v{vT0}, 5, v1
    s_mov_b64 exec, 0x1ff
    buffer_load_dword v2, v{vT0}, {WSR}, s92 offen
    s_mov_b64 exec, -1
    """)
    LATE.append(('L_stg', [l.strip() for l in q.L], 'L_stgr'))
    LATE.append(('L_tpl', [f's_cmp_eq_u32 s{sK}, 7', 's_cbranch_scc1 L_hop1', 's_mov_b32 exec_hi, 0', poll_load(vG0, vP2, 's40'), 's_mov_b64 exec, -1'], 'L_hop1'))
    p.label('L_hop1')
    if Cfg.lat:
        p('s_waitcnt vmcnt(0)')
        stamp(p, 't2', True)
    p.auto = False
    p(f's_add_u32 s{sTO}, s{sTO}, {0 if Cfg.sameplane else TOK_PL}')
    if not Cfg.c_first:
        emit_flag_c(p)
    p.label('L_hop1b')
    p(f'''
    s_bitcmp1_b32 s{sQ}, 20
    s_cbranch_scc1 L_slow
    ''')
    emit_gather(p)
    p.label('L_gath_done', keep=True)
    p.forget()
    p(f'''
    s_cmp_eq_u32 s{sK}, 7
    s_cbranch_scc1 L_gath7_done
    ''')
    if not Cfg.pa_early and Cfg.pa_pre != 3:
        p(f's_mov_b64 exec, 0xff\n{poll_load(vFP, vPL)}\ns_mov_b64 exec, -1')
    for x in finish(D2, vD2, HB, GB):
        p(x)
    xstore(p, [f'buffer_store_dwordx2 v[{GB}:{GB + 1}], v{vGB}, {WSR}, s{sGO} offen'])
    stamp(p, 'gath', True)
    if Cfg.pa_pre == 1:
        p('s_waitcnt vmcnt(1)')
        poll(p, vFP, 0xff, f's{sFA}', first_issued=True)
    if Cfg.pa_pre in (2, 3):
        p(f'v_mov_b32 v{vFV}, s{sFB}\ns_waitcnt vmcnt(0)')
        xstore(p, ['s_mov_b64 exec, 1', flag_store(vFO), 's_mov_b64 exec, -1'])
    if Cfg.pa_pre == 2:
        poll(p, vFP, 0xff, f's{sFA}', first_issued=True)
    if Cfg.pa_pre == 3:
        p(f's_mov_b64 exec, 0xff\n{poll_load(vFP, vPL)}\ns_mov_b64 exec, -1')
    p('s_barrier')
    stamp(p, 'bar1', True)
    if Cfg.pa_pre < 2:
        p(f'v_mov_b32 v{vFV}, s{sFB}\ns_waitcnt vmcnt(0)')
        xstore(p, ['s_mov_b64 exec, 1', flag_store(vFO), 's_mov_b64 exec, -1'])
    if Cfg.pa_pre == 3:
        p('s_waitcnt vmcnt(0)')
    if Cfg.pa_pre in (0, 3):
        poll(p, vFP, 0xff, f's{sFA}', first_issued=True)
    stamp(p, 'pollA', True)

    def dA(i):
        p(f's_add_u32 m0, s{sLA}, s{sOFF + i}\ns_add_u32 s97, s{sGO}, s{sOFF + i}')
        p(f'buffer_load_dwordx4 v{vDA}, {WSR}, s97 offen sc1 lds')
    for i in range(Cfg.pollb_at):
        dA(i)
    p(f"""
    s_cmp_lt_u32 s{sW}, 4
    s_cselect_b32 exec_lo, 0xffff, 0
    s_mov_b32 exec_hi, 0
    {poll_load(vG0, vPL)}
    s_mov_b64 exec, -1
    """)
    for i in range(Cfg.pollb_at, 7):
        dA(i)
    p(f'ds_write_b128 v{vOWN}, v[{GA}:{GA + 3}]')
    p(f's_cmp_ge_u32 s{sW}, 4\ns_cbranch_scc1 L_nob\ns_waitcnt vmcnt({7 - Cfg.pollb_at})')
    poll(p, vG0, 0xffff, f's{sFB}', first_issued=True)
    stamp(p, 'pollB', True)
    p(f's_mov_b32 m0, s{sLB}')
    for j in range(4):
        p(f'buffer_load_dwordx4 v{vDB}, {WSR}, s{sGO} offen offset:{1024 * j} sc1 lds')
    p.raw('L_nob:')
    stamp(p, 'pp0', True)
    p(f's_cmp_lt_u32 s{sTASK}, 18\ns_cbranch_scc1 L_prepW')
    p.raw('L_prepB_back:')
    stamp(p, 'pp1', True)
    LATE.append(('L_bxw', ['ds_write_b64 v54, v[46:47]', 'ds_write_b64 v54, v[48:49] offset:320',
                           'ds_write_b64 v55, v[50:51] offset:256', 'ds_write_b64 v55, v[52:53] offset:576', f's_mov_b32 s{sTASK}, 99'], 'L_prepB_back'))
    LATE.append(('L_prepW', [f's_cmp_eq_u32 s{sK}, 1', 's_cbranch_scc1 L_prepB_back',
                             f's_cmp_eq_u32 s{sTASK}, 17', 's_cbranch_scc1 L_bxw', f's_cmp_eq_u32 s{sK}, 2', 's_cbranch_scc1 L_prepB', f's_cmp_eq_u32 s{sTASK}, 16', 's_cbranch_scc1 L_prepB_back',
                             f's_cmp_eq_u32 s{sK}, 3', 's_cbranch_scc1 L_prepB2',
                             f's_cmp_eq_u32 s{sK}, 4', 's_cbranch_scc1 L_prepC'], 'L_prepB_back'))
    p(f'''
    s_waitcnt vmcnt(0) lgkmcnt(0)
    L_bar2:
    s_barrier
    ''')
    stamp(p, 'bar2', True)
    p(f's_add_u32 s{sK}, s{sK}, 1\ns_branch L_hop')
    p.auto = True
    emit_slow_unit(p)
    emit_prep_blocks(p)
    emit_late(p)


def emit_handoff(p):
    p.label('L_gath7_done')
    p.forget()
    p.auto = False
    p(f's_mov_b32 s94, {WS_X7}\ns_nop 4')
    for x in finish(D2, vD2, Z2, GB)[:6]:
        p(x)
    p('s_waitcnt vmcnt(0)')
    p(x7_store(Z2, vGB, 94))
    stamp(p, 'gath7')
    if Cfg.dbgt:
        p('s_memrealtime s[26:27]\ns_waitcnt lgkmcnt(0)\nv_writelane_b32 v99, s26, 3')
    emit_tok_check(p)
    p('s_barrier')
    for pl in range(7 - Cfg.lag, 6):
        p(f's_mov_b32 s95, {pl}')
        stage_plane(p, 95)
    p(f"""
    v_lshlrev_b32 v{vT2}, 4, v1
    s_lshl_b32 s92, s{sW}, 13
    s_add_u32 s93, s92, {WS_WF}
    s_add_u32 s92, s92, {L_W}
    s_mov_b32 m0, s92
    s_add_u32 s94, s93, 4096
    """)
    ldb = f'buffer_load_dwordx4 v[{Y + 8}:{Y + 11}], v{YB}, {WSR}, s82 offen sc1'
    for i in range(8):
        if i == 4:
            p('s_add_u32 m0, s92, 4096')
        if i == Cfg.x7_at:
            p(f's_mov_b32 exec_hi, 0\n{ldb}\ns_mov_b64 exec, -1')
        p(f'buffer_load_dwordx4 v{vT2}, {WSR}, s{93 + i // 4} offen offset:{1024 * (i % 4)} sc1 lds')
    p(f"""
    s_and_b32 s92, s{sW}, 3
    s_lshl_b32 s92, s92, 10
    s_add_u32 s93, s92, {WS_WF + 65536}
    s_add_u32 m0, s92, {L_LIN}
    v_mov_b32 v{vT3}, {WS_WF + 69632}
    buffer_load_dwordx4 v{vT2}, {WSR}, s93 offen sc1 lds
    buffer_load_dword v{vSWR}, v{vT3}, {WSR}, 0 offen sc1
    s_lshr_b32 s78, s2, 2
    s_and_b32 s79, s2, 3
    """)
    p.auto = True
    p.forget()
    emit_tf_setup(p, sW, 78, 79, 92)
    p('s_mov_b32 exec_hi, 0')
    if Cfg.x7_at > 7:
        p(ldb)
    p(f's_waitcnt vmcnt({max(0, 10 - Cfg.x7_at)})')
    chk = [f'v_xor_b32 v{vT0}, v{Y + 10}, v{vNON}', f'v_xor_b32 v{vT1}, v{Y + 11}, v{vNON}', f'v_or_b32 v{vT0}, v{vT0}, v{vT1}',
           f'v_cmp_ne_u32 vcc, 0, v{vT0}', 's_cbranch_vccnz L_x7again']
    for x in chk:
        p(x)
    LATE.append(('L_x7again', [f's_sleep {Cfg.nap}', ldb, f's_add_u32 s{sSPIN}, s{sSPIN}, 1', f's_cmp_gt_u32 s{sSPIN}, {SPIN_MAX}',
                               's_cbranch_scc1 L_end', 's_waitcnt vmcnt(0)'] + chk, 'L_x7ok'))
    p.label('L_x7ok')
    p(f'ds_write_b64 v{LB}, v[{Y + 8}:{Y + 9}]\ns_mov_b64 exec, -1')
    stamp(p, 'hint7')
    p(f"""
    s_mul_i32 s93, s{sW}, 1280
    s_mov_b32 s92, {WS_TOK + 6 * TOK_PL}
    s_mov_b32 s94, {WS_TOK + 7 * TOK_PL}
    s_add_u32 m0, s93, {6 * L_PL}
    s_nop 0
    buffer_load_dwordx4 v{E0}, {WSR}, s92 offen sc1 lds
    s_add_u32 m0, s93, {7 * L_PL}
    s_mov_b64 exec, s[80:81]
    buffer_load_dwordx4 v{E0}, {WSR}, s94 offen sc1 lds
    s_add_u32 m0, s93, {6 * L_PL + 1024}
    s_mov_b64 exec, 0xffff
    buffer_load_dwordx4 v{E1}, {WSR}, s92 offen sc1 lds
    s_add_u32 m0, s93, {7 * L_PL + 1024}
    s_mov_b64 exec, 0xfff
    buffer_load_dwordx4 v{E1}, {WSR}, s94 offen sc1 lds
    s_mov_b64 exec, -1
    """)
    if Cfg.st:
        p(f'''
        v_writelane_b32 v{vST}, s{sQ}, 22
        v_writelane_b32 v{vST}, s{sSLOW}, 23
        s_lshl_b32 s80, s2, 3
        s_add_u32 s80, s80, s{sW}
        s_lshl_b32 s80, s80, 8
        s_add_u32 s80, s80, {WS_OVF}
        v_lshl_add_u32 v{vT0}, v1, 2, s80
        buffer_store_dword v{vST}, v{vT0}, {WSR}, 0 offen
        ''')
    p('s_waitcnt vmcnt(0) lgkmcnt(0)\ns_barrier')
    if Cfg.st:
        p('s_memtime s[82:83]\ns_waitcnt lgkmcnt(0)')
    if Cfg.dbgt:
        p('s_memrealtime s[26:27]\nv_readlane_b32 s24, v99, 2\nv_readlane_b32 s25, v99, 3\ns_waitcnt lgkmcnt(0)')
    if Cfg.wb:
        p(f's_cmp_lg_u32 s{sW}, 7\ns_cbranch_scc1 L_nowb\ns_cmp_ge_u32 s2, {Cfg.wb}\ns_cbranch_scc1 L_nowb\nbuffer_wbl2 sc1')
        p.forget()
        p.raw('L_nowb:')
    OPT['outf'] = Cfg.outf
    p(f's_cmp_ge_u32 s{sW}, 4\ns_cbranch_scc1 L_tf_two')
    emit_tf(p, 3, sOUT)
    p('s_branch L_tf_fin')
    emit_late(p)
    p.label('L_tf_two')
    p.forget()
    emit_tf(p, 2, sOUT)
    p.label('L_tf_fin')
    if Cfg.dbgt:
        p(f"""
        s_load_dwordx2 s[84:85], s[0:1], 80
        s_memrealtime s[82:83]
        s_waitcnt lgkmcnt(0)
        s_mov_b32 s86, 256
        s_mov_b32 s87, 0x20000
        s_not_b32 s80, s90
        v_mov_b32 v2, 0
        v_mov_b32 v4, s80
        s_mov_b64 exec, 1
        buffer_atomic_umax v4, v2, s[84:87], 0 offen
        v_mov_b32 v4, s82
        buffer_atomic_umax v4, v2, s[84:87], 0 offen offset:4
        v_mov_b32 v4, s24
        buffer_atomic_umax v4, v2, s[84:87], 0 offen offset:8
        v_mov_b32 v4, s25
        buffer_atomic_umax v4, v2, s[84:87], 0 offen offset:12
        v_mov_b32 v4, s26
        buffer_atomic_umax v4, v2, s[84:87], 0 offen offset:16
        v_mov_b32 v4, s90
        buffer_atomic_umax v4, v2, s[84:87], 0 offen offset:20
        """)
    if Cfg.st:
        p(f'''
        s_memtime s[84:85]
        s_memrealtime s[86:87]
        s_waitcnt lgkmcnt(0)
        v_mov_b32 v2, s80
        v_mov_b32 v4, s82
        v_mov_b32 v5, s84
        v_mov_b32 v6, s86
        s_mov_b64 exec, 1
        buffer_store_dwordx2 v[4:5], v2, {WSR}, 0 offen offset:248
        buffer_store_dword v6, v2, {WSR}, 0 offen offset:80
        ''')


def gen(st=False, **kw):
    Cfg.st = st
    for k, v in kw.items():
        setattr(Cfg, k, v)
    STAMPS.clear()
    PRIO.clear()
    PRIO.update({(2, 1): 1})
    OPT.update(pk3=0, pk5=1, bw=1)
    p = Prog()
    p.raw('; @launch grid=(256,1,1) block=(512,1,1) lds=163840')
    p.raw('.amdgcn_target "amdgcn-amd-amdhsa--gfx950"\n.text')
    p.kstart(KN)
    p.junk = {('v', 2), ('v', 3)}
    emit_prologue(p)
    emit_g1(p)
    emit_b2(p)
    emit_hops(p)
    p.junk = set()
    emit_handoff(p)
    p.label('L_end')
    p('s_endpgm')
    p.raw('L_code_end:')
    p.raw('.section .rodata,"a"\n.p2align 6')
    p.kdesc(KN, vgpr=256)
    if st:
        json.dump(STAMPS, open(kw.get('names', 'stamps.json'), 'w'))
    print('nops', p.nnop, 'lines', len(p.L))
    return p.text()


if __name__ == '__main__':
    import copy
    base = {k: v for k, v in vars(Cfg).items() if not k.startswith('__')}

    def out(name, st, **kw):
        for k, v in base.items():
            setattr(Cfg, k, v)
        open(name, 'w').write(gen(st, names=name + '.json', **kw))
    if len(sys.argv) > 1:
        for spec in sys.argv[1:]:
            name, _, rest = spec.partition(':')
            kw = dict((x.split('=')[0], eval(x.split('=')[1])) for x in rest.split(';') if x)
            kw.setdefault('hopst', ('bar2',))
            out(name, True, **kw)
    else:
        out('k_st.s', True)
        out('k_st1.s', True, hopst=('bar2',))
        out('k_slow8.s', False, force_slow=8)
        out('k.s', False)
        out('k_dbg.s', False, dbgt=1)
```

```python
import sys, json
from prog import *
from parts_tf import *

F_HOP = 0x0000
F_TOK = 0xC0000
F_G0 = 0x80000
F_B2 = 0x20000
WS_D2 = WS_D + 0x200000
WS_X7 = WS_TOK + 8 * TOK_PL
WS_TAG = 0x3ff80
PAD = 0xFFFC3FFF

TBL = 81920
CNT1, BUCK, IMG, PSUM = 10496, 12288, 20480, 72192
TT, NN, OO, UF, CC, LIST, SEG = 35840, 37632, 38528, 39296, 39424, 43008, 50176
DUMMY = 10239
Z0, Z1, Z2 = 56, 60, 64

sWS, sSRC, sDST, sX_, sDIS, sDBG, sOUT = 4, 8, 12, 16, 20, 24, 28
sPA, sPB, sPR = 32, 36, 24
sW, sXC, sR, sJ, sSL, sU, sSLOW, sQ, sK, sGO, sTO, sFA, sFB, sSPIN = 44, 45, 46, 47, 48, 49, 50, 51, 52, 53, 54, 55, 56, 57
sTAG = 43
sKA = 88
sFC = 42
sBU = 76
sTASK = 41
sNEG = 58
sMK = 60
sLA, sLB = 100, 101

D0, D1, D2 = 4, 8, 12
GA, GB, HA, HB = 16, 20, 24, 28
vD0, vD1, vD2 = 30, 31, 32
vGA, vGB, vDA, vDB, vFP, vFO, vG0, vT0, vT1, vT2, vT3 = 33, 34, 35, 36, 37, 38, 39, 40, 41, 42, 43
vFV, vNON = 22, 23
vPL = 94
vBETA, vUB = 44, 45
vTP, vTF = 44, 45
XA, XB, XD = 100, 104, 108
sOFF = 80
vBL, vK0, vK1 = 96, 97, 98
vOWN = 3
vP2 = 92
vST = 99
PS = 88
ADDR = lambda b, q: 100 + 10 * b + q
DATA = lambda b, q: 200 + 20 * (b & 1) + 2 * q
SEL = 240
SPIN_MAX = 1 << 22
WSR = f's[{sWS}:{sWS + 3}]'


class Cfg:
    st = False
    prio_until = 5
    force_slow = 0
    dump_tbl = 0
    pollb_at = 3
    pollc_at = 4
    late = None
    lat = 0
    c_first = 1
    sameplane = 0
    tokf = 'sc1'
    pre_pairs = 2
    gnap = 4
    coop = 1
    fill_first = 0
    hnap = 0
    pa_pre = 0
    pa_early = 0
    probe = 0
    pnap = 4
    predelay = 0
    wsoff = 0
    tlb = 0
    nostage = 0
    notok = 0
    junk_at = 7
    dbg = 0
    x7_at = 10
    lag = 3
    nap = 4
    tpoll_at = 0
    gflag = ''
    early_a = 0
    hopst = ('gath', 'bar1', 'pollA', 'pollB', 'bar2')


def srd(p, d, lo, size):
    p(f's_mov_b32 s{d}, s{lo}\ns_mov_b32 s{d + 1}, s{lo + 1}\ns_mov_b32 s{d + 2}, {size}\ns_mov_b32 s{d + 3}, 0x20000')


class Uniq:
    n = 0


def lbl(x):
    Uniq.n += 1
    return f'L_{x}_{Uniq.n}'


LATE = []


def xstore(p, ins):
    a, b = lbl('xs'), lbl('xe')
    p(f's_cmp_lg_u32 s{sSLOW}, 0\ns_cbranch_scc1 {a}')
    p.opt_begin()
    for i in ins:
        p(i + (' ' + Cfg.gflag if i.startswith('buffer_store') else ''))
    p.opt_end(b)
    LATE.append((a, ['s_nop 4'] + [i + (' sc1' if i.startswith('buffer_store') else '') for i in ins] + ['s_nop 1'], b))


def emit_late(p):
    for a, ins, b in LATE:
        p.raw(a + ':')
        for i in ins:
            p.raw(i)
        p.raw(f'    s_branch {b}')
    LATE.clear()


def poll_load(vaddr, res, so='0'):
    return f'buffer_load_dwordx2 v[{res}:{res + 1}], v{vaddr}, {WSR}, {so} offen sc1'


def poll(p, vaddr, ex, need, first_issued=False, res=None, bound='64', nap=0, so='0'):
    res = vPL if res is None else res
    a, b = lbl('pl'), lbl('pd')
    setex = {32: 's_mov_b32 exec_hi, 0', 40: 's_mov_b32 exec_hi, 0xff'}.get(ex, f's_mov_b64 exec, {ex}')
    cond = [f'v_lshl_add_u64 v[{vT0}:{vT1}], v[{res}:{res + 1}], 0, s[{sNEG}:{sNEG + 1}]',
            f'v_cmp_le_u64 vcc, {bound}, v[{vT0}:{vT1}]']
    body = [poll_load(vaddr, res, so),
            f's_add_u32 s{sSPIN}, s{sSPIN}, 1',
            f's_cmp_gt_u32 s{sSPIN}, {SPIN_MAX}',
            's_cbranch_scc1 L_end',
            's_waitcnt vmcnt(0)'] + cond + [f's_cbranch_vccnz {a}']
    if nap:
        c_ = lbl('pn')
        body = body[:-1] + [f's_cbranch_vccz {c_}', f's_sleep {nap}', f's_branch {a}', c_ + ':']
    p(f's_sub_u32 s{sNEG}, 0, {need}')
    p(setex)
    if first_issued:
        for c in cond:
            p(c)
        p(f's_cbranch_vccnz {a}')
        p.raw(b + ':')
        LATE.append((a, body, b))
    else:
        p.label(a)
        for c in body:
            p(c)
    p('s_mov_b64 exec, -1')


def flag_store(vaddr, so='0'):
    return f'buffer_store_dwordx2 v[{vFV}:{vNON}], v{vaddr}, {WSR}, {so} offen'


def finish(D, dis, H, G):
    o = [f'v_mul_f32 v{D + i}, v{D + i}, v{dis}' for i in range(4)]
    o += [cvt(H, D), cvt(H + 1, D + 2)]
    return o + scale_g(D, dis, H, G)


def scale_g(D, dis, H, G):
    o = [f'v_lshlrev_b32 v{D}, 16, v{H}', f'v_and_b32 v{D + 1}, 0xffff0000, v{H}',
         f'v_lshlrev_b32 v{D + 2}, 16, v{H + 1}', f'v_and_b32 v{D + 3}, 0xffff0000, v{H + 1}']
    o += [f'v_mul_f32 v{D + i}, v{D + i}, v{dis}' for i in range(4)]
    o += [cvt(G, D), cvt(G + 1, D + 2)]
    return o


STAMPS = []


def stamp(p, name, hop=False):
    if not Cfg.st:
        return
    if hop and name not in Cfg.hopst:
        return
    if hop:
        i = 24 + sum(1 for n in STAMPS if n.startswith('h:')) * 8
        STAMPS.append('h:' + name)
        p(f's_memtime s[90:91]\ns_add_u32 m0, s{sK}, {i - 1}\ns_waitcnt lgkmcnt(0)\nv_writelane_b32 v{vST}, s90, m0')
    else:
        i = sum(1 for n in STAMPS if not n.startswith('h:'))
        STAMPS.append(name)
        p(f's_memtime s[90:91]\ns_waitcnt lgkmcnt(0)\nv_writelane_b32 v{vST}, s90, {i}')


def emit_desc(p):
    p(f'''
    s_cmp_ge_u32 s{sTASK}, 8
    s_cselect_b32 s{sPA}, s64, s60
    s_cselect_b32 s{sPA + 1}, s65, s61
    s_cselect_b32 s{sPB}, s66, s62
    s_cselect_b32 s{sPB + 1}, s67, s63
    s_mov_b32 s{sPA + 2}, 32768
    s_mov_b32 s{sPA + 3}, 0x20000
    s_mov_b32 s{sPB + 2}, 32768
    s_mov_b32 s{sPB + 3}, 0x20000
    ''')
    srd(p, sPR, 68, 256)


PV, PRA, PBF, PRT, PD, PI, PR = 80, 46, 62, 62, 200, 78, 84


def emit_prep_blocks(p):
    va, t0, t1 = PV, PV + 1, PV + 2
    PB = PSUM + 512
    p.label('L_prepA')
    p.forget()
    emit_desc(p)
    emit_lane_consts_prep(p, 1, va, t0)
    p(f'''
    s_cmp_eq_u32 s{sTASK}, 16
    s_cbranch_scc1 L_prepA_lin
    s_lshr_b32 s72, s{sW}, 1
    s_lshl_b32 s75, s72, 6
    s_lshl_b32 s72, s72, 13
    s_and_b32 s73, s{sW}, 1
    s_lshl_b32 s74, s73, 3
    s_add_u32 s75, s75, s74
    s_lshl_b32 s73, s73, 10
    s_add_u32 s72, s72, s73
    s_bfe_u32 s73, s{sTASK}, 0x20001
    s_lshl_b32 s73, s73, 5
    s_and_b32 s74, s{sTASK}, 1
    s_lshl_b32 s74, s74, 2
    s_add_u32 s73, s73, s74
    s_lshl_b32 s74, s73, 8
    s_add_u32 s74, s74, s75
    s_lshl_b32 s73, s73, 1
    s_add_u32 s73, s73, s72
    s_cmp_ge_u32 s{sTASK}, 8
    s_cselect_b32 s73, s73, s74
    buffer_load_dwordx2 v[{PBF}:{PBF + 1}], v{va}, s[{sPB}:{sPB + 3}], s73 offen
    ''')
    for e4 in range(4):
        p(f'buffer_load_dwordx4 v[{PRA + 4 * e4}:{PRA + 4 * e4 + 3}], v{va}, s[{sPA}:{sPA + 3}], s72 offen offset:{64 * e4}')
    p('s_branch L_hop1')
    p.label('L_prepA_lin')
    p(f'v_and_b32 v{t0}, 48, v1')
    for s4 in range(4):
        p(f'buffer_load_dwordx4 v[{PRA + 4 * s4}:{PRA + 4 * s4 + 3}], v{t0}, s[{sPR}:{sPR + 3}], 0 offen offset:{64 * s4}')
    p('s_branch L_hop1')
    p.label('L_prepB')
    p.forget()
    p(f's_cmp_eq_u32 s{sTASK}, 16\ns_cbranch_scc1 L_prepB_lin\ns_cmp_lt_u32 s{sTASK}, 8\ns_cbranch_scc1 L_prepB_m')
    emit_i16(p, 1, PI, t0, t1)
    p(mf16(PD, PBF, PI, None))
    p(cvt(PBF, PD))
    p(cvt(PBF + 1, PD + 2))
    p.label('L_prepB_m')
    p(f'''
    s_lshr_b32 s72, s{sW}, 1
    s_lshl_b32 s72, s72, 10
    s_and_b32 s73, s{sW}, 1
    s_lshl_b32 s73, s73, 3
    s_add_u32 s72, s72, s73
    s_add_u32 s72, s72, {PB}
    v_lshl_add_u32 v{va}, v1, 4, s72
    ds_write_b64 v{va}, v[{PBF}:{PBF + 1}]
    s_branch L_prepB_back
    ''')
    p.label('L_prepB2')
    p.forget()
    p(f'v_lshlrev_b32 v{va}, 4, v1\nv_add_u32 v{va}, {PB}, v{va}')
    for e4 in range(4):
        p(f'ds_read_b128 v[{PBF + 4 * e4}:{PBF + 4 * e4 + 3}], v{va} offset:{1024 * e4}')
    for e4 in range(4):
        p(mf32(PR, PRA + 4 * e4, PBF + 4 * e4, None if e4 == 0 else PR))
    p(f'''
    v_lshlrev_b32 v{va}, 5, v1
    s_lshl_b32 s72, s{sW}, 2
    s_add_u32 s72, s72, {PSUM}
    v_add_u32 v{va}, s72, v{va}
    v_add_f32 v{t0}, v{PR}, v{PR + 1}
    v_add_f32 v{t1}, v{PR + 2}, v{PR + 3}
    v_add_f32 v{t0}, v{t0}, v{t1}
    v_mov_b32 v{t1}, v{t0}
    v_permlane16_swap_b32 v{t0}, v{t1}
    v_add_f32 v{t0}, v{t0}, v{t1}
    v_mov_b32 v{t1}, v{t0}
    v_permlane32_swap_b32 v{t0}, v{t1}
    v_add_f32 v{t0}, v{t0}, v{t1}
    s_mov_b64 exec, 0xffff
    ds_write_b32 v{va}, v{t0}
    s_mov_b64 exec, -1
    s_branch L_prepB_back
    ''')
    p.label('L_prepB_lin')
    F, O = PRA, PBF
    p(f'''
    s_cmp_lg_u32 s{sW}, 0
    s_cbranch_scc1 L_prepB_back
    v_and_b32 v{t1}, 3, v1
    v_cmp_eq_u32 s[72:73], 1, v{t1}
    v_cmp_eq_u32 vcc, 0, v{t1}
    v_mov_b32 v{t1}, 0x{ONE2:x}
    ''')
    for i in range(4):
        p(f'v_mov_b32 v{O + i}, 0x{ONE2:x}')
    p(f'v_cndmask_b32 v{t1}, 0, v{t1}, vcc')
    for i in range(16):
        p(f'v_cndmask_b32 v{F + i}, v{t1}, v{F + i}, s[72:73]')
    for s4 in range(4):
        p(mf32(PD, F + 4 * s4, O, None if s4 == 0 else PD))
    p(f'v_lshlrev_b32 v{t0}, 4, v1\ns_mov_b32 s74, {WS_WF + 65536}\ns_waitcnt vmcnt(0)')
    for s4 in range(4):
        p(f'buffer_store_dwordx4 v[{F + 4 * s4}:{F + 4 * s4 + 3}], v{t0}, {WSR}, s74 offen offset:{1024 * s4} sc1')
    p(f'''
    v_lshlrev_b32 v{t0}, 2, v1
    s_mov_b32 s74, {WS_WF + 69632}
    buffer_store_dword v{PD + 1}, v{t0}, {WSR}, s74 offen sc1
    s_branch L_prepS
    ''')
    p.label('L_prepS')
    p(f'''
    s_waitcnt lgkmcnt(0)
    s_branch L_bar2
    ''')
    p.label('L_prepC')
    p.forget()
    p(f'''
    v_and_b32 v{va}, 15, v1
    v_lshlrev_b32 v{va}, 5, v{va}
    v_add_u32 v{va}, {PSUM}, v{va}
    ds_read_b128 v[{PRA}:{PRA + 3}], v{va}
    ds_read_b128 v[{PRA + 4}:{PRA + 7}], v{va} offset:16
    s_lshr_b32 s72, s{sW}, 1
    s_lshl_b32 s72, s72, 10
    s_and_b32 s73, s{sW}, 1
    s_lshl_b32 s73, s73, 3
    s_add_u32 s72, s72, s73
    s_add_u32 s72, s72, {PB}
    v_lshl_add_u32 v{va}, v1, 4, s72
    v_add_f32 v{t0}, v{PRA}, v{PRA + 1}
    v_add_f32 v{t1}, v{PRA + 2}, v{PRA + 3}
    v_add_f32 v{t0}, v{t0}, v{PRA + 4}
    v_add_f32 v{t1}, v{t1}, v{PRA + 5}
    v_add_f32 v{t0}, v{t0}, v{PRA + 6}
    v_add_f32 v{t1}, v{t1}, v{PRA + 7}
    v_add_f32 v{t0}, v{t0}, v{t1}
    v_mul_f32 v{t0}, 0x3c000000, v{t0}
    ''')
    for i in range(4):
        p(f'v_sub_f32 v{PR + i}, v{PR + i}, v{t0}')
    p(cvt(PBF, PR))
    p(cvt(PBF + 1, PR + 2))
    p(f'ds_write_b64 v{va}, v[{PBF}:{PBF + 1}]\ns_branch L_prepB_back')
    p.label('L_prepD')
    p.forget()
    p(f'''
    s_cmp_ge_u32 s{sW}, 4
    s_cbranch_scc1 L_prepDr
    s_lshl_b32 s72, s{sW}, 10
    s_add_u32 s73, s72, {PB}
    v_lshl_add_u32 v{va}, v1, 4, s73
    ds_read_b128 v[{PBF}:{PBF + 3}], v{va}
    s_lshl_b32 s73, s{sTASK}, 12
    s_add_u32 s72, s72, s73
    s_add_u32 s72, s72, {WS_WF}
    v_lshlrev_b32 v{va}, 4, v1
    buffer_store_dwordx4 v[{PBF}:{PBF + 3}], v{va}, {WSR}, s72 offen sc1
    s_branch L_prepDr
    ''')
    p.forget()


def fill_list():
    o = [f's_mov_b32 m0, s{sLA}']
    o += [f'buffer_load_dwordx4 v{vDA}, {WSR}, s{sGO} offen offset:{1024 * j} sc1 lds' for j in range(4)]
    o += [f's_add_u32 m0, s{sLA}, 4096\ns_add_u32 s92, s{sGO}, 4096']
    o += [f'buffer_load_dwordx4 v{vDA}, {WSR}, s92 offen offset:{1024 * j} sc1 lds' for j in range(4)]
    o += [f's_mul_i32 s92, s{sSL}, 81920\ns_lshl_b32 s93, s{sW}, 11\ns_add_u32 m0, s93, {TBL + 65536}\n'
          f's_add_u32 s92, s92, s93\ns_add_u32 s92, s92, {WS_G + 65536}\nv_lshlrev_b32 v{vT3}, 4, v1']
    o += [f'buffer_load_dwordx4 v{vT3}, {WSR}, s92 offen offset:{1024 * j} sc1 lds' for j in range(2)]
    return o


def emit_prologue(p):
    p('s_cmp_ge_u32 s2, 256\ns_cbranch_scc1 L_end')
    if Cfg.st:
        p(f's_memrealtime s[90:91]\ns_waitcnt lgkmcnt(0)\nv_writelane_b32 v{vST}, s90, 21')
    stamp(p, 'entry')
    p(f"""
    s_load_dwordx8 s[32:39], s[0:1], 0
    s_load_dwordx4 s[92:95], s[0:1], 80
    s_load_dwordx8 s[60:67], s[0:1], 32
    s_load_dwordx4 s[68:71], s[0:1], 64
    v_readfirstlane_b32 s{sW}, v0
    v_and_b32 v1, 63, v0
    s_and_b32 s{sXC}, s2, 7
    s_lshr_b32 s{sR}, s2, 3
    s_lshr_b32 s{sW}, s{sW}, 6
    """)
    p('s_getpc_b64 s[96:97]')
    p.raw('L_pc:')
    p(f"""
    s_lshl_b32 s98, s{sR}, 3
    s_add_u32 s98, s98, s{sW}
    s_lshl_b32 s98, s98, 7
    v_lshl_add_u32 v{vT0}, v1, 1, s98
    v_min_u32 v{vT0}, L_code_end-L_pc-4, v{vT0}
    v_and_b32 v{vT0}, -4, v{vT0}
    global_load_dword v3, v{vT0}, s[96:97]
    v_lshlrev_b32 v{vT3}, 3, v0
    s_mul_i32 s96, s2, 2560
    v_mov_b32 v64, 0x{PAD:x}
    v_mov_b32 v65, v64
    v_mov_b32 v66, v64
    v_mov_b32 v67, v64
    v_lshlrev_b32 v70, 4, v0
    v_lshlrev_b32 v71, 2, v0
    v_lshlrev_b32 v72, 7, v1
    v_add_u32 v72, {BUCK}, v72
    v_lshlrev_b32 v73, 2, v1
    s_waitcnt lgkmcnt(0)
    {f"s_add_u32 s94, s94, {Cfg.wsoff}" if Cfg.wsoff else ""}
    {"s_addc_u32 s95, s95, 0" if Cfg.wsoff else ""}
    s_load_dword s78, s[94:95], {WS_TAG}
    """)
    srd(p, sDST, 36, 640000)
    srd(p, sSRC, 34, 640000)
    p(f"""
    buffer_load_dwordx2 v[56:57], v{vT3}, s[{sDST}:{sDST + 3}], s96 offen
    buffer_load_dwordx2 v[58:59], v{vT3}, s[{sSRC}:{sSRC + 3}], s96 offen
    ds_write_b128 v70, v[64:67] offset:{BUCK}
    ds_write_b32 v73, v72 offset:{CNT1}
    """)
    stamp(p, 'srd')
    srd(p, sWS, 94, 0x10000000 - Cfg.wsoff)
    srd(p, sX_, 32, 2560000)
    srd(p, sDIS, 38, 20000)
    srd(p, sOUT, 70, 2560000)
    p(f"""
    s_and_b32 s{sJ}, s{sR}, 7
    s_lshr_b32 s{sSL}, s{sR}, 3
    s_lshl_b32 s96, s{sXC}, 2
    s_add_u32 s{sSL}, s{sSL}, s96
    s_lshl_b32 s{sU}, s{sW}, 3
    s_add_u32 s{sU}, s{sU}, s{sJ}
    s_mov_b32 s{sSPIN}, 0
    v_lshrrev_b32 v{vT1}, 3, v1
    v_and_b32 v{vT2}, 7, v1
    v_cmp_eq_u32 s[74:75], 7, v{vT2}
    v_lshlrev_b32 v{vT2}, 4, v{vT2}
    v_lshl_add_u32 v75, v{vT1}, 15, v{vT2}
    s_lshl_b32 s72, s{sW}, 18
    s_lshl_b32 s97, s2, 7
    s_add_u32 s72, s72, s97
    s_add_u32 s72, s72, {WS_D}
    """)
    p(f"""
    v_and_b32 v{vT0}, 7, v1
    v_lshrrev_b32 v{vT1}, 3, v1
    v_lshlrev_b32 v{vT2}, 8, v{vT0}
    v_lshl_add_u32 v{vT2}, v{vT1}, 4, v{vT2}
    s_lshl_b32 s96, s2, 13
    s_lshr_b32 s97, s{sW}, 1
    s_lshl_b32 s92, s97, 11
    s_and_b32 s94, s{sW}, 1
    s_lshl_b32 s95, s94, 7
    s_add_u32 s92, s92, s95
    s_add_u32 s92, s92, s96
    s_mov_b32 s80, s92
    s_lshr_b32 s96, s96, 2
    s_add_u32 s96, s96, s95
    s_add_u32 s96, s96, {8192 * 256}
    s_mov_b32 s81, s96
    v_mov_b32 v112, v{vT2}
    v_mul_u32_u24 v{vT1}, 640, v{vT1}
    v_lshl_add_u32 v{vT1}, v{vT0}, 3, v{vT1}
    s_mul_i32 s94, s94, 5120
    v_add_u32 v109, s94, v{vT1}
    s_lshl_b32 s97, s97, 6
    v_add_u32 v108, s97, v109
    v_lshlrev_b32 v{vT0}, 4, v1
    v_and_b32 v{vT0}, 16, v{vT0}
    s_waitcnt lgkmcnt(0)
    s_barrier
    s_add_u32 s78, s78, 0x100
    s_lshr_b32 s79, s78, 4
    s_not_b32 s79, s79
    s_and_b32 s79, s79, 15
    s_and_b32 s78, s78, -16
    s_or_b32 s{sTAG}, s78, s79
    s_not_b32 s{sNEG + 1}, s{sTAG}
    v_mov_b32 v{vNON}, s{sTAG}
    s_mov_b32 s79, 0x3c000
    v_lshrrev_b32 v{vT0}, v{vT0}, v{vNON}
    """)
    for r in range(4):
        p(f'v_lshlrev_b32 v{PS + r}, {14 - 4 * r}, v{vT0}\nv_and_b32 v{PS + r}, s79, v{PS + r}')
    stamp(p, 'init issued')


def emit_g1(p):
    p(f"""
    s_waitcnt vmcnt(0)
    s_and_b32 s82, s{sR}, 3
    s_cbranch_scc0 L_nox2
    buffer_load_dwordx4 v[100:103], v112, s[{sX_}:{sX_ + 3}], s80 offen
    buffer_load_dwordx4 v[104:107], v112, s[{sX_}:{sX_ + 3}], s81 offen
    s_cmp_lg_u32 s82, 1
    s_cbranch_scc1 L_nox2
    s_sub_u32 s80, s80, 65536
    s_sub_u32 s81, s81, 16384
    buffer_load_dwordx4 v[116:119], v112, s[{sX_}:{sX_ + 3}], s80 offen
    buffer_load_dwordx4 v[120:123], v112, s[{sX_}:{sX_ + 3}], s81 offen
    """)
    p.vm.pop()
    p.vm.pop()
    p.raw('L_nox2:')
    p(f"""
    s_cmp_ge_u32 s{sW}, 5
    s_cbranch_scc1 L_g1_skip
    s_cmp_ge_u32 s2, 250
    s_cbranch_scc1 L_g1_skip
    s_movk_i32 s96, 0xfc00
    v_mov_b32 v{vT0}, 4
    """)
    vm = list(p.vm)
    for i in range(2):
        p(f"""
        v_lshrrev_b32 v{vT1}, 5, v{56 + i}
        v_lshl_or_b32 v{58 + i}, v{56 + i}, 18, v{58 + i}
        v_and_b32 v{vT2}, -4, v{vT1}
        v_lshl_add_u32 v{vT1}, v{vT1}, 2, s96
        v_min_u32 v{vT1}, v{vT1}, v{vT2}
        ds_add_rtn_u32 v{60 + i}, v{vT1}, v{vT0} offset:{CNT1}
        """)
    p('ds_write_b32 v60, v58\nds_write_b32 v61, v59\ns_waitcnt lgkmcnt(0)')
    p.vm = vm
    p.label('L_g1_skip')
    stamp(p, 'g1')
    p(f"""
    s_barrier
    ds_read_b32 v74, v73 offset:{CNT1}
    ds_read_b128 v[64:67], v70 offset:{BUCK}
    s_sub_u32 s{sTASK}, s2, 8
    s_cmp_eq_u32 s{sTASK}, 17
    s_cselect_b32 s{sTASK}, 99, s{sTASK}
    s_lshr_b32 s{sBU}, s{sR}, 2
    s_lshl_b32 s{sBU}, s{sBU}, 3
    s_add_u32 s{sBU}, s{sBU}, s{sXC}
    v_sub_u32 v74, v74, v72
    v_cmp_lt_u32 vcc, 0x7c, v74
    s_cmp_lg_u64 vcc, 0
    s_cselect_b32 s97, 1, 0
    s_sub_u32 s97, 0x{PAD:x}, s97
    v_mov_b32 v74, s97
    v_xor_b32 v64, v64, v{PS}
    v_cndmask_b32 v67, v67, v74, s[74:75]
    v_xor_b32 v65, v65, v{PS + 1}
    v_xor_b32 v66, v66, v{PS + 2}
    v_xor_b32 v67, v67, v{PS + 3}
    buffer_store_dwordx4 v[64:67], v75, {WSR}, s72 offen sc1
    """)
    stamp(p, 'b1 out')
    p(f"""
    s_getreg_b32 s99, hwreg(HW_REG_XCC_ID, 0, 4)
    s_add_u32 s96, s99, 1
    v_mov_b32 v{vFV}, s96
    s_lshl_b32 s96, s2, 7
    s_add_u32 s96, s96, {F_G0}
    v_lshl_add_u32 v{vUB}, v1, 15, s96
    s_cmp_eq_u32 s82, 0
    s_cbranch_scc1 L_builder
    """)
    emit_common(p)
    Cfg.vm_builder = list(p.vm)
    emit_imgpat(p)
    xw = lambda r, o: f"""
    ds_write_b64 v108, v[{r}:{r + 1}] offset:{o}
    ds_write_b64 v108, v[{r + 2}:{r + 3}] offset:{o + 320}
    ds_write_b64 v109, v[{r + 4}:{r + 5}] offset:{o + 256}
    ds_write_b64 v109, v[{r + 6}:{r + 7}] offset:{o + 576}
    """
    p(xw(100, 0))
    vm_ = list(p.vm)
    p('s_cmp_lg_u32 s82, 1\ns_cbranch_scc1 L_nox3\ns_waitcnt vmcnt(6)')
    p(xw(116, 40960))
    p.vm = vm_
    p.label('L_nox3')
    stamp(p, 'x in')
    p('s_waitcnt lgkmcnt(0)\ns_barrier')

    def rows(o, d0, k0, k1, t):
        p(f"""
        ds_read_b128 v[100:103], v70 offset:{o}
        ds_read_b128 v[104:107], v70 offset:{o + 8192}
        v_and_b32 v113, 0xffff0000, v{d0}
        v_lshlrev_b32 v112, 16, v{d0}
        v_and_b32 v115, 0xffff0000, v{d0 + 1}
        v_lshlrev_b32 v114, 16, v{d0 + 1}
        """)
        for x in scale_g(D0, 112, 100, GA) + scale_g(D1, 113, 102, GA + 2):
            p(x)
        p(f'buffer_store_dwordx4 v[{GA}:{GA + 3}], v{k0}, {WSR}, s{sGO} offen sc1')
        p(f's_cmp_ge_u32 s{sW}, 2\ns_cbranch_scc1 L_g0b{t}')
        for x in scale_g(D0, 114, 104, HA) + scale_g(D1, 115, 106, HA + 2):
            p(x)
        p(f'buffer_store_dwordx4 v[{HA}:{HA + 3}], v{k1}, {WSR}, s{sGO} offen sc1')
        p.label(f'L_g0b{t}')
        p('s_waitcnt lgkmcnt(0)')
    rows(0, 110, vK0, vK1, 'a')
    p('s_cmp_lg_u32 s82, 1\ns_cbranch_scc1 L_nox4')
    rows(40960, 124, 126, 127, 'b')
    p.label('L_nox4')
    emit_g0_flag(p, 0, 'a')
    stamp(p, 'g0 flag')
    p('s_branch L_fill0')


def emit_common(p, builder=False):
    p(f"""
    s_lshl_b32 s96, s2, 8
    s_lshr_b32 s97, s96, 2
    s_add_u32 s97, s97, {65536 - 256}
    s_mov_b32 s92, 81920
    s_lshl_b32 s94, s{sW}, 6
    """)
    for v, add, dd, ka in ((vK0, 0, 110, sKA), (vK1, 512, 111, 78)):
        p(f"""
        v_add_u32 v{vT0}, s94, v1
        v_add_u32 v{vT0}, {add}, v{vT0}
        v_mul_u32_u24 v{vT1}, 3277, v{vT0}
        v_lshrrev_b32 v{vT1}, 16, v{vT1}
        v_mul_u32_u24 v{vT2}, 20, v{vT1}
        v_sub_u32 v{vT2}, v{vT0}, v{vT2}
        v_mov_b32 v{vT0}, s97
        v_mov_b32 v{vT3}, s96
        v_cmp_gt_u32 vcc, 16, v{vT2}
        v_mul_lo_u32 v{vT1}, v{vT1}, s92
        v_cndmask_b32 v{vT0}, v{vT0}, v{vT3}, vcc
        v_lshl_add_u32 v{vT0}, v{vT2}, 4, v{vT0}
        v_add_u32 v{v}, v{vT1}, v{vT0}
        """)
        if not builder:
            p(f"""
            v_lshrrev_b32 v{vT0}, 2, v{vT0}
            buffer_load_dword v{dd}, v{vT0}, s[{sDIS}:{sDIS + 3}], 0 offen
            v_mov_b32 v{vT1}, 512
            v_mov_b32 v{vT3}, 0x800
            v_cndmask_b32 v{vT1}, v{vT1}, v{vT3}, vcc
            v_sub_u32 v{dd + 16}, v{v}, v{vT1}
            v_lshrrev_b32 v{vT1}, 2, v{vT1}
            v_sub_u32 v{vT0}, v{vT0}, v{vT1}
            buffer_load_dword v{dd + 14}, v{vT0}, s[{sDIS}:{sDIS + 3}], 0 offen
            """)
    if not builder:
        p(f"""
        s_bitcmp1_b32 s{sW}, 0
        s_cselect_b32 s72, s62, s60
        s_cselect_b32 s73, s63, s61
        s_cselect_b32 s74, s66, s64
        s_cselect_b32 s75, s67, s65
        s_bitcmp1_b32 s{sW}, 1
        s_cselect_b32 s72, s74, s72
        s_cselect_b32 s73, s75, s73
        s_lshr_b32 s92, s{sR}, 2
        s_sub_u32 s92, s{sR}, s92
        s_sub_u32 s92, s92, 1
        s_lshl_b32 s92, s92, 1
        s_lshr_b32 s93, s{sW}, 2
        s_add_u32 s92, s92, s93
        s_lshl_b32 s92, s92, 10
        v_lshl_add_u32 v{vT1}, v1, 4, s92
        v_min_u32 v{vT1}, 32764, v{vT1}
        global_load_dword v3, v{vT1}, s[72:73]
        """)
    emit_offsets(p)
    emit_sel(p)
    p(f"""
    s_lshl_b32 s96, s{sW}, 5
    v_add_u32 v{vT1}, s96, v1
    s_and_b32 s96, s2, 0xc7
    s_sub_u32 s96, s96, 256
    v_lshl_add_u32 v{vT2}, v1, 3, s96
    v_and_b32 v{vT3}, 24, v{vT1}
    v_cmp_eq_u32 vcc, 0, v{vT3}
    v_or_b32 v{vT3}, 8, v{vT1}
    v_cndmask_b32 v{vT1}, v{vT1}, v{vT3}, vcc
    v_cmp_gt_u32 vcc, 32, v1
    v_cndmask_b32 v{vT1}, v{vT2}, v{vT1}, vcc
    v_lshlrev_b32 v{vG0}, 7, v{vT1}
    s_lshl_b32 s96, s{sXC}, 15
    s_add_u32 s96, s96, {F_G0}
    v_add_u32 v{vG0}, s96, v{vG0}
    """)


def emit_g0_flag(p, n, t):
    p(f"""
    s_waitcnt vmcnt({n})
    s_barrier
    s_cmp_lg_u32 s{sW}, 0
    s_cbranch_scc1 L_ng0{t}
    s_mov_b64 exec, 0xff
    {flag_store(vUB)} sc1
    s_mov_b64 exec, -1
    """)
    p.vm.pop()
    p.raw(f'L_ng0{t}:')


def emit_offsets(p):
    p(f"""
    v_lshrrev_b32 v{vT1}, 4, v1
    v_and_b32 v{vT2}, 15, v1
    v_lshl_add_u32 v{vT1}, v{vT1}, 3, v{vT2}
    v_mov_b32 v{vT3}, 0x2000000
    v_cmp_gt_u32 vcc, 8, v{vT2}
    v_cndmask_b32 v{vBL}, v{vT3}, v{vT1}, vcc
    s_mul_i32 s96, s{sSL}, 81920
    s_lshl_b32 s97, s{sU}, 10
    s_add_u32 s97, s97, s96
    v_lshl_add_u32 v{vGA}, v1, 4, s97
    s_lshl_b32 s97, s{sU}, 8
    s_add_u32 s97, s97, s96
    s_add_u32 s97, s97, 65536
    v_lshl_add_u32 v{vGB}, v{vBL}, 3, s97
    s_mov_b32 s{sGO}, {WS_G}
    s_mov_b32 s{sTO}, {WS_TOK}
    s_lshl_b32 s97, s{sW}, 13
    s_add_u32 s{sLA}, s97, {TBL}
    s_add_u32 s97, s97, s96
    v_lshl_add_u32 v{vDA}, v1, 4, s97
    s_lshl_b32 s97, s{sW}, 12
    s_add_u32 s{sLB}, s97, {TBL + 65536}
    s_add_u32 s97, s97, s96
    s_add_u32 s97, s97, 65536
    v_lshl_add_u32 v{vDB}, v1, 4, s97
    s_lshl_b32 s96, s{sSL}, 3
    s_add_u32 s96, s96, s{sW}
    s_lshl_b32 s96, s96, 7
    v_lshl_add_u32 v{vFP}, v1, 3, s96
    s_lshl_b32 s97, s{sJ}, 3
    s_add_u32 s96, s96, s97
    v_mov_b32 v{vFO}, s96
    """)


def emit_sel(p):
    p(f"""
    v_and_b32 v80, 15, v1
    v_lshrrev_b32 v81, 4, v1
    v_and_b32 v82, 3, v80
    v_lshrrev_b32 v80, 2, v80
    v_mov_b32 v83, 0x{ONE2:x}
    v_cmp_eq_u32 vcc, v81, v82
    v_cndmask_b32 v83, 0, v83, vcc
    """)
    for b in range(4):
        p(f'v_cmp_eq_u32 vcc, {b}, v80')
        for r in range(4):
            p(f'v_cndmask_b32 v{SEL + 4 * b + r}, 0, v83, vcc')


def emit_misc_loads(p):
    p(f"""
    s_lshl_b32 s96, s{sU}, 8
    v_lshlrev_b32 v{vT1}, 2, v1
    buffer_load_dword v{vD0}, v{vT1}, s[{sDIS}:{sDIS + 3}], s96 offen
    s_lshl_b32 s96, s{sU}, 6
    s_add_u32 s96, s96, 16384
    v_lshlrev_b32 v{vT1}, 1, v{vBL}
    buffer_load_ushort v{vD2}, v{vT1}, s[{sDIS}:{sDIS + 3}], s96 offen
    """)


def emit_imgpat(p):
    a0 = 82
    for r in range(4):
        p(f'v_lshlrev_b32 v{a0}, 14, v{PS + r}\nv_and_b32 v{a0}, 0xc0000000, v{a0}\nv_and_b32 v{PS + r}, 0xc000, v{PS + r}\nv_or_b32 v{PS + r}, v{PS + r}, v{a0}')


def emit_init2(p):
    for i in range(4):
        p(f'v_mov_b32 v{76 + i}, 0x{DUMMY | DUMMY << 16:x}')
    p(f"""
    ds_write_b128 v70, v[76:79] offset:{IMG}
    ds_write_b128 v70, v[76:79] offset:{IMG + 7168}
    v_and_b32 v76, 31, v0
    v_mul_u32_u24 v77, 43, v76
    v_lshrrev_b32 v77, 8, v77
    v_mul_u32_u24 v77, 6, v77
    v_sub_u32 v76, v76, v77
    ds_write_b32 v71, v76 offset:{CC}
    ds_write_b32 v71, v76 offset:{CC + 768}
    v_and_b32 v76, 1, v0
    v_bfe_u32 v77, v0, 3, 2
    v_lshl_add_u32 v80, v76, 2, v77
    v_bfe_u32 v76, v0, 1, 2
    v_bfe_u32 v77, v0, 5, 2
    ; B node 128<=t<160
    v_bfe_u32 v78, v0, 2, 1
    v_add_u32 v78, 8, v78
    v_and_b32 v79, 3, v0
    v_bfe_u32 v81, v0, 3, 2
    v_cmp_gt_u32 vcc, 0x80, v0
    v_cndmask_b32 v80, v78, v80, vcc
    v_cndmask_b32 v76, v79, v76, vcc
    v_cndmask_b32 v77, v81, v77, vcc
    v_lshrrev_b32 v79, 1, v76
    v_lshl_add_u32 v79, v80, 1, v79
    v_lshlrev_b32 v79, 7, v79
    v_add_u32 v79, {CC}, v79
    v_lshl_add_u32 v76, v76, 4, v77
    v_lshlrev_b32 v76, 4, v76
    v_and_b32 v77, 1, v80
    v_lshl_add_u32 v76, v77, 3, v76
    v_lshrrev_b32 v77, 1, v80
    v_lshl_add_u32 v76, v77, 10, v76
    v_add_u32 v78, {IMG}, v76
    v_add_u32 v77, {CC + 2560 - 640 - 124}, v71
    v_cmp_gt_u32 vcc, 0xa0, v0
    v_cndmask_b32 v79, v77, v79, vcc
    v_mov_b32 v76, 0
    v_mov_b32 v77, {LIST}
    v_lshlrev_b32 v80, 3, v0
    v_cmp_gt_u32 vcc, 0xe0, v0
    s_and_saveexec_b64 s[92:93], vcc
    ds_write_b64 v80, v[78:79] offset:{TT}
    ds_write_b32 v71, v76 offset:{NN}
    ds_write_b32 v71, v76 offset:{OO - 256}
    ds_write_b64 v76, v[76:77] offset:{UF}
    s_mov_b64 exec, s[92:93]
    """)


def emit_b2(p):
    E, CN, TV, PF, OD, SH = 46, 62, 140, 112, 120, 128
    vDUM, vFOUR, vZ = 70, 71, 72
    a0, a1, a2, vONE, vFIVE, vMX = 82, 83, 85, 86, 87, 78
    MK = 60
    sRUN = 76
    SD = 'dst_sel:DWORD dst_unused:UNUSED_PAD'
    p.label('L_builder')
    p.vm = []
    p.lgkm = []
    p(f"""
    v_bfe_u32 v85, v1, 4, 2
    v_lshlrev_b32 v85, 5, v85
    v_lshlrev_b32 v84, 4, v1
    v_xor_b32 v84, v84, v85
    v_lshrrev_b32 v136, 1, v1
    v_lshlrev_b32 v136, 7, v136
    v_and_b32 v85, 1, v1
    v_lshl_add_u32 v136, v85, 4, v136
    v_bfe_u32 v85, v1, 2, 2
    v_lshl_add_u32 v136, v85, 5, v136
    s_lshl_b32 s79, s{sW}, 12
    s_add_u32 s79, s79, {SEG}
    v_add_u32 v136, s79, v136
    v_xor_b32 v137, 32, v136
    v_xor_b32 v138, 64, v136
    v_xor_b32 v139, 0x60, v136
    s_mov_b32 s77, s{sBU}
    s_lshl_b32 s98, s{sBU}, 15
    s_lshl_b32 s97, s{sW}, 12
    s_add_u32 s98, s98, s97
    s_add_u32 s98, s98, {WS_D}
    """)
    ld = ['s_mov_b32 m0, s79', 's_nop 0'] + [f'buffer_load_dwordx4 v84, {WSR}, s98 offen offset:{1024 * i} sc1 lds' for i in range(4)]
    p(f"""
    s_cmp_lg_u32 s{sW}, 7
    s_cbranch_scc1 L_ng0b
    s_mov_b64 exec, 0xff
    {flag_store(vUB)} sc1
    s_mov_b64 exec, -1
    """)
    p.vm.pop()
    p.raw('L_ng0b:')
    emit_init2(p)
    emit_common(p, True)
    p(f"""
    v_mov_b32 v{vONE}, 1
    v_mov_b32 v{vFIVE}, 5
    v_mov_b32 v{vMX}, 0
    s_lshl_b32 s96, s77, 9
    s_lshl_b32 s97, s77, 7
    s_add_u32 s97, s97, 32256
    s_movk_i32 s92, 640
    s_movk_i32 s93, 5112
    v_lshlrev_b32 v{vDUM}, 2, v1
    v_add_u32 v{vDUM}, 640, v{vDUM}
    v_mov_b32 v{vFOUR}, 4
    v_mov_b32 v{vZ}, 0
    s_waitcnt lgkmcnt(0)
    s_barrier
    """)
    if Cfg.predelay:
        p(f's_sleep {Cfg.predelay}')
    if Cfg.probe:
        p('s_mov_b32 exec_lo, 0x01010101\ns_mov_b32 exec_hi, 0x01010101')
        p.label('L_probe')
        p(f'buffer_load_dwordx4 v[{E}:{E + 3}], v84, {WSR}, s98 offen offset:3072 sc1')
        p(f's_add_u32 s{sSPIN}, s{sSPIN}, 1\ns_cmp_gt_u32 s{sSPIN}, {SPIN_MAX}\ns_cbranch_scc1 L_end')
        for i in range(4):
            p(f'v_xor_b32 v{CN + i}, v{E + i}, v{PS + i}')
        p(f"""
        v_or3_b32 v{a0}, v{CN}, v{CN + 1}, v{CN + 2}
        v_or_b32 v{a0}, v{a0}, v{CN + 3}
        v_and_b32 v{a0}, 0x3c000, v{a0}
        v_cmp_ne_u32 vcc, 0, v{a0}
        s_cbranch_vccz L_probed
        s_sleep {Cfg.pnap}
        s_branch L_probe
        """)
        p.label('L_probed')
        p('s_mov_b64 exec, -1')
    p.label('L_segagain')
    for x in ld:
        p(x)
    p(f's_add_u32 s{sSPIN}, s{sSPIN}, 1\ns_cmp_gt_u32 s{sSPIN}, {SPIN_MAX}\ns_cbranch_scc1 L_end\ns_waitcnt vmcnt(0)')
    for i in range(4):
        p(f'ds_read_b128 v[{E + 4 * i}:{E + 4 * i + 3}], v{136 + i}')
    for i in range(16):
        p(f'v_xor_b32 v{E + i}, v{E + i}, v{PS + (i & 3)}')
    p(f'v_or3_b32 v{a0}, v{E}, v{E + 1}, v{E + 2}')
    for i in range(3, 15, 2):
        p(f'v_or3_b32 v{a0}, v{a0}, v{E + i}, v{E + i + 1}')
    p(f"""
    v_or_b32 v{a0}, v{a0}, v{E + 15}
    v_and_b32 v{a0}, 0x3c000, v{a0}
    v_cmp_ne_u32 vcc, 0, v{a0}
    s_cbranch_vccnz L_segagain
    """)
    stamp(p, 'seg issued')
    m = lambda i: f's[{MK + 2 * i}:{MK + 2 * i + 1}]'
    for i in range(8):
        p(f"""
        v_lshrrev_b32 v{a0}, 16, v{E + i}
        v_subrev_u32 v{a1}, s96, v{a0}
        v_subrev_u32 v{a0}, s97, v{a0}
        v_min3_u32 v{CN + i}, v{a0}, v{a1}, v{vDUM}
        v_lshlrev_b32 v{a0}, 1, v{CN + i}
        ds_read_b64 v[{TV + 2 * i}:{TV + 2 * i + 1}], v{a0} offset:{TT}
        v_and_b32 v{SH + i}, 31, v{E + i}
        """)
    for i in range(8):
        p(f"""
        v_lshl_add_u32 v{PF + i}, v{SH + i}, 2, v{TV + 2 * i + 1}
        ds_inc_rtn_u32 v{PF + i}, v{PF + i}, v{vFIVE}
        """)
    p('s_mov_b32 s94, 0xfffc0000')
    p(f'v_min3_u32 v{a0}, v{E + 8}, v{E + 9}, v{E + 10}\nv_min3_u32 v{a1}, v{E + 11}, v{E + 12}, v{E + 13}')
    p(f'v_min3_u32 v{a0}, v{a0}, v{E + 14}, v{E + 15}\nv_min_u32 v{a0}, v{a0}, v{a1}\nv_cmp_gt_u32 vcc, s94, v{a0}\ns_cbranch_vccnz L_rare')
    p.raw('L_rared:')
    q = Prog()
    q.auto = False
    for i in range(8, 16):
        l = lbl('rs')
        q(f"""
        v_cmp_gt_u32 vcc, s94, v{E + i}
        s_cbranch_vccz {l}
        s_mov_b64 exec, vcc
        ds_add_rtn_u32 v{a2}, v{vZ}, v{vFOUR} offset:{UF + 4}
        s_waitcnt lgkmcnt(0)
        ds_write_b32 v{a2}, v{E + i}
        s_mov_b64 exec, -1
        """)
        q.raw(l + ':')
    q('s_waitcnt lgkmcnt(0)')
    LATE.append(('L_rare', [l.strip() for l in q.L], 'L_rared'))
    for i in range(8):
        p(f"""
        v_mul_u32_u24 v{SH + i}, 5, v{PF + i}
        v_lshlrev_b32 v{OD + i}, v{SH + i}, v{vONE}
        ds_add_rtn_u32 v{OD + i}, v{CN + i}, v{OD + i} offset:{NN}
        v_lshrrev_b32 v{a0}, 2, v{PF + i}
        v_mad_u32_u24 v{TV + 2 * i}, v{a0}, s93, v{TV + 2 * i}
        v_lshl_add_u32 v{TV + 2 * i}, v{PF + i}, 1, v{TV + 2 * i}
        v_cmp_gt_u32 {m(i)}, s92, v{CN + i}
        """)
    stamp(p, 'b2 atomics')
    for i in range(8):
        p(f"""
        v_bfe_u32 v{a1}, v{OD + i}, v{SH + i}, 5
        s_mov_b64 exec, {m(i)}
        v_cmp_gt_u32 vcc, 4, v{a1}
        v_lshl_add_u32 v{a0}, v{a1}, 6, v{TV + 2 * i}
        v_max_u32 v{vMX}, v{vMX}, v{a1}
        s_andn2_b64 {m(i)}, {m(i)}, vcc
        s_mov_b64 exec, vcc
        ds_write_b16 v{a0}, v{E + i}
        s_mov_b64 exec, {m(i)}
        ds_add_rtn_u32 v{PF + i}, v{vZ}, v{vFOUR} offset:{UF + 4}
        s_mov_b64 exec, -1
        """)
    for i in range(8):
        p(f's_mov_b64 exec, {m(i)}\nds_write_b32 v{PF + i}, v{E + i}')
    a, r_ = lbl('ov'), lbl('ovr')
    p(f"""
    s_mov_b64 exec, -1
    v_mov_b32 v{a1}, 0x{PAD - 1:x}
    v_cmp_eq_u32 vcc, v{a1}, v{E + 15}
    v_cmp_eq_u32 s[60:61], 31, v{vMX}
    s_or_b64 vcc, vcc, s[60:61]
    s_cbranch_vccnz {a}
    """)
    p.raw(r_ + ':')
    LATE.append((a, [f'v_mov_b32 v{a0}, 0x100000', f'ds_or_b32 v{vZ}, v{a0} offset:{UF}', 's_waitcnt lgkmcnt(0)'], r_))
    e, c, o, F, T, Q, S = 62, 63, 64, 65, 66, 68, 69
    emit_imgpat(p)
    p(f"""
    s_mul_i32 s94, s{sW}, 1920
    v_lshl_add_u32 v{vT3}, v1, 4, s94
    v_mov_b32 v{vT1}, 0
    v_lshlrev_b32 v{c}, 2, v0
    v_add_u32 v{c}, {LIST}, v{c}
    s_waitcnt lgkmcnt(0)
    s_barrier
    """)
    stamp(p, 'b2 pass1')
    a, r_ = lbl('ov'), lbl('ovr')
    p(f"""
    ds_read_b32 v{o}, v{vZ} offset:{UF + 4}
    ds_read_b32 v{e}, v{c}
    v_cmp_lt_u32 s[60:61], v{c}, v{o}
    v_cmp_lt_u32 vcc, {LIST + 2048}, v{o}
    s_cbranch_vccnz {a}
    """)
    p.raw(r_ + ':')
    LATE.append((a, [f'v_mov_b32 v{a0}, 0x100000', f'ds_or_b32 v{vZ}, v{a0} offset:{UF}', 's_waitcnt lgkmcnt(0)'], r_))
    p(f"""
    v_lshrrev_b32 v{a0}, 16, v{e}
    v_subrev_u32 v{a1}, s96, v{a0}
    v_subrev_u32 v{a0}, s97, v{a0}
    v_min_u32 v{c}, v{a0}, v{a1}
    v_cmp_gt_u32 vcc, s92, v{c}
    v_lshlrev_b32 v{a0}, 1, v{c}
    s_and_b64 s[60:61], s[60:61], vcc
    s_cbranch_scc0 L_p2done
    s_mov_b64 exec, s[60:61]
    ds_add_rtn_u32 v{o}, v{c}, v{vONE} offset:{OO}
    ds_read_b32 v{F}, v{c} offset:{NN}
    ds_read_b64 v[{T}:{T + 1}], v{a0} offset:{TT}
    v_mov_b32 v{Q}, 0
    v_mov_b32 v{S}, 0
    """)
    for qq in range(6):
        p(f"""
        v_bfe_u32 v{a0}, v{F}, {5 * qq}, 5
        v_sub_u32 v{a1}, 4, v{a0} clamp
        v_cmp_lt_u32 vcc, v{o}, v{a1}
        v_add_u32 v{a0}, v{a0}, v{o}
        v_sub_u32 v{o}, v{o}, v{a1}
        v_cndmask_b32 v{S}, v{S}, v{a0}, vcc
        """)
        if qq:
            p(f'v_cndmask_b32 v{Q}, v{Q}, {qq}, vcc')
    p(f"""
    v_lshrrev_b32 v{a0}, 2, v{o}
    v_add_u32 v{a0}, 6, v{a0}
    v_and_b32 v{a1}, 3, v{o}
    v_cmp_le_i32 vcc, 0, v{o}
    v_cndmask_b32 v{Q}, v{Q}, v{a0}, vcc
    v_cndmask_b32 v{S}, v{S}, v{a1}, vcc
    v_lshrrev_b32 v{a0}, 2, v{Q}
    v_mad_u32_u24 v{a0}, v{a0}, s93, v{T}
    v_lshl_add_u32 v{a0}, v{Q}, 1, v{a0}
    v_lshl_add_u32 v{a0}, v{S}, 6, v{a0}
    v_subrev_u32 v{T}, {CC}, v{T + 1}
    v_lshrrev_b32 v{T}, 8, v{T}
    v_lshlrev_b32 v{T}, v{T}, v{vONE}
    v_lshlrev_b32 v{F}, 10, v{T}
    v_cmp_lt_u32 vcc, 7, v{Q}
    v_cndmask_b32 v{F}, 0, v{F}, vcc
    v_or_b32 v{T}, v{T}, v{F}
    v_mov_b32 v{F}, 0x100000
    v_cmp_lt_u32 vcc, 9, v{Q}
    v_cndmask_b32 v{F}, 0, v{F}, vcc
    v_or_b32 v{T}, v{T}, v{F}
    v_cmp_gt_u32 vcc, 12, v{Q}
    s_and_b64 exec, s[60:61], vcc
    ds_write_b16 v{a0}, v{e}
    s_mov_b64 exec, s[60:61]
    v_cmp_lt_u32 vcc, 5, v{Q}
    s_and_b64 exec, exec, vcc
    ds_or_b32 v{vT1}, v{T} offset:{UF}
    s_mov_b64 exec, -1
    """)
    p.label('L_p2done')
    p(f"""
    s_lshl_b32 s96, s77, 14
    s_add_u32 s96, s96, {WS_D2}
    s_waitcnt lgkmcnt(0)
    s_barrier
    """)
    stamp(p, 'b2 done')
    p(f"""
    ds_read_b128 v[{E}:{E + 3}], v{vT3} offset:{IMG}
    ds_read_b128 v[{E + 4}:{E + 7}], v{vT3} offset:{IMG + 1024}
    ds_read_b32 v{vFV}, v{vT1} offset:{UF}
    s_lshl_b32 s97, s77, 7
    s_add_u32 s97, s97, {F_B2}
    v_lshl_add_u32 v{vT2}, v1, 13, s97
    """)
    for i in range(8):
        p(f'v_xor_b32 v{E + i}, v{E + i}, v{PS + (i & 3)}')
    p(f"""
    buffer_store_dwordx4 v[{E}:{E + 3}], v{vT3}, {WSR}, s96 offen sc1
    s_mov_b32 exec_hi, 0xffffff
    buffer_store_dwordx4 v[{E + 4}:{E + 7}], v{vT3}, {WSR}, s96 offen offset:1024 sc1
    s_mov_b64 exec, -1
    v_or_b32 v{vFV}, 0x80000000, v{vFV}
    s_cmp_lg_u32 s{sW}, 7
    s_cbranch_scc1 L_nohdr
    s_mov_b64 exec, 0xff
    {flag_store(vT2)} sc1
    s_mov_b64 exec, -1
    """)
    p.vm.pop()
    p.label('L_nohdr')
    stamp(p, 'b2 flag')
    p(f's_mov_b32 s{sTASK}, 17')
    p.label('L_fill0')
    p.forget()
    emit_misc_loads(p)
    p(f"""
    s_lshl_b32 s96, s{sU}, 7
    s_lshl_b32 s97, s{sXC}, 13
    s_add_u32 s96, s96, s97
    s_add_u32 s96, s96, {F_B2}
    v_mov_b32 v{vT3}, s96
    s_bfe_u32 s96, s2, 0x30002
    s_lshl_b32 s96, s96, 12
    s_add_u32 s96, s96, {F_TOK}
    v_lshl_add_u32 v{vTP}, v1, 7, s96
    s_lshl_b32 s96, s{sJ}, 5
    s_add_u32 s96, s96, s{sSL}
    s_lshl_b32 s96, s96, 7
    s_add_u32 s96, s96, {F_TOK}
    v_mov_b32 v{vTF}, s96
    s_mov_b32 s{sK}, 1
    s_lshl_b32 s96, s{sU}, 10
    s_add_u32 s96, s96, {TBL}
    v_lshl_add_u32 v{vOWN}, v1, 4, s96
    v_lshrrev_b32 v{vT0}, 3, v1
    v_lshlrev_b32 v{vT0}, 7, v{vT0}
    v_and_b32 v{vT1}, 7, v1
    v_lshl_add_u32 v{vT0}, v{vT1}, 3, v{vT0}
    s_lshl_b32 s96, s{sSL}, 10
    s_lshl_b32 s97, s{sW}, 8
    s_add_u32 s96, s96, s97
    v_add_u32 v230, s96, v{vT0}
    s_cmp_eq_u32 s{sW}, 7
    s_cselect_b64 vcc, -1, 0
    v_cndmask_b32 v230, v230, v{vTP}, vcc
    v_min_u32 v{vT1}, 16, v1
    v_and_b32 v{vT0}, 7, v{vT1}
    v_lshlrev_b32 v{vT0}, 9, v{vT0}
    v_lshrrev_b32 v{vT1}, 3, v{vT1}
    v_lshl_add_u32 v{vT0}, v{vT1}, 12, v{vT0}
    v_add_u32 v{vT0}, {F_TOK + 4096}, v{vT0}
    s_cmp_eq_u32 s{sW}, 6
    s_cselect_b64 vcc, -1, 0
    v_cndmask_b32 v230, v230, v{vT0}, vcc
    s_mov_b32 s87, 0
    s_mov_b32 s{sFC}, 3
    s_mov_b32 s{sFA}, 4
    s_mov_b32 s{sFB}, 5
    s_mov_b32 s{sTO}, {WS_TOK + TOK_PL}
    """)
    for i in range(7):
        p(f's_add_u32 s95, s{sJ}, {i + 1}\ns_and_b32 s95, s95, 7\ns_lshl_b32 s{sOFF + i}, s95, 10')
    p('s_mov_b32 s92, 0x200000\ns_mov_b32 s93, 0')
    poll(p, vT3, 1, '0x80000000', bound='s[92:93]', nap=Cfg.hnap)
    p(f"""
    v_readfirstlane_b32 s{sQ}, v{vPL}
    v_lshlrev_b32 v{vT3}, 4, v1
    s_lshl_b32 s88, s{sU}, 14
    s_add_u32 s88, s88, {WS_D2}
    s_add_u32 s89, s88, 5120
    s_mov_b32 s78, {TBL}
    """)
    if Cfg.force_slow:
        p(f's_and_b32 s96, s{sU}, {Cfg.force_slow - 1}\ns_cselect_b32 s96, 0, 0x100000\ns_or_b32 s{sQ}, s{sQ}, s96')
    stamp(p, 'hdr seen')
    il = img_loads()
    n1 = 2 * Cfg.pre_pairs
    p(f's_mov_b32 exec_hi, 0xff\n{poll_load(vG0, vPL)}\ns_mov_b64 exec, -1')
    for x in il[:n1]:
        p(x)
    p(f"""
    v_and_b32 v{vD1}, 0xffff0000, v{vD0}
    v_lshlrev_b32 v{vD0}, 16, v{vD0}
    v_lshlrev_b32 v{vD2}, 16, v{vD2}
    v_mov_b32 v{vT2}, 0
    v_mov_b32 v{vFV}, 3
    """)
    poll(p, vG0, 40, 1, first_issued=True, nap=Cfg.gnap)
    p(f"""
    v_subrev_u32 v{vT1}, 1, v{vPL}
    v_cmp_ne_u32 vcc, s99, v{vT1}
    v_mov_b32 v{vG0}, v230
    s_and_b32 s{sSLOW}, vcc_hi, 0xff
    """)
    stamp(p, 'g0 seen')
    for x in fill_list():
        p(x)
    for x in il[n1:]:
        p(x)
    p(f's_waitcnt vmcnt({10 - n1})\ns_barrier')
    xstore(p, ['s_mov_b64 exec, 1', flag_store(vFO), 's_mov_b64 exec, -1'])
    stamp(p, 'ready')
    p(f's_and_b32 s96, s{sQ}, 0x1ffc00\ns_cbranch_scc1 L_imp')
    p.auto = False
    emit_gather(p, True)
    p('s_branch L_gath_done')
    p.auto = True
    p.label('L_impagain')
    p(f's_add_u32 s{sSPIN}, s{sSPIN}, 1\ns_cmp_gt_u32 s{sSPIN}, {SPIN_MAX}\ns_cbranch_scc1 L_end\ns_setprio 0\ns_waitcnt vmcnt(0) lgkmcnt(0)')
    for x in img_loads():
        p(x)
    p.label('L_imp')
    p.forget()
    p(f's_add_u32 s96, s88, 10240\ns_add_u32 s97, s88, 14336\nv_mov_b32 v{vT2}, 0')
    for c in range(10, 15):
        p(f'buffer_load_dwordx4 v[{imgreg(c)}:{imgreg(c) + 3}], v{vT3}, {WSR}, s{96 + (c - 10) // 4} offen offset:{1024 * ((c - 10) % 4)} sc1')
    p('s_waitcnt vmcnt(0)')
    for c in range(15):
        for x in unpack(c):
            p(x)
    p(f"""
    v_and_b32 v{vT2}, 0xc000c000, v{vT2}
    v_cmp_ne_u32 vcc, 0, v{vT2}
    s_cbranch_vccnz L_impagain
    s_branch L_hop1b
    """)


imgreg = lambda c: 46 + 4 * c if c < 10 else 200 + 4 * (c - 10)


def img_loads():
    o = []
    for i in range(5):
        for h in range(2):
            c = i + 5 * h
            so, off = (f's{88 + h}', 1024 * i) if i < 4 else ('s96', 0)
            if i == 4:
                o.append(f's_add_u32 s96, s{88 + h}, 4096')
            o.append(f'buffer_load_dwordx4 v[{imgreg(c)}:{imgreg(c) + 3}], v{vT3}, {WSR}, {so} offen offset:{off} sc1')
    return o


def unpack(c):
    r = imgreg(c)
    o = [f'v_xor_b32 v{r + i}, v{r + i}, v{PS + i}' for i in range(4)]
    o += [f'v_or3_b32 v{vT2}, v{vT2}, v{r}, v{r + 1}', f'v_or3_b32 v{vT2}, v{vT2}, v{r + 2}, v{r + 3}']
    for i in range(4):
        b, q = 2 * (c % 5) + (i >> 1), 4 * (c // 5) + 2 * (i & 1)
        if q < 10:
            o.append(f'v_mad_u32_u16 v{ADDR(b, q)}, v{r + i}, 8, s78')
            o.append(f'v_mad_u32_u16 v{ADDR(b, q + 1)}, v{r + i}, 8, s78 op_sel:[1,0,0,0]')
    return o


def emit_reads(p, b):
    rd = lambda q: f'ds_read_b64_tr_b16 v[{DATA(b, q)}:{DATA(b, q) + 1}], v{ADDR(b, q)}'
    for q in range(6):
        p(rd(q))
    a, r = lbl('r'), lbl('rr')
    p(f's_bitcmp1_b32 s{sQ}, {b}\ns_cbranch_scc1 {a}')
    p.raw(r + ':')
    LATE.append((a, [rd(6), rd(7), f's_bitcmp1_b32 s{sQ}, {10 + b}', f's_cbranch_scc0 {r}', rd(8), rd(9)], r))


def emit_mfmas(p, b):
    D = (D0, D1, D2)[b >> 2]
    sel = SEL + 4 * (b & 3)
    for i in range(3):
        p(mf32(D, DATA(b, 2 * i), sel, None if (b & 3) == 0 and i == 0 else D))
    a, r = lbl('m'), lbl('mr')
    p(f's_bitcmp1_b32 s{sQ}, {b}\ns_cbranch_scc1 {a}')
    p.raw(r + ':')
    g = Ins(mf32(D, DATA(b, 6), sel, D))
    g.ghost = True
    p.hist.append(g)
    LATE.append((a, [mf32(D, DATA(b, 6), sel, D), f's_bitcmp1_b32 s{sQ}, {10 + b}', f's_cbranch_scc0 {r}', mf32(D, DATA(b, 8), sel, D)], r))


def stage_plane(p, spl):
    a = lbl('sp')
    p(f'''
    s_mul_i32 s92, s{spl}, {TOK_PL}
    s_add_u32 s92, s92, {WS_TOK}
    s_mul_i32 s93, s{spl}, {L_PL}
    s_lshl_b32 s94, s{sW}, 10
    s_add_u32 s93, s93, s94
    s_mov_b32 m0, s93
    s_cmp_ge_u32 s{sW}, 2
    buffer_load_dwordx4 v{vK0}, {WSR}, s92 offen sc1 lds
    s_cbranch_scc1 {a}
    s_add_u32 m0, s93, 8192
    s_cmp_lg_u32 0, 0
    buffer_load_dwordx4 v{vK1}, {WSR}, s92 offen sc1 lds
    ''')
    p.vm.pop()
    p.raw(a + ':')


YA, YB, LA, LB, Y = 46, 47, 48, 49, 68


E0, E1 = 50, 51


def x_addr(p):
    p(f"""
    s_lshl_b32 s93, s{sW}, 2
    v_bfe_u32 v{vT2}, v1, 3, 2
    v_add_u32 v{vT2}, s93, v{vT2}
    v_lshlrev_b32 v{YB}, 15, v{vT2}
    v_mul_u32_u24 v{LB}, 320, v{vT2}
    v_and_b32 v{vT2}, 7, v1
    v_lshl_add_u32 v{YB}, v{vT2}, 4, v{YB}
    v_lshl_add_u32 v{LB}, v{vT2}, 3, v{LB}
    v_add_u32 v{LB}, {7 * L_PL + 256}, v{LB}
    s_lshl_b32 s82, s2, 7
    s_add_u32 s82, s82, {WS_X7}
    s_lshl_b32 s92, s{sSL}, 15
    s_lshl_b32 s96, s{sU}, 9
    s_add_u32 s92, s92, s96
    v_lshl_add_u32 v{vGB}, v{vBL}, 4, s92
    v_mov_b32 v{Z2 + 2}, v{vNON}
    v_mov_b32 v{Z2 + 3}, v{vNON}
    s_lshl_b32 s96, s2, 8
    s_lshr_b32 s97, s96, 2
    s_add_u32 s97, s97, {65536 - 256}
    s_mov_b32 s92, 81920
    v_mul_u32_u24 v{vT1}, 3277, v1
    v_lshrrev_b32 v{vT1}, 16, v{vT1}
    v_mul_u32_u24 v{vT2}, 20, v{vT1}
    v_sub_u32 v{vT2}, v1, v{vT2}
    v_add_u32 v{vT1}, s93, v{vT1}
    v_mul_lo_u32 v{vT1}, v{vT1}, s92
    v_mov_b32 v{vT0}, s97
    v_mov_b32 v{vT3}, s96
    v_cmp_gt_u32 vcc, 16, v{vT2}
    v_cndmask_b32 v{E0}, v{vT0}, v{vT3}, vcc
    s_mov_b64 s[80:81], vcc
    v_lshl_add_u32 v{E0}, v{vT2}, 4, v{E0}
    v_add_u32 v{E0}, v{E0}, v{vT1}
    v_cmp_gt_u32 vcc, 12, v1
    v_cndmask_b32 v{E1}, v{vT0}, v{vT3}, vcc
    v_lshl_add_u32 v{E1}, v1, 4, v{E1}
    s_add_u32 s93, s93, 3
    s_mul_i32 s93, s93, 81920
    s_add_u32 s93, s93, 64
    v_add_u32 v{E1}, s93, v{E1}
    """)


def emit_slow_unit(p):
    n0, n1, n2, ed, es, m0_, m1_ = 200, 201, 202, 203, 204, 205, 206
    X = 208
    p.label('L_slow')
    p.forget()
    for i in range(12):
        p(f'v_mov_b32 v{D0 + i}, 0')
    p(f'''
    s_lshl_b32 s96, s{sU}, 7
    v_lshl_add_u32 v{n0}, v1, 1, s96
    v_add_u32 v{n1}, 1, v{n0}
    s_lshl_b32 s96, s{sU}, 5
    s_add_u32 s96, s96, 8192
    v_add_u32 v{n2}, s96, v{vBL}
    v_lshlrev_b32 v{X + 8}, 2, v1
    s_mov_b32 s92, 0
    s_add_u32 s94, s{sU}, 256
    ''')
    p.label('L_slow_e')
    p(f'''
    buffer_load_dword v{ed}, v{X + 8}, s[{sDST}:{sDST + 3}], s92 offen
    buffer_load_dword v{es}, v{X + 8}, s[{sSRC}:{sSRC + 3}], s92 offen
    s_waitcnt vmcnt(0)
    v_lshrrev_b32 v{m0_}, 7, v{ed}
    v_lshrrev_b32 v{m1_}, 5, v{ed}
    v_cmp_eq_u32 s[96:97], s{sU}, v{m0_}
    v_cmp_eq_u32 vcc, s94, v{m1_}
    s_or_b64 s[96:97], s[96:97], vcc
    ''')
    p.label('L_slow_b')
    p(f'''
    s_cmp_eq_u64 s[96:97], 0
    s_cbranch_scc1 L_slow_n
    s_ff1_i32_b64 s95, s[96:97]
    s_bitset0_b64 s[96:97], s95
    v_readlane_b32 s98, v{ed}, s95
    v_readlane_b32 s99, v{es}, s95
    s_lshl_b32 s99, s99, 3
    s_add_u32 s99, s99, {TBL}
    v_mov_b32 v{X + 6}, s99
    ds_read_b64 v[{X + 4}:{X + 5}], v{X + 6}
    s_waitcnt lgkmcnt(0)
    v_lshlrev_b32 v{X}, 16, v{X + 4}
    v_and_b32 v{X + 1}, 0xffff0000, v{X + 4}
    v_lshlrev_b32 v{X + 2}, 16, v{X + 5}
    v_and_b32 v{X + 3}, 0xffff0000, v{X + 5}
    ''')
    for D, n in ((D0, n0), (D1, n1), (D2, n2)):
        p(f'v_cmp_eq_u32 vcc, s98, v{n}\ns_mov_b64 exec, vcc')
        for i in range(4):
            p(f'v_add_f32 v{D + i}, v{D + i}, v{X + i}')
        p('s_mov_b64 exec, -1')
    p('s_branch L_slow_b')
    p.label('L_slow_n')
    p('s_add_u32 s92, s92, 256\ns_cmp_lt_u32 s92, 640000\ns_cbranch_scc1 L_slow_e')
    p(f's_cmp_eq_u32 s{sK}, 7\ns_cbranch_scc1 L_slow7')
    for x in finish(D0, vD0, HA, GA) + finish(D1, vD1, HA + 2, GA + 2):
        p(x)
    poll(p, vFP, 0xff, f's{sFC}')
    xstore(p, [f'buffer_store_dwordx4 v[{GA}:{GA + 3}], v{vGA}, {WSR}, s{sGO} offen'])
    emit_flag_a(p)
    emit_tok_check(p)
    p('s_branch L_gath_done')
    p.label('L_slow7')
    p.auto = False
    for x in finish(D0, vD0, HA, GA)[:6] + finish(D1, vD1, HA + 2, GA)[:6]:
        p(x)
    x_addr(p)
    p(a7_store())
    p.auto = True
    p('s_branch L_gath7_done')


def emit_flag_a(p):
    p(f'v_mov_b32 v{vFV}, s{sFA}\ns_waitcnt vmcnt(0)')
    xstore(p, ['s_mov_b64 exec, 1', flag_store(vFO), 's_mov_b64 exec, -1'])
    if Cfg.pa_early:
        p(f's_mov_b64 exec, 0xff\n{poll_load(vFP, vPL)}\ns_mov_b64 exec, -1')


def x7_store(z, vaddr, so):
    return f'buffer_store_dwordx4 v[{z}:{z + 3}], v{vaddr}, {WSR}, s{so} offen sc1'


def emit_tok_check(p):
    a, r = lbl('tc'), lbl('tcr')
    p(f's_cmp_lg_u32 s87, 0\ns_cbranch_scc1 {a}')
    p.raw(r + ':')
    q = Prog()
    poll(q, vG0, 32, 's87', first_issued=True, res=vP2, so='s40', nap=Cfg.nap)
    LATE.append((a, [l.strip() for l in q.L], r))


def a7_store():
    return f'buffer_store_dwordx4 v[{HA}:{HA + 3}], v{vGA}, {WSR}, s{sTO} offen sc1'


def alt7(p, normal, alt):
    a, r = lbl('a7'), lbl('a7r')
    p(f's_cmp_eq_u32 s{sK}, 7\ns_cbranch_scc1 {a}')
    p.opt_begin()
    normal()
    p.opt_end(r)
    q = Prog()
    q.auto = False
    q('s_nop 7')
    alt(q)
    LATE.append((a, [l.strip() for l in q.L], r))


def emit_gather(p, first=False):
    def need(b):
        if first and b % 2 == 0:
            p(f's_waitcnt vmcnt({9 - b + (1 if b > 5 else 0)})')
            for x in unpack(b // 2) + unpack(5 + b // 2):
                p(x)
    if Cfg.prio_until:
        a = lbl('np')
        p(f's_cmp_lt_u32 s{sW}, 4\ns_cbranch_scc1 {a}\ns_setprio 1')
        p.raw(a + ':')
    need(0)
    emit_reads(p, 0)
    for b in range(10):
        if b < 9:
            need(b + 1)
            emit_reads(p, b + 1)
        p(f's_waitcnt lgkmcnt({6 if b < 9 else 0})')
        emit_mfmas(p, b)
        if Cfg.tpoll_at and b == Cfg.tpoll_at and not first:
            a, r = lbl('tp'), lbl('tpr')
            p(f's_cmp_lg_u32 s87, 0\ns_cbranch_scc1 {a}')
            p.raw(r + ':')
            LATE.append((a, [f's_cmp_eq_u32 s{sK}, 7', f's_cbranch_scc1 {r}', 's_mov_b32 exec_hi, 0', poll_load(vG0, vP2, 's40'), 's_mov_b64 exec, -1'], r))
        if b == 4:
            def n4():
                for x in finish(D0, vD0, HA, GA):
                    p(x)
                p(f's_mov_b64 exec, 0xff\n{poll_load(vFP, vPL)}\ns_mov_b64 exec, -1')

            def a4(q):
                for x in finish(D0, vD0, HA, GA)[:6]:
                    q(x)
                x_addr(q)
            if first:
                n4()
            else:
                alt7(p, n4, a4)
        if Cfg.prio_until and b == Cfg.prio_until:
            p('s_setprio 0')
        if b == 7:
            def n7():
                for x in finish(D1, vD1, HA + 2, GA + 2):
                    p(x)
                p('s_waitcnt vmcnt(0)')
                p._inopt = False
                if first:
                    p(f'v_and_b32 v{vT2}, 0xc000c000, v{vT2}\nv_cmp_ne_u32 vcc, 0, v{vT2}\ns_cbranch_vccnz L_impagain')
                poll(p, vFP, 0xff, f's{sFC}', first_issued=True)
                m = p._optmark
                xstore(p, [f'buffer_store_dwordx4 v[{GA}:{GA + 3}], v{vGA}, {WSR}, s{sGO} offen'])
                p._optmark = m

            def a7(q):
                for x in finish(D1, vD1, HA + 2, GA)[:6]:
                    q(x)
                q('s_cmp_lg_u32 s87, 0\ns_cselect_b32 exec_lo, -1, 0\ns_mov_b32 exec_hi, 0')
                q(poll_load(vG0, vP2, 's40'))
                q('s_mov_b64 exec, -1')
                q(a7_store())
            if first:
                p._optmark = len(p.hist)
                n7()
            else:
                alt7(p, n7, a7)
        if b == 8:
            def n8():
                m = p._optmark
                emit_flag_a(p)
                p._optmark = m
            def n8b():
                n8()
                m = p._optmark
                emit_tok_check(p)
                p._optmark = m
            if first:
                emit_flag_a(p)
            else:
                alt7(p, n8b, lambda q: None)


def emit_flag_c(p):
    p(f"""
    s_mul_i32 s{sFC}, s{sK}, 3
    s_add_u32 s{sFA}, s{sFC}, 1
    s_add_u32 s{sFB}, s{sFC}, 2
    v_mov_b32 v{vFV}, s{sFC}
    """)
    xstore(p, ['s_mov_b64 exec, 1', flag_store(vFO), 's_mov_b64 exec, -1'])


def emit_hops(p):
    p.label('L_hop')
    if Cfg.c_first:
        emit_flag_c(p)
    p(f"""
    s_sub_u32 s93, s{sK}, 2
    {"" if Cfg.notok else f"buffer_store_dwordx4 v[{HA}:{HA + 3}], v{vGA}, {WSR}, s{sTO} offen {Cfg.tokf}"}
    {"" if Cfg.notok else f"buffer_store_dwordx2 v[{HB}:{HB + 1}], v{vGB}, {WSR}, s{sTO} offen {Cfg.tokf}"}
    """)
    p(f"""
    v_mov_b32 v{vFV}, s93
    s_cmp_lg_u32 s{sW}, 0
    s_cbranch_scc1 L_notf
    s_lshl_b32 s93, s93, 15
    s_mov_b64 exec, 1
    {flag_store(vTF, 's93')} sc1
    s_mov_b64 exec, -1
    """)
    p.raw('L_notf:')
    if Cfg.lat:
        p('s_waitcnt vmcnt(0)')
        stamp(p, 't1', True)
    p(f's_cmp_eq_u32 s{sK}, 2\ns_cbranch_scc1 L_hop2x')
    q = Prog()
    q.auto = False
    q(f"""
    s_cmp_lt_u32 s{sTASK}, 17
    s_cbranch_scc1 L_prepA
    s_or_b32 s96, s2, s{sW}
    s_cbranch_scc1 L_keeptag
    v_mov_b32 v{vT0}, {WS_TAG}
    s_mov_b64 exec, 1
    buffer_store_dword v{vNON}, v{vT0}, {WSR}, 0 offen sc1
    s_mov_b64 exec, -1
    L_keeptag:
    s_cmp_lg_u32 s{sTASK}, 17
    s_cbranch_scc1 L_hop1
    v_and_b32 v{vT0}, 7, v1
    v_lshrrev_b32 v{vT1}, 3, v1
    v_lshlrev_b32 v{vT2}, 8, v{vT0}
    v_lshl_add_u32 v{vT2}, v{vT1}, 4, v{vT2}
    s_lshl_b32 s96, s2, 13
    s_lshr_b32 s97, s{sW}, 1
    s_lshl_b32 s92, s97, 11
    s_and_b32 s94, s{sW}, 1
    s_lshl_b32 s95, s94, 7
    s_add_u32 s92, s92, s95
    s_add_u32 s92, s92, s96
    buffer_load_dwordx4 v[46:49], v{vT2}, s[{sX_}:{sX_ + 3}], s92 offen
    s_lshr_b32 s96, s96, 2
    s_add_u32 s96, s96, s95
    s_add_u32 s96, s96, {8192 * 256}
    buffer_load_dwordx4 v[50:53], v{vT2}, s[{sX_}:{sX_ + 3}], s96 offen
    v_mul_u32_u24 v{vT1}, 640, v{vT1}
    v_lshl_add_u32 v{vT1}, v{vT0}, 3, v{vT1}
    s_mul_i32 s94, s94, 5120
    v_add_u32 v55, s94, v{vT1}
    s_lshl_b32 s97, s97, 6
    v_add_u32 v54, s97, v55
    """)
    LATE.append(('L_hop2x', [l.strip() for l in q.L], 'L_hop1'))
    p(f"""
    s_cmp_lt_u32 s{sK}, {5 if Cfg.late else Cfg.lag + 1}
    s_cbranch_scc1 L_hop1
    s_sub_u32 s87, s{sK}, {Cfg.lag}
    s_cmp_eq_u32 s{sK}, 7
    s_cselect_b32 s87, 5, s87
    s_cmp_eq_u32 s{sW}, 7
    s_cselect_b32 s87, s87, 0
    {f"s_cmp_lt_u32 s{sK}, {min(Cfg.late) - 1}" if Cfg.late else ""}
    {"s_cselect_b32 s87, 0, s87" if Cfg.late else ""}
    s_lshl_b32 s92, s{sW}, 3
    s_add_u32 s92, s92, s{sK}
    s_cmp_eq_u32 s92, 55
    s_cselect_b32 s87, 4, s87
    s_lshl_b32 s40, s87, 15
    s_lshl_b32 s92, s{sK}, 8
    s_add_u32 s92, s92, s{sTASK}
    s_sub_u32 s92, s92, 0x500
    s_cmp_lt_u32 s92, 16
    s_cbranch_scc1 L_prepD
    L_prepDr:
    s_cmp_gt_u32 s{sK}, {min(Cfg.late) - 1 if Cfg.late else Cfg.lag + 1}
    s_cbranch_scc1 L_stg
    L_stgr:
    {"" if Cfg.tpoll_at else "s_cmp_lg_u32 s87, 0"}
    {"" if Cfg.tpoll_at else "s_cbranch_scc1 L_tpl"}
    """)
    q = Prog()
    q.auto = False
    if Cfg.late:
        for k, planes in Cfg.late.items():
            l = lbl('lt')
            q(f's_cmp_lg_u32 s{sK}, {k}\ns_cbranch_scc1 {l}')
            for pl in planes:
                q(f's_mov_b32 s95, {pl}')
                stage_plane(q, 95)
            q.raw(l + ':')
    else:
        q(f's_sub_u32 s95, s{sK}, {Cfg.lag + 1}')
        if not Cfg.nostage:
            stage_plane(q, 95)
    q(f"""
    s_cmp_lg_u32 s{sK}, {Cfg.junk_at}
    s_cbranch_scc1 L_stgr
    s_lshl_b32 s92, s{sR}, 3
    s_add_u32 s92, s92, s{sW}
    s_mul_i32 s92, s92, 288
    s_add_u32 s92, s92, {WS_WF}
    v_lshlrev_b32 v{vT0}, 5, v1
    s_mov_b64 exec, 0x1ff
    buffer_load_dword v2, v{vT0}, {WSR}, s92 offen
    s_mov_b64 exec, -1
    """)
    LATE.append(('L_stg', [l.strip() for l in q.L], 'L_stgr'))
    LATE.append(('L_tpl', [f's_cmp_eq_u32 s{sK}, 7', 's_cbranch_scc1 L_hop1', 's_mov_b32 exec_hi, 0', poll_load(vG0, vP2, 's40'), 's_mov_b64 exec, -1'], 'L_hop1'))
    p.label('L_hop1')
    if Cfg.lat:
        p('s_waitcnt vmcnt(0)')
        stamp(p, 't2', True)
    p.auto = False
    p(f's_add_u32 s{sTO}, s{sTO}, {0 if Cfg.sameplane else TOK_PL}')
    if not Cfg.c_first:
        emit_flag_c(p)
    p.label('L_hop1b')
    p(f'''
    s_bitcmp1_b32 s{sQ}, 20
    s_cbranch_scc1 L_slow
    ''')
    emit_gather(p)
    p.label('L_gath_done', keep=True)
    p.forget()
    p(f'''
    s_cmp_eq_u32 s{sK}, 7
    s_cbranch_scc1 L_gath7_done
    ''')
    if not Cfg.pa_early and Cfg.pa_pre != 3:
        p(f's_mov_b64 exec, 0xff\n{poll_load(vFP, vPL)}\ns_mov_b64 exec, -1')
    for x in finish(D2, vD2, HB, GB):
        p(x)
    xstore(p, [f'buffer_store_dwordx2 v[{GB}:{GB + 1}], v{vGB}, {WSR}, s{sGO} offen'])
    stamp(p, 'gath', True)
    if Cfg.pa_pre == 1:
        p('s_waitcnt vmcnt(1)')
        poll(p, vFP, 0xff, f's{sFA}', first_issued=True)
    if Cfg.pa_pre in (2, 3):
        p(f'v_mov_b32 v{vFV}, s{sFB}\ns_waitcnt vmcnt(0)')
        xstore(p, ['s_mov_b64 exec, 1', flag_store(vFO), 's_mov_b64 exec, -1'])
    if Cfg.pa_pre == 2:
        poll(p, vFP, 0xff, f's{sFA}', first_issued=True)
    if Cfg.pa_pre == 3:
        p(f's_mov_b64 exec, 0xff\n{poll_load(vFP, vPL)}\ns_mov_b64 exec, -1')
    p('s_barrier')
    stamp(p, 'bar1', True)
    if Cfg.pa_pre < 2:
        p(f'v_mov_b32 v{vFV}, s{sFB}\ns_waitcnt vmcnt(0)')
        xstore(p, ['s_mov_b64 exec, 1', flag_store(vFO), 's_mov_b64 exec, -1'])
    if Cfg.pa_pre == 3:
        p('s_waitcnt vmcnt(0)')
    if Cfg.pa_pre in (0, 3):
        poll(p, vFP, 0xff, f's{sFA}', first_issued=True)
    stamp(p, 'pollA', True)

    def dA(i):
        p(f's_add_u32 m0, s{sLA}, s{sOFF + i}\ns_add_u32 s97, s{sGO}, s{sOFF + i}')
        p(f'buffer_load_dwordx4 v{vDA}, {WSR}, s97 offen sc1 lds')
    for i in range(Cfg.pollb_at):
        dA(i)
    p(f"""
    s_cmp_lt_u32 s{sW}, 4
    s_cselect_b32 exec_lo, 0xffff, 0
    s_mov_b32 exec_hi, 0
    {poll_load(vG0, vPL)}
    s_mov_b64 exec, -1
    """)
    for i in range(Cfg.pollb_at, 7):
        dA(i)
    p(f'ds_write_b128 v{vOWN}, v[{GA}:{GA + 3}]')
    p(f's_cmp_ge_u32 s{sW}, 4\ns_cbranch_scc1 L_nob\ns_waitcnt vmcnt({7 - Cfg.pollb_at})')
    poll(p, vG0, 0xffff, f's{sFB}', first_issued=True)
    stamp(p, 'pollB', True)
    p(f's_mov_b32 m0, s{sLB}')
    for j in range(4):
        p(f'buffer_load_dwordx4 v{vDB}, {WSR}, s{sGO} offen offset:{1024 * j} sc1 lds')
    p.raw('L_nob:')
    stamp(p, 'pp0', True)
    p(f's_cmp_lt_u32 s{sTASK}, 18\ns_cbranch_scc1 L_prepW')
    p.raw('L_prepB_back:')
    stamp(p, 'pp1', True)
    LATE.append(('L_bxw', ['ds_write_b64 v54, v[46:47]', 'ds_write_b64 v54, v[48:49] offset:320',
                           'ds_write_b64 v55, v[50:51] offset:256', 'ds_write_b64 v55, v[52:53] offset:576', f's_mov_b32 s{sTASK}, 99'], 'L_prepB_back'))
    LATE.append(('L_prepW', [f's_cmp_eq_u32 s{sK}, 1', 's_cbranch_scc1 L_prepB_back',
                             f's_cmp_eq_u32 s{sTASK}, 17', 's_cbranch_scc1 L_bxw', f's_cmp_eq_u32 s{sK}, 2', 's_cbranch_scc1 L_prepB', f's_cmp_eq_u32 s{sTASK}, 16', 's_cbranch_scc1 L_prepB_back',
                             f's_cmp_eq_u32 s{sK}, 3', 's_cbranch_scc1 L_prepB2',
                             f's_cmp_eq_u32 s{sK}, 4', 's_cbranch_scc1 L_prepC'], 'L_prepB_back'))
    p(f'''
    s_waitcnt vmcnt(0) lgkmcnt(0)
    L_bar2:
    s_barrier
    ''')
    stamp(p, 'bar2', True)
    p(f's_add_u32 s{sK}, s{sK}, 1\ns_branch L_hop')
    p.auto = True
    emit_slow_unit(p)
    emit_prep_blocks(p)
    emit_late(p)


def emit_handoff(p):
    p.label('L_gath7_done')
    p.forget()
    p.auto = False
    p(f's_mov_b32 s94, {WS_X7}\ns_nop 4')
    for x in finish(D2, vD2, Z2, GB)[:6]:
        p(x)
    p('s_waitcnt vmcnt(0)')
    p(x7_store(Z2, vGB, 94))
    stamp(p, 'gath7')
    emit_tok_check(p)
    p('s_barrier')
    for pl in range(7 - Cfg.lag, 6):
        p(f's_mov_b32 s95, {pl}')
        stage_plane(p, 95)
    p(f"""
    v_lshlrev_b32 v{vT2}, 4, v1
    s_lshl_b32 s92, s{sW}, 13
    s_add_u32 s93, s92, {WS_WF}
    s_add_u32 s92, s92, {L_W}
    s_mov_b32 m0, s92
    s_add_u32 s94, s93, 4096
    """)
    ldb = f'buffer_load_dwordx4 v[{Y + 8}:{Y + 11}], v{YB}, {WSR}, s82 offen sc1'
    for i in range(8):
        if i == 4:
            p('s_add_u32 m0, s92, 4096')
        if i == Cfg.x7_at:
            p(f's_mov_b32 exec_hi, 0\n{ldb}\ns_mov_b64 exec, -1')
        p(f'buffer_load_dwordx4 v{vT2}, {WSR}, s{93 + i // 4} offen offset:{1024 * (i % 4)} sc1 lds')
    p(f"""
    s_and_b32 s92, s{sW}, 3
    s_lshl_b32 s92, s92, 10
    s_add_u32 s93, s92, {WS_WF + 65536}
    s_add_u32 m0, s92, {L_LIN}
    v_mov_b32 v{vT3}, {WS_WF + 69632}
    buffer_load_dwordx4 v{vT2}, {WSR}, s93 offen sc1 lds
    buffer_load_dword v{vSWR}, v{vT3}, {WSR}, 0 offen sc1
    s_lshr_b32 s78, s2, 2
    s_and_b32 s79, s2, 3
    """)
    p.auto = True
    p.forget()
    emit_tf_setup(p, sW, 78, 79, 92)
    p('s_mov_b32 exec_hi, 0')
    if Cfg.x7_at > 7:
        p(ldb)
    p(f's_waitcnt vmcnt({max(0, 10 - Cfg.x7_at)})')
    chk = [f'v_xor_b32 v{vT0}, v{Y + 10}, v{vNON}', f'v_xor_b32 v{vT1}, v{Y + 11}, v{vNON}', f'v_or_b32 v{vT0}, v{vT0}, v{vT1}',
           f'v_cmp_ne_u32 vcc, 0, v{vT0}', 's_cbranch_vccnz L_x7again']
    for x in chk:
        p(x)
    LATE.append(('L_x7again', [f's_sleep {Cfg.nap}', ldb, f's_add_u32 s{sSPIN}, s{sSPIN}, 1', f's_cmp_gt_u32 s{sSPIN}, {SPIN_MAX}',
                               's_cbranch_scc1 L_end', 's_waitcnt vmcnt(0)'] + chk, 'L_x7ok'))
    p.label('L_x7ok')
    p(f'ds_write_b64 v{LB}, v[{Y + 8}:{Y + 9}]\ns_mov_b64 exec, -1')
    stamp(p, 'hint7')
    p(f"""
    s_mul_i32 s93, s{sW}, 1280
    s_mov_b32 s92, {WS_TOK + 6 * TOK_PL}
    s_mov_b32 s94, {WS_TOK + 7 * TOK_PL}
    s_add_u32 m0, s93, {6 * L_PL}
    s_nop 0
    buffer_load_dwordx4 v{E0}, {WSR}, s92 offen sc1 lds
    s_add_u32 m0, s93, {7 * L_PL}
    s_mov_b64 exec, s[80:81]
    buffer_load_dwordx4 v{E0}, {WSR}, s94 offen sc1 lds
    s_add_u32 m0, s93, {6 * L_PL + 1024}
    s_mov_b64 exec, 0xffff
    buffer_load_dwordx4 v{E1}, {WSR}, s92 offen sc1 lds
    s_add_u32 m0, s93, {7 * L_PL + 1024}
    s_mov_b64 exec, 0xfff
    buffer_load_dwordx4 v{E1}, {WSR}, s94 offen sc1 lds
    s_mov_b64 exec, -1
    """)
    if Cfg.st:
        p(f'''
        v_writelane_b32 v{vST}, s{sQ}, 22
        v_writelane_b32 v{vST}, s{sSLOW}, 23
        s_lshl_b32 s80, s2, 3
        s_add_u32 s80, s80, s{sW}
        s_lshl_b32 s80, s80, 8
        s_add_u32 s80, s80, {WS_OVF}
        v_lshl_add_u32 v{vT0}, v1, 2, s80
        buffer_store_dword v{vST}, v{vT0}, {WSR}, 0 offen
        ''')
    p('s_waitcnt vmcnt(0) lgkmcnt(0)\ns_barrier')
    if Cfg.st:
        p('s_memtime s[82:83]\ns_waitcnt lgkmcnt(0)')
    p(f's_cmp_ge_u32 s{sW}, 4\ns_cbranch_scc1 L_tf_two')
    emit_tf(p, 3, sOUT)
    p('s_branch L_tf_fin')
    emit_late(p)
    p.label('L_tf_two')
    p.forget()
    emit_tf(p, 2, sOUT)
    p.label('L_tf_fin')
    if Cfg.st:
        p(f'''
        s_memtime s[84:85]
        s_memrealtime s[86:87]
        s_waitcnt lgkmcnt(0)
        v_mov_b32 v2, s80
        v_mov_b32 v4, s82
        v_mov_b32 v5, s84
        v_mov_b32 v6, s86
        s_mov_b64 exec, 1
        buffer_store_dwordx2 v[4:5], v2, {WSR}, 0 offen offset:248
        buffer_store_dword v6, v2, {WSR}, 0 offen offset:80
        ''')


def gen(st=False, **kw):
    Cfg.st = st
    for k, v in kw.items():
        setattr(Cfg, k, v)
    STAMPS.clear()
    PRIO.clear()
    PRIO.update({(2, 1): 1})
    OPT.update(pk3=0, pk5=1, bw=1)
    p = Prog()
    p.raw('; @launch grid=(256,1,1) block=(512,1,1) lds=163840')
    p.raw('.amdgcn_target "amdgcn-amd-amdhsa--gfx950"\n.text')
    p.kstart(KN)
    p.junk = {('v', 2), ('v', 3)}
    emit_prologue(p)
    emit_g1(p)
    emit_b2(p)
    emit_hops(p)
    p.junk = set()
    emit_handoff(p)
    p.label('L_end')
    p('s_endpgm')
    p.raw('L_code_end:')
    p.raw('.section .rodata,"a"\n.p2align 6')
    p.kdesc(KN, vgpr=256)
    if st:
        json.dump(STAMPS, open(kw.get('names', 'stamps.json'), 'w'))
    print('nops', p.nnop, 'lines', len(p.L))
    return p.text()


if __name__ == '__main__':
    import copy
    base = {k: v for k, v in vars(Cfg).items() if not k.startswith('__')}

    def out(name, st, **kw):
        for k, v in base.items():
            setattr(Cfg, k, v)
        open(name, 'w').write(gen(st, names=name + '.json', **kw))
    if len(sys.argv) > 1:
        for spec in sys.argv[1:]:
            name, _, rest = spec.partition(':')
            kw = dict((x.split('=')[0], eval(x.split('=')[1])) for x in rest.split(';') if x)
            kw.setdefault('hopst', ('bar2',))
            out(name, True, **kw)
    else:
        out('k_st.s', True)
        out('k_st1.s', True, hopst=('bar2',))
        out('k_slow8.s', False, force_slow=8)
        out('k.s', False)
```
